```python
import torch

def _softmax(x, axis=-1):
    return torch.softmax(x, dim=axis)
def _gelu(x):
    return torch.nn.functional.gelu(x, approximate="tanh")
def _silu(x):
    return torch.nn.functional.silu(x)
def _sigmoid(x):
    return torch.sigmoid(x)
def _layernorm(x, axis=-1, eps=1e-5):
    m = x.mean(dim=axis, keepdim=True)
    v = x.var(dim=axis, keepdim=True, unbiased=False)
    return (x - m) / torch.sqrt(v + eps)
def _scatter_add(tgt, idx, src, axis=0):
    return tgt.clone().index_add_(axis, idx, src)
def _segment_sum(src, seg, n):
    out = torch.zeros((n,) + src.shape[1:], dtype=src.dtype)
    return out.index_add_(0, seg, src)
def _pad(x, pw):
    flat = tuple(v for pair in reversed(pw) for v in pair)
    return torch.nn.functional.pad(x, flat)

kernel_name = 'recurrent_scan__ssm_conv_s4__moe_arch_mod__prompt'

def setup_inputs():

    _w = (lambda a: (lambda t: t.to(torch.bfloat16) if t.is_floating_point() else t)(torch.as_tensor(a)))
    def _A_setup():
        B, L, D, N = 1, 2048, 576, 128
        A_re = -(lambda _x: torch.exp(torch.as_tensor(_x)))((lambda *s: torch.randn(*s, dtype=torch.bfloat16) * 6.4)(D, N))
        A_im = torch.pi * (lambda *s: torch.randn(*s, dtype=torch.bfloat16) * 0.05)(D, N)
        B_re = (lambda *s: torch.randn(*s, dtype=torch.bfloat16) * 0.1)(D, N)
        B_im = (lambda *s: torch.randn(*s, dtype=torch.bfloat16) * 0.1)(D, N)
        C_re = (lambda *s: torch.randn(*s, dtype=torch.bfloat16) * 0.1)(D, N)
        C_im = (lambda *s: torch.randn(*s, dtype=torch.bfloat16) * 0.1)(D, N)
        log_dt = (lambda *s: torch.randn(*s, dtype=torch.bfloat16) * 0.05)(D) * 0.5 - 4.0
        Dskip = (lambda *s: torch.randn(*s, dtype=torch.bfloat16) * 0.05)(D)
        return {
            "u": _w((lambda *s: torch.randn(*s, dtype=torch.bfloat16) * 0.05)(B, L, D)),
            "A_re": _w(A_re),
            "A_im": _w(A_im),
            "B_re": _w(B_re),
            "B_im": _w(B_im),
            "C_re": _w(C_re),
            "C_im": _w(C_im),
            "log_dt": _w(log_dt),
            "Dskip": _w(Dskip),
        }
    _A_in = _A_setup()

    def _B_setup():
        B, S, D, F, C = 1, 2048, 576, 4608, 8
        return {
            "x": _w((lambda *s: torch.randn(*s, dtype=torch.bfloat16) * 0.05)(B, S, D)),
            "w_r": _w((lambda *s: torch.randn(*s, dtype=torch.bfloat16) * 0.05)(D)),
            "w_gate": _w((lambda *s: torch.randn(*s, dtype=torch.bfloat16) * 0.05)(D, F)),
            "w_up": _w((lambda *s: torch.randn(*s, dtype=torch.bfloat16) * 0.05)(D, F)),
            "w_down": _w((lambda *s: torch.randn(*s, dtype=torch.bfloat16) * 0.05)(F, D)),
        }
    _B_in = _B_setup()

    return {
        "A_u": _A_in["u"],
        "A_A_re": _A_in["A_re"],
        "A_A_im": _A_in["A_im"],
        "A_B_re": _A_in["B_re"],
        "A_B_im": _A_in["B_im"],
        "A_C_re": _A_in["C_re"],
        "A_C_im": _A_in["C_im"],
        "A_log_dt": _A_in["log_dt"],
        "A_Dskip": _A_in["Dskip"],
        "B_x": _B_in["x"],
        "B_w_r": _B_in["w_r"],
        "B_w_gate": _B_in["w_gate"],
        "B_w_up": _B_in["w_up"],
        "B_w_down": _B_in["w_down"],
    }

def reference(A_u, A_A_re, A_A_im, A_B_re, A_B_im, A_C_re, A_C_im, A_log_dt, A_Dskip, B_x, B_w_r, B_w_gate, B_w_up, B_w_down):
    def _A_ref(u, A_re, A_im, B_re, B_im, C_re, C_im, log_dt, Dskip):
        Bsz, L, D = u.shape
        dt = torch.exp(log_dt)[:, None]
        A = A_re + 1j * A_im
        Bc = B_re + 1j * B_im
        Cc = C_re + 1j * C_im
        logdA = dt * A
        dB = dt * Bc
        l = (lambda x, dt: x.to(dt))(torch.arange(L), A_re.dtype)
        P = torch.exp(logdA[:, :, None] * l[None, None, :])
        K = torch.einsum("dn,dnl,dn->dl", Cc, P, dB).real
        L2 = 2 * L
        Kp = _pad(K, ((0, 0), (0, L)))
        up = (lambda x, *d: x.permute(*d))(u, 0, 2, 1)
        up = _pad(up, ((0, 0), (0, 0), (0, L)))
        Kf = (lambda x, axes=(-2,-1): torch.fft.rfft2(x.float(), dim=axes))(Kp[:, None, :], axes=(-2, -1))
        Uf = (lambda x, axes=(-2,-1): torch.fft.rfft2(x.float(), dim=axes))(up[:, :, None, :], axes=(-2, -1))
        Yf = Uf * Kf[None, :, :, :]
        y = (lambda x, s, axes=(-2,-1): torch.fft.irfft2(x, s=s, dim=axes).to(torch.bfloat16))(Yf, (1, L2), axes=(-2, -1))[:, :, 0, :L]
        y = (lambda x, *d: x.permute(*d))(y, 0, 2, 1) + u * Dskip[None, None, :]
        return y

    def _B_ref(x, w_r, w_gate, w_up, w_down):
        B, S, D = x.shape
        C = 8
        r = x @ w_r
        idx = torch.argsort(-r, axis=-1)[:, :C]
        idx_e = (lambda x, n, axis: torch.repeat_interleave(x, n, dim=axis))(idx.reshape(B, C, 1), D, axis=2)
        x_sel = (lambda x, i, axis: torch.take_along_dim(x, i, dim=axis))(x, idx_e, axis=1)
        g = _silu(x_sel @ w_gate)
        u = x_sel @ w_up
        y = (g * u) @ w_down
        r_sel = _sigmoid((lambda x, i, axis: torch.take_along_dim(x, i, dim=axis))(r, idx, axis=1))
        y = y * r_sel.reshape(B, C, 1)
        b_off = (torch.arange(B) * S).reshape(B, 1)
        flat_idx = (idx + b_off).reshape(B * C)
        zero = (x * 0.0).reshape(B * S, D)
        upd = _scatter_add(zero, flat_idx, y.reshape(B * C, D), axis=0)
        return x + upd.reshape(B, S, D)

    x = A_u
    xn = _layernorm(x, axis=-1)
    s = _A_ref(xn, A_A_re, A_A_im, A_B_re, A_B_im, A_C_re, A_C_im, A_log_dt, A_Dskip)
    g = _silu(_B_ref(xn, B_w_r, B_w_gate, B_w_up, B_w_down))
    return x + s * g
```

```python
import re

TRANS = ("v_exp_f32", "v_log_f32", "v_rcp_f32", "v_rsq_f32", "v_sqrt_f32", "v_sin_f32", "v_cos_f32")

def _regs(tok):
    tok = tok.strip()
    tok = re.sub(r"^-|^\||\|$", "", tok)
    m = re.match(r"^abs\((.*)\)$", tok)
    if m: tok = m.group(1)
    m = re.match(r"^([vsa])(\d+)$", tok)
    if m: return {(m.group(1), int(m.group(2)))}
    m = re.match(r"^([vsa])\[(\d+):(\d+)\]$", tok)
    if m: return {(m.group(1), i) for i in range(int(m.group(2)), int(m.group(3)) + 1)}
    if tok in ("vcc", "vcc_lo", "vcc_hi"): return {("s", "vcc")}
    if tok in ("exec", "exec_lo", "exec_hi"): return {("s", "exec")}
    if tok == "m0": return {("s", "m0")}
    return set()

class Ins:
    def __init__(self, text):
        self.text = text
        t = text.split(";")[0].strip()
        self.label = None; self.op = None; self.dst = set(); self.src = set()
        self.directive = False
        if not t: self.directive = True; return
        if t.endswith(":"): self.label = t[:-1]; return
        if t.startswith("."): self.directive = True; return
        parts = t.split(None, 1)
        self.op = op = parts[0]
        rest = parts[1] if len(parts) > 1 else ""
        ops = []; depth = 0; cur = ""
        for ch in rest:
            if ch in "[(": depth += 1
            if ch in "])": depth -= 1
            if ch == "," and depth == 0: ops.append(cur); cur = ""
            else: cur += ch
        ops.append(cur)
        self.mods = ""
        if ops:
            last = ops[-1].strip().split(None, 1)
            if last:
                ops[-1] = last[0]
                self.mods = last[1] if len(last) > 1 else ""
        self.ops = [o.strip() for o in ops]
        R = [_regs(o) for o in self.ops]
        U = lambda l: set().union(*l) if l else set()
        self.valu = op.startswith("v_") and not op.startswith("v_mfma")
        self.mfma = op.startswith("v_mfma")
        self.salu = op.startswith("s_")
        self.ds = op.startswith("ds_")
        self.vmem = op.startswith("buffer_") or op.startswith("global_")
        self.dpp = "_dpp" in op or "row_" in self.mods or "wave_" in self.mods or "quad_perm" in self.mods
        self.trans = any(op.startswith(x) for x in TRANS)
        self.dot = op.startswith("v_dot")
        self.ldsdma = self.vmem and (" lds" in " " + self.mods or "load_lds" in op)
        self.wide_store = False
        if self.mfma:
            self.dst = R[0]; self.srcA = R[1]; self.srcB = R[2]; self.srcC = R[3]; self.src = U(R[1:])
            self.passes = 8 if "32x32" in op else 4
        elif self.valu:
            if op.startswith("v_cmp"):
                self.dst = R[0]; self.src = U(R[1:])
                if op.startswith("v_cmpx"): self.dst = self.dst | {("s", "exec")}
            elif op.startswith("v_permlane") and "swap" in op or op.startswith("v_swap"):
                self.dst = U(R[:2]); self.src = U(R[:2])
            elif re.match(r"v_(add|sub|subrev)_co_u32", op):
                self.dst = U(R[:2]); self.src = U(R[2:])
            elif re.match(r"v_(addc|subb)_co_u32", op):
                self.dst = U(R[:2]); self.src = U(R[2:])
            elif op == "v_nop":
                pass
            else:
                self.dst = R[0]; self.src = U(R[1:])
                if op.startswith(("v_fmac", "v_dot2c", "v_writelane")) or self.dpp or "sdwa" in op:
                    self.src = self.src | R[0]
        elif self.ds:
            if op.startswith(("ds_read", "ds_bpermute", "ds_permute", "ds_swizzle")) or "_rtn" in op:
                self.dst = R[0]; self.src = U(R[1:])
                if "d16" in op: self.src = self.src | R[0]
            else:
                self.src = U(R)
            if "addtid" in op: self.src = self.src | {("s", "m0")}
        elif self.vmem:
            if self.ldsdma:
                self.src = U(R) | {("s", "m0")}
            elif "load" in op:
                self.dst = R[0]; self.src = U(R[1:])
            else:
                self.src = U(R)
                if "dwordx3" in op or "dwordx4" in op:
                    self.wide_store = True
                    self.sdata = R[1] if op.startswith("global_") else R[0]
        elif self.salu:
            if op.startswith(("s_cmp", "s_cbranch", "s_branch", "s_waitcnt", "s_barrier", "s_nop", "s_endpgm", "s_sleep", "s_setprio", "s_bitcmp")):
                self.src = U(R)
            else:
                self.dst = R[0] if R else set(); self.src = U(R[1:])
                if "saveexec" in op: self.dst = self.dst | {("s", "exec")}
    def states(self):
        if self.op == "s_nop": return int(self.ops[0], 0) + 1
        return 1

def need(p, c):
    n = 0
    V = lambda s: {r for r in s if r[0] in "va"}
    S = lambda s: {r for r in s if r[0] == "s"}
    if p.valu:
        vd = V(p.dst); sd = S(p.dst)
        if c.dpp and vd & V(c.src): n = max(n, 2)
        if c.mfma and vd & c.src: n = max(n, 3 if p.dot else 2)
        if c.valu and c.op.startswith("v_permlane") and vd & c.src: n = max(n, 2)
        if c.valu and c.op.startswith(("v_readlane", "v_readfirstlane")) and vd & V(c.src): n = max(n, 1)
        if p.trans and c.valu and not c.trans and vd & c.src: n = max(n, 1)
        if p.trans and c.valu and c.trans and vd & c.src: n = max(n, 1)
        if p.dot and (vd & (c.src | c.dst)):
            same = c.valu and c.op == p.op
            if same:
                others = set().union(*[_regs(o) for o in c.ops[1:3]])
                if vd & others: n = max(n, 3)
            else: n = max(n, 3)
        if ("sdwa" in p.op or ("op_sel" in p.mods and not p.op.startswith("v_pk_"))) and c.valu and vd & (c.src | c.dst): n = max(n, 1)
        if sd:
            if c.valu and (sd - {("s", "exec")}) & S(c.src):
                n = max(n, 4 if c.op.startswith(("v_readlane", "v_writelane")) else 2)
            if c.vmem and sd & S(c.src): n = max(n, 5)
            if ("s", "exec") in sd:
                if c.dpp: n = max(n, 5)
                if c.mfma or (c.valu and c.op.startswith(("v_readlane", "v_readfirstlane", "v_writelane", "v_permlane"))): n = max(n, 4)
            if c.salu and sd & S(c.src) and not c.op.startswith("s_cbranch"): n = max(n, 1)
    if p.mfma:
        big = {4: 8, 8: 12}[p.passes]
        if c.mfma:
            if p.dst & (c.srcA | c.srcB): n = max(n, big)
            if p.dst & c.srcC and not (p.dst == c.srcC and p.passes == c.passes): n = max(n, {4: 6, 8: 10}[p.passes])
            elif p.dst & c.dst and not (p.dst == c.srcC): n = max(n, {4: 6, 8: 10}[p.passes])
        elif (c.valu or c.vmem or c.ds) and p.dst & (c.src | c.dst): n = max(n, big)
        if c.valu and p.srcC & c.dst: n = max(n, {4: 3, 8: 7}[p.passes])
    if p.salu and ("s", "m0") in p.dst and ("s", "m0") in c.src and (c.ds or c.vmem): n = max(n, 1)
    if p.wide_store and p.sdata & c.dst: n = max(n, 2 if c.valu else 1)
    return n

WINDOW = 14

def fix_hazards(lines, verbose=False):
    ins = [Ins(l) for l in lines]
    out = []
    def back(seq, c):
        dist = 0; extra = 0
        for p in reversed(seq):
            if p.op is None: continue
            extra = max(extra, need(p, c) - dist)
            dist += p.states()
            if dist > WINDOW: break
        return extra
    start = 0
    nins = 0
    for c in ins:
        if c.op is not None:
            e = back(out[start:][-3 * WINDOW:], c)
            if e > 0:
                out.append(Ins(f"    s_nop {e-1}")); nins += 1
                if verbose: print("nop", e, "before", c.text.strip())
        out.append(c)
        if c.op in ("s_branch", "s_endpgm", "s_setpc_b64"): start = len(out)
    lab = {c.label: i for i, c in enumerate(out) if c.label}
    for i, c in enumerate(out):
        if c.op and (c.op.startswith("s_cbranch") or c.op == "s_branch"):
            t = c.ops[0]
            if t not in lab: continue
            pre = [x for x in out[max(0, i - 3 * WINDOW):i + 1] if x.op]
            seq = list(pre); d = 0
            for x in out[lab[t]:]:
                if x.op is None: continue
                dist = 0
                for k, p in enumerate(reversed(seq)):
                    if k >= len(seq) - len(pre) and need(p, x) > dist:
                        raise RuntimeError(f"hazard across branch {c.text.strip()}: {p.text.strip()} -> {x.text.strip()}")
                    dist += p.states()
                    if dist > WINDOW: break
                seq.append(x); d += x.states()
                if d > WINDOW or x.op in ("s_branch", "s_endpgm"): break
    return [c.text for c in out], nins

class Asm:
    def __init__(self): self.l = []
    def __call__(self, s):
        for line in s.split("\n"):
            t = line.strip()
            if not t: continue
            if t.split(";")[0].strip().endswith(":") or t.startswith("."): self.l.append(t)
            else: self.l.append("    " + t)
    def text(self, verbose=False):
        o, n = fix_hazards(self.l, verbose)
        return "\n".join(o) + "\n"

def vr(a, n=1): return f"v{a}" if n == 1 else f"v[{a}:{a+n-1}]"
def sr(a, n=1): return f"s{a}" if n == 1 else f"s[{a}:{a+n-1}]"
```

```python
from asmlib import Asm, vr, sr
import struct
def f2u(x): return "0x%08x" % struct.unpack("<I", struct.pack("<f", x))[0]
LOG2E = 1.4426950408889634
INV2PI = 0.15915494309189535

STAT = 0
IDX = 0x8000
PART = 0x10000
GRAN = 0x200000

HEADER = """; Kernarg layout for this problem (136 bytes, ptrs only, base s[0:1]):
"""

def kernel_begin(a, name):
    a(f""".text
.globl {name}
.p2align 8
.type {name},@function
{name}:""")

def descriptor(name, vgpr, sgpr):
    acc = (vgpr + 3) // 4 * 4
    return f""".amdhsa_kernel {name}
  .amdhsa_next_free_vgpr {vgpr}
  .amdhsa_next_free_sgpr {sgpr}
  .amdhsa_accum_offset {acc}
  .amdhsa_group_segment_fixed_size 0
  .amdhsa_kernarg_size 136
  .amdhsa_user_sgpr_count 2
  .amdhsa_user_sgpr_kernarg_segment_ptr 1
  .amdhsa_system_sgpr_workgroup_id_x 1
  .amdhsa_float_denorm_mode_32 3
.end_amdhsa_kernel
"""

def dpp_reduce(a, op, regs):
    for ctl in ("row_shr:1 row_mask:0xf", "row_shr:2 row_mask:0xf", "row_shr:4 row_mask:0xf", "row_shr:8 row_mask:0xf",
                "row_bcast:15 row_mask:0xa", "row_bcast:31 row_mask:0xc"):
        for r in regs:
            a(f"{op}_dpp v{r}, v{r}, v{r} {ctl} bank_mask:0xf")

def cmul(a, d, x, z, t):
    a(f"v_pk_mul_f32 {vr(t,2)}, {vr(x,2)}, {vr(z,2)} op_sel:[0,0] op_sel_hi:[0,1]")
    a(f"v_pk_fma_f32 {vr(d,2)}, {vr(x,2)}, {vr(z,2)}, {vr(t,2)} op_sel:[1,1,0] op_sel_hi:[1,0,1] neg_lo:[0,1,0]")
```

```python
import sys
from parts import *

def k_ln(a):
    kernel_begin(a, "ln_kernel")
    a(f"""
    s_load_dwordx2 s[4:5], s[0:1], 0
    s_load_dwordx2 s[6:7], s[0:1], 80
    s_load_dwordx2 s[8:9], s[0:1], 128
    s_cmp_ge_u32 s2, 256
    s_cbranch_scc1 ln_end
    v_lshrrev_b32 v1, 6, v0
    v_and_b32 v2, 63, v0
    v_readfirstlane_b32 s10, v1
    s_mul_i32 s11, s2, 9216
    v_lshlrev_b32 v3, 4, v2
    v_lshlrev_b32 v4, 1, v2
    v_mul_u32_u24 v5, 1152, v1
    v_add3_u32 v6, v5, v3, s11
    v_add3_u32 v7, v5, v4, s11
    v_and_b32 v8, 7, v0
    v_mul_u32_u24 v9, 1152, v8
    v_and_b32 v10, 0x1f8, v0
    v_add3_u32 v9, v9, v10, s11
    s_mov_b32 s12, 0x3f803f80
    s_mov_b32 s13, 0                   ; tag
    s_mov_b32 s14, 0xffff
    s_waitcnt lgkmcnt(0)
    global_load_dwordx4 v[12:15], v6, s[4:5]
    global_load_ushort v16, v7, s[4:5] offset:1024
    global_load_dwordx4 v[20:23], v3, s[6:7]
    global_load_ushort v24, v4, s[6:7] offset:1024
    s_cmp_ge_u32 s10, 2
    s_cbranch_scc1 ln_no2
    global_load_dwordx2 v[36:37], v9, s[4:5] offset:1024
ln_no2:
    global_load_dwordx2 v[28:29], v9, s[4:5]
    global_load_dwordx2 v[32:33], v9, s[4:5] offset:512
    v_mov_b32 v40, 0
    v_mov_b32 v41, 0
    v_mov_b32 v42, 0
    v_mov_b32 v43, 0
    v_lshlrev_b32 v11, 12, v10
    v_lshlrev_b32 v8, 4, v8
    s_lshl_b32 s15, s2, 7
    s_add_u32 s15, s15, {GRAN}
    v_add3_u32 v11, v11, v8, s15
    v_lshlrev_b32 v5, 4, v1
    s_waitcnt vmcnt(2)
    """)
    for i in range(5):
        a(f"""v_dot2c_f32_bf16 v40, s12, v{12+i}
        v_dot2c_f32_bf16 v41, v{12+i}, v{12+i}
        v_dot2c_f32_bf16 v42, v{12+i}, v{20+i}
        v_dot2c_f32_bf16 v43, s12, v{20+i}""")
    dpp_reduce(a, "v_add_f32", [40, 41, 42, 43])
    a(f"""
    v_mul_f32 v40, {f2u(1/576)}, v40
    v_mul_f32 v41, {f2u(1/576)}, v41
    v_fma_f32 v41, -v40, v40, v41
    v_max_f32 v41, 0, v41
    v_cvt_pk_bf16_f32 v44, v40, v41
    v_and_b32 v41, 0xffff0000, v44
    v_add_f32 v41, {f2u(1e-5)}, v41
    v_cvt_pk_bf16_f32 v41, v41, v41
    v_lshlrev_b32 v41, 16, v41
    v_sqrt_f32 v41, v41
    v_lshlrev_b32 v49, 16, v44
    v_cvt_pk_bf16_f32 v45, v41, v41
    v_lshlrev_b32 v41, 16, v45
    v_rcp_f32 v48, v41
    v_fma_f32 v42, -v49, v43, v42
    v_bfi_b32 v50, s14, v44, v45
    v_mul_f32 v42, v42, v48
    v_cvt_pk_bf16_f32 v42, v42, v42
    v_ashrrev_i32 v43, 31, v42
    v_or_b32 v43, 0x80000000, v43
    v_xor_b32 v42, v42, v43
    v_and_b32 v42, 0xffff0000, v42
    v_or_b32 v51, s13, v42
    v_or_b32 v49, s13, v49
    s_mov_b32 exec_lo, 0
    s_mov_b32 exec_hi, 0x80000000
    ds_write_b128 v5, v[48:51]
    s_mov_b64 exec, -1
    s_waitcnt lgkmcnt(0)
    s_barrier
    ds_read_b64 v[30:31], v8
    ds_read_b64 v[34:35], v8
    ds_read_b64 v[38:39], v8
    ds_read_b64 v[40:41], v8 offset:8
    v_add_u32 v12, 0x200000, v11
    v_add_u32 v13, 0x400000, v11
    s_waitcnt vmcnt(0) lgkmcnt(0)
    s_cmp_lg_u32 s10, 7
    s_cbranch_scc1 ln_nostat
    s_lshl_b32 s15, s2, 6
    v_lshrrev_b32 v14, 1, v8
    v_add_u32 v14, s15, v14
    s_mov_b64 exec, 0xff
    global_store_dwordx2 v14, v[40:41], s[8:9] offset:{STAT}
    s_mov_b64 exec, -1
ln_nostat:
    global_store_dwordx4 v11, v[28:31], s[8:9]
    global_store_dwordx4 v12, v[32:35], s[8:9]
    s_cmp_ge_u32 s10, 2
    s_cbranch_scc1 ln_end
    global_store_dwordx4 v13, v[36:39], s[8:9]
ln_end:
    s_endpgm
    """)

F_SM = 147456
F_MAX = F_SM
F_CNT = F_SM + 32
F_SEL = F_SM + 64
F_LIST = F_SM + 128
F_H = F_LIST + 8192 + 16
F_LDS = F_H + 2048
XS = 40; GO = 112; UO = 184

def k_ffn(a):
    kernel_begin(a, "ffn_kernel")
    a(f"""
    s_load_dwordx2 s[4:5], s[0:1], 0
    s_load_dwordx4 s[16:19], s[0:1], 88
    s_load_dwordx2 s[20:21], s[0:1], 104
    s_load_dwordx2 s[8:9], s[0:1], 128
    s_cmp_ge_u32 s2, 72
    s_cbranch_scc1 ffn_end
    v_lshrrev_b32 v1, 6, v0
    v_and_b32 v2, 63, v0
    v_readfirstlane_b32 s10, v1
    v_lshrrev_b32 v3, 3, v0            ; row 8w + r
    v_bfe_u32 v4, v0, 4, 1             ; (r>>1)&1
    v_bfe_u32 v5, v0, 6, 1             ; w&1
    v_lshl_add_u32 v4, v5, 1, v4       ; g
    v_lshlrev_b32 v4, 1, v4
    v_and_b32 v6, 7, v0
    v_xor_b32 v4, v4, v6
    v_mul_u32_u24 v5, 9216, v3
    v_lshlrev_b32 v4, 4, v4
    s_lshl_b32 s11, s2, 7
    v_add3_u32 v4, v4, v5, s11
    v_mul_u32_u24 v5, 1152, v3
    v_lshlrev_b32 v6, 4, v6
    s_mul_i32 s12, s2, 73728
    v_add3_u32 v5, v5, v6, s12
    v_mul_u32_u24 v7, 1184, v3
    v_add_u32 v7, v7, v6
    v_lshlrev_b32 v8, 5, v0
    s_lshl_b32 s13, s10, 10
    s_mov_b32 s14, 0
    s_waitcnt lgkmcnt(0)
    global_load_dwordx4 v[12:15], v8, s[8:9] offset:{STAT}
    global_load_dwordx4 v[16:19], v8, s[8:9] offset:{STAT+16}
ffn_dma:
    s_mov_b32 m0, s13
    s_add_u32 s15, s13, 73728
    global_load_lds_dwordx4 v4, s[16:17]
    s_mov_b32 m0, s15
    s_add_u32 s13, s13, 8192
    global_load_lds_dwordx4 v4, s[18:19]
    v_add_u32 v4, 589824, v4
    s_add_u32 s14, s14, 1
    s_cmp_lt_u32 s14, 9
    s_cbranch_scc1 ffn_dma
    """)
    for i in range(9):
        a(f"global_load_dwordx4 {vr(XS+4*i,4)}, v5, s[20:21] offset:{128*i}")
    a(f"""
    v_mov_b32 v20, 0
    v_mov_b32 v21, 0
    v_mov_b32 v22, 0
    v_mov_b32 v23, 0
    v_lshlrev_b32 v9, 4, v0
    s_mov_b32 s22, {F_SM}
    v_add_u32 v9, s22, v9
    ds_write_b128 v9, v[20:23]
    ds_write_b128 v9, v[20:23] offset:144
    v_lshlrev_b32 v10, 2, v0
    v_sub_u32 v10, 2047, v10
    s_waitcnt vmcnt(27)
    v_lshrrev_b32 v13, 16, v13
    v_lshrrev_b32 v15, 16, v15
    v_lshrrev_b32 v17, 16, v17
    v_lshrrev_b32 v19, 16, v19
    v_lshl_add_u32 v13, v13, 11, v10
    v_lshl_add_u32 v15, v15, 11, v10
    v_lshl_add_u32 v17, v17, 11, v10
    v_lshl_add_u32 v19, v19, 11, v10
    v_subrev_u32 v15, 1, v15
    v_subrev_u32 v17, 2, v17
    v_subrev_u32 v19, 3, v19
    v_max_u32 v24, v13, v15
    v_max3_u32 v24, v24, v17, v19
    """)
    dpp_reduce(a, "v_max_u32", [24])
    a(f"""
    v_lshl_add_u32 v25, v1, 2, s22
    v_mov_b32 v26, s22
    s_waitcnt lgkmcnt(0)
    s_barrier
    s_mov_b32 exec_lo, 0
    s_mov_b32 exec_hi, 0x80000000
    ds_write_b32 v25, v24
    s_mov_b64 exec, -1
    s_waitcnt lgkmcnt(0)
    s_barrier
    ds_read_b128 v[28:31], v26
    ds_read_b128 v[32:35], v26 offset:16
    v_mov_b32 v27, 4
    s_waitcnt lgkmcnt(0)
    v_min3_u32 v28, v28, v29, v30
    v_min3_u32 v31, v31, v32, v33
    v_min3_u32 v28, v28, v34, v35
    v_min_u32 v28, v28, v31
    v_cmp_ge_u32 s[24:25], v13, v28
    v_cmp_ge_u32 s[26:27], v15, v28
    v_cmp_ge_u32 s[28:29], v17, v28
    v_cmp_ge_u32 s[30:31], v19, v28
    """)
    for k in range(4):
        a(f"""s_mov_b64 exec, s[{24+2*k}:{25+2*k}]
        ds_add_rtn_u32 v{30+k}, v26, v27 offset:32""")
    a("s_mov_b64 exec, -1\ns_waitcnt lgkmcnt(0)")
    for k in range(4):
        a(f"v_add_u32 v{30+k}, s22, v{30+k}")
    for k in range(4):
        a(f"""s_mov_b64 exec, s[{24+2*k}:{25+2*k}]
        ds_write_b32 v{30+k}, v{13+2*k} offset:128""")
    a(f"""
    s_mov_b64 exec, -1
    s_waitcnt lgkmcnt(0)
    s_barrier
    ds_read_b32 v28, v26 offset:32
    v_lshlrev_b32 v29, 2, v0
    s_lshl_b32 s23, s10, 8
    s_waitcnt lgkmcnt(0)
    v_readfirstlane_b32 s24, v28       ; 4*count
ffn_rk_outer:
    s_cmp_ge_u32 s23, s24
    s_cbranch_scc1 ffn_rk_done
    v_add_u32 v30, s22, v29
    ds_read_b32 v31, v30 offset:128
    v_mov_b32 v32, 0
    v_mov_b32 v33, s22
    s_mov_b32 s25, 0
ffn_rk_inner:
    ds_read_b128 v[36:39], v33 offset:128
    v_add_u32 v33, 16, v33
    s_add_u32 s25, s25, 16
    s_waitcnt lgkmcnt(0)
    v_sub_u32 v36, v31, v36
    v_sub_u32 v37, v31, v37
    v_sub_u32 v38, v31, v38
    v_sub_u32 v39, v31, v39
    v_lshrrev_b32 v36, 31, v36
    v_lshrrev_b32 v37, 31, v37
    v_lshrrev_b32 v38, 31, v38
    v_lshrrev_b32 v39, 31, v39
    v_add3_u32 v32, v32, v36, v37
    v_add3_u32 v32, v32, v38, v39
    s_cmp_lt_u32 s25, s24
    s_cbranch_scc1 ffn_rk_inner
    v_cmp_gt_u32 vcc, 8, v32
    v_cmp_gt_u32 s[26:27], s24, v29
    v_lshl_add_u32 v32, v32, 2, s22
    s_and_b64 exec, vcc, s[26:27]
    ds_write_b32 v32, v31 offset:64
    s_mov_b64 exec, -1
    v_add_u32 v29, 2048, v29
    s_add_u32 s23, s23, 2048
    s_branch ffn_rk_outer
ffn_rk_done:
    s_waitcnt vmcnt(0) lgkmcnt(0)
    s_barrier
    v_and_b32 v11, 7, v0
    v_lshl_add_u32 v12, v11, 2, s22
    ds_read_b32 v13, v12 offset:64
    v_bfe_u32 v14, v0, 4, 2            ; kq
    v_bfe_u32 v15, v0, 2, 2            ; r4
    v_and_b32 v16, 3, v0               ; c
    s_cmp_ge_u32 s10, 4
    s_cbranch_scc1 ffn_nogu
    v_lshl_add_u32 v17, v14, 3, v15
    v_bfe_u32 v18, v0, 3, 2            ; g = (r4>>1) | (kq&1)<<1
    v_xor_b32 v18, v18, v1             ; q ^ g
    v_lshlrev_b32 v18, 5, v18
    v_lshl_add_u32 v18, v16, 3, v18
    v_lshl_add_u32 v18, v17, 7, v18
    v_add_u32 v19, 36864, v18
    v_add_u32 v20, 73728, v18
    v_add_u32 v21, {73728+36864}, v18
    """)
    for m, base in ((0, GO), (1, UO)):
        for s in range(18):
            for e in range(2):
                a(f"ds_read_b64_tr_b16 {vr(base+4*s+2*e,2)}, v{18+2*m+s//9} offset:{4096*(s%9)+512*e}")
    a(f"""
ffn_nogu:
    s_waitcnt lgkmcnt(0)
    s_barrier
    """)
    for i in range(9):
        a(f"ds_write_b128 v7, {vr(XS+4*i,4)} offset:{128*i}")
    a(f"""
    v_and_b32 v22, 0x7ff, v13
    v_sub_u32 v22, 2047, v22
    s_mov_b32 s26, 0x00ff00ff
    s_mov_b32 s27, 0x00ff00ff
    s_waitcnt lgkmcnt(0)
    s_barrier
    s_cmp_ge_u32 s10, 4
    s_cbranch_scc1 ffn_down
    s_mov_b32 s28, 0x3f803f80
    s_mov_b32 s29, 0x3f803f80
    """)
    for i in range(36):
        a(f"v_mov_b64 {vr(XS+2*i,2)}, s[28:29]")
    a(f"""
    v_mul_u32_u24 v23, 1152, v22
    v_lshl_add_u32 v23, v14, 4, v23
    v_lshlrev_b32 v24, 3, v22
    global_load_dword v25, v24, s[8:9] offset:{STAT}
    s_mov_b64 exec, s[26:27]
    """)
    for s in range(18):
        a(f"global_load_dwordx4 {vr(XS+4*s,4)}, v23, s[4:5] offset:{64*s}")
    a("s_mov_b64 exec, -1")
    for s in range(18):
        a(f"s_waitcnt vmcnt({17-s})")
        a(f"v_mfma_f32_16x16x32_bf16 v[28:31], {vr(GO+4*s,4)}, {vr(XS+4*s,4)}, {'0' if s==0 else 'v[28:31]'}")
        a(f"v_mfma_f32_16x16x32_bf16 v[32:35], {vr(UO+4*s,4)}, {vr(XS+4*s,4)}, {'0' if s==0 else 'v[32:35]'}")
    a(f"""
    v_and_b32 v26, 0xffff0000, v25
    v_rcp_f32 v26, v26
    v_lshlrev_b32 v25, 16, v25
    v_xor_b32 v25, 0x80000000, v25
    v_lshlrev_b32 v27, 4, v2
    v_lshrrev_b32 v36, 1, v1
    v_lshl_add_u32 v27, v36, 10, v27
    v_and_b32 v36, 1, v1
    v_lshl_add_u32 v27, v36, 3, v27
    v_add_u32 v27, {F_H}, v27
    """)
    for r in range(28, 36):
        a(f"v_fmac_f32_dpp v{r}, v{r}, v25 row_newbcast:8 row_mask:0xf bank_mask:0xf")
    for r in range(28, 36):
        a(f"v_mul_f32 v{r}, v{r}, v26")
    for r in range(4): a(f"v_mul_f32 v{36+r}, {f2u(-LOG2E)}, v{28+r}")
    for r in range(4): a(f"v_exp_f32 v{36+r}, v{36+r}")
    for r in range(4): a(f"v_add_f32 v{36+r}, 1.0, v{36+r}")
    for r in range(4): a(f"v_rcp_f32 v{36+r}, v{36+r}")
    for r in range(4): a(f"v_mul_f32 v{28+r}, v{28+r}, v{32+r}")
    for r in range(4): a(f"v_mul_f32 v{28+r}, v{28+r}, v{36+r}")
    a(f"""
    v_cvt_pk_bf16_f32 v28, v28, v29
    v_cvt_pk_bf16_f32 v29, v30, v31
    ds_write_b64 v27, v[28:29]
    s_waitcnt lgkmcnt(0)
    s_barrier
    s_endpgm
ffn_down:
    v_lshl_add_u32 v17, v14, 2, v15
    v_mul_u32_u24 v17, 1184, v17
    v_lshl_add_u32 v17, v16, 3, v17
    s_sub_u32 s11, s10, 4
    s_mul_i32 s12, s11, 288
    v_add_u32 v17, s12, v17
    """)
    for t in range(9):
        for s in range(2):
            for e in range(2):
                a(f"ds_read_b64_tr_b16 {vr(GO+8*t+4*s+2*e,2)}, v17 offset:{32*t+1184*(32*s+16*e)}")
    a(f"""
    v_lshlrev_b32 v27, 4, v2
    v_add_u32 v27, {F_H}, v27
    v_mul_u32_u24 v18, 9216, v14
    v_lshl_add_u32 v18, v11, 4, v18
    s_mul_i32 s12, s11, {36*9216}
    s_lshl_b32 s13, s2, 7
    s_add_u32 s12, s12, s13
    s_add_u32 s12, s12, {PART}
    v_add_u32 v18, s12, v18
    s_add_u32 s11, s11, s2
    s_cmp_lg_u32 s11, 0
    s_cbranch_scc1 ffn_noidx
    v_lshlrev_b32 v19, 2, v11
    v_add_u32 v19, {IDX}, v19
    global_store_dword v19, v13, s[8:9]
ffn_noidx:
    s_waitcnt lgkmcnt(0)
    s_barrier
    ds_read_b128 v[28:31], v27
    ds_read_b128 v[32:35], v27 offset:1024
    s_waitcnt lgkmcnt(0)
    """)
    for t in range(9):
        a(f"v_mfma_f32_16x16x32_bf16 {vr(XS+4*t,4)}, {vr(GO+8*t,4)}, v[28:31], 0")
        a(f"v_mfma_f32_16x16x32_bf16 {vr(XS+4*t,4)}, {vr(GO+8*t+4,4)}, v[32:35], {vr(XS+4*t,4)}")
    a("s_mov_b64 exec, s[26:27]")
    for t in range(9):
        a(f"global_store_dwordx4 v18, {vr(XS+4*t,4)}, s[8:9]")
        if t < 8: a(f"v_add_u32 v18, {4*9216}, v18")
    a("""
ffn_end:
    s_endpgm
    """)

CH = 31744
ROW = 528
KC = 256
KS = 4160
UA = KC + 4 * KS
US = 4576
UB = UA + US
YY = UB + US
XR = 4 * CH
C_LDS = XR + 16384
assert YY + 4096 <= CH
GROW = 32

def k_conv(a):
    kernel_begin(a, "conv_kernel")
    a(f"""
    s_load_dwordx8 s[12:19], s[0:1], 8
    s_load_dwordx8 s[20:27], s[0:1], 40
    s_load_dwordx2 s[6:7], s[0:1], 112
    s_load_dwordx2 s[8:9], s[0:1], 128
    s_cmp_ge_u32 s2, 144
    s_cbranch_scc1 conv_end
    v_lshrrev_b32 v1, 6, v0
    v_and_b32 v2, 63, v0
    v_readfirstlane_b32 s10, v1
    s_and_b32 s28, s10, 3
    s_lshr_b32 s29, s10, 2             ; half
    s_lshl_b32 s30, s2, 2
    s_add_u32 s30, s30, s28            ; channel d
    s_lshl_b32 s31, s30, 8
    s_lshl_b32 s11, s29, 7
    s_add_u32 s31, s31, s11
    v_lshl_add_u32 v3, v2, 1, s31
    s_lshl_b32 s31, s30, 1
    v_mov_b32 v4, s31
    s_lshl_b32 s31, s2, 3
    v_mov_b32 v5, s31
    s_mul_i32 s33, s28, {CH}
    s_lshl_b32 s11, s2, 15
    s_add_u32 s11, s11, {GRAN}
    v_lshl_add_u32 v6, v0, 6, s11
    s_waitcnt lgkmcnt(0)
    global_load_ushort v16, v4, s[24:25]
    global_load_ushort v10, v3, s[12:13]
    global_load_ushort v11, v3, s[14:15]
    global_load_ushort v12, v3, s[16:17]
    global_load_ushort v13, v3, s[18:19]
    global_load_ushort v14, v3, s[20:21]
    global_load_ushort v15, v3, s[22:23]
    global_load_dwordx2 v[254:255], v5, s[26:27]
    """)
    for i in range(5):
        a(f"global_load_dwordx4 {vr(200+4*i,4)}, v6, s[8:9] offset:{16*(i-1)}")
    a(f"""
    s_lshl_b32 s11, s29, 8
    s_add_u32 s11, s11, s33
    v_lshl_add_u32 v7, v2, 2, s11
    s_waitcnt vmcnt(6)
    v_lshlrev_b32 v16, 16, v16
    v_mul_f32 v16, {f2u(LOG2E)}, v16
    v_exp_f32 v16, v16
    """)
    for r in range(10, 16): a(f"v_lshlrev_b32 v{r}, 16, v{r}")
    a(f"""
    v_cvt_pk_bf16_f32 v16, v16, v16
    v_lshlrev_b32 v16, 16, v16         ; dt
    v_mul_f32 v10, v16, v10
    v_mul_f32 v11, v16, v11
    v_mul_f32 v12, v16, v12
    v_mul_f32 v13, v16, v13
    v_mul_f32 v10, {f2u(LOG2E)}, v10
    v_mul_f32 v11, {f2u(INV2PI)}, v11
    """)
    cmul(a, 20, 14, 12, 18)
    a("v_xor_b32 v21, 0x80000000, v21")
    for d, e, cj in ((22, 1.0, True), (24, 16.0, False), (26, 512.0, True)):
        a(f"""v_mul_f32 v17, {f2u(e)}, v10
        v_mul_f32 v18, {f2u(e)}, v11
        v_exp_f32 v17, v17
        v_fract_f32 v18, v18
        v_cos_f32 v{d}, v18
        v_sin_f32 v{d+1}, v18
        v_mul_f32 v{d}, v17, v{d}
        v_mul_f32 v{d+1}, {'-' if cj else ''}v17, v{d+1}""")
    a("v_mov_b32 v28, 1.0\nv_mov_b32 v29, 0\nv_mov_b32 v40, v20\nv_mov_b32 v41, v21")
    gops = []
    for e in range(1, 17): gops.append((40 + 2 * e, 40 + 2 * (e - 1), 22, GROW + e))
    for k, e in enumerate((0, 4, 8, 12, 16)): gops.append((40 + 2 * e, 40 + 2 * e, 26, GROW + 17 + k))
    for k, e in enumerate((0, 8, 16)): gops.append((40 + 2 * e, 40 + 2 * e, 26, GROW + 22 + k))
    for k, e in enumerate((0, 8, 16)): gops.append((40 + 2 * e, 40 + 2 * e, 26, GROW + 25 + k))
    a(f"v_cvt_pk_bf16_f32 v34, v40, v41\nds_write_b32 v7, v34 offset:{GROW*ROW}")
    for i in range(32):
        t = 34 + (i & 1) * 2
        a(f"v_cvt_pk_bf16_f32 v{t}, v28, v29\nds_write_b32 v7, v{t} offset:{i*ROW}")
        if i < 31: cmul(a, 28, 28, 24, 30)
        if i < len(gops):
            d, s, z, row = gops[i]
            cmul(a, d, s, z, 32)
            a(f"v_cvt_pk_bf16_f32 v{t+1}, v{d}, v{d+1}\nds_write_b32 v7, v{t+1} offset:{row*ROW}")
    a(f"""
    v_and_b32 v8, 15, v0               ; b / a / rho / n
    v_bfe_u32 v9, v0, 4, 2             ; kq
    v_and_b32 v10, 1, v9
    v_lshrrev_b32 v11, 1, v9
    v_lshlrev_b32 v10, 8, v10
    v_lshl_add_u32 v10, v11, 7, v10
    v_add_u32 v10, s33, v10
    s_lshl_b32 s11, s29, 4
    v_add_u32 v11, s11, v8             ; F row = 16h + a
    s_movk_i32 s34, {ROW}
    v_mad_u32_u24 v11, v11, s34, v10
    v_add_u32 v10, {GROW*ROW}, v10
    v_bfe_u32 v12, v8, 1, 1
    v_and_b32 v12, s29, v12
    v_add_u32 v12, v12, v8
    s_not_b32 s11, s29
    v_and_b32 v12, s11, v12
    v_mad_u32_u24 v12, v12, s34, v10
    ; rb2/4 = (b + 1 + ((b>>2)&1)) >> 2
    v_bfe_u32 v13, v8, 2, 1
    v_add3_u32 v13, v13, v8, 1
    v_lshrrev_b32 v13, 2, v13
    v_mad_u32_u24 v13, v13, s34, v10
    ; rb3/8 = (b + 3 + ((b>>3)&1)) >> 3
    v_bfe_u32 v14, v8, 3, 1
    v_add3_u32 v14, v14, v8, 3
    v_lshrrev_b32 v14, 3, v14
    v_mad_u32_u24 v14, v14, s34, v10
    s_waitcnt lgkmcnt(0)
    s_barrier
    """)
    for s in range(8): a(f"ds_read_b128 {vr(40+4*s,4)}, v11 offset:{16*s}")
    gsrc = ((12, 0), (13, 17 * ROW), (14, 22 * ROW), (14, 25 * ROW))
    q = []
    def rd(t, s): a(f"ds_read_b128 {vr(72+32*t+4*s,4)}, v{gsrc[t][0]} offset:{gsrc[t][1]+16*s}")
    seq = [(t, s) for t in range(4) for s in range(8)]
    PRE = 6
    for t, s in seq[:PRE]: rd(t, s)
    for i, (t, s) in enumerate(seq):
        if i + PRE < len(seq): rd(*seq[i + PRE])
        a(f"s_waitcnt lgkmcnt({min(PRE, len(seq)-1-i)})")
        a(f"v_mfma_f32_16x16x32_bf16 {vr(20+4*t,4)}, {vr(72+32*t+4*s,4)}, {vr(40+4*s,4)}, {'0' if s==0 else vr(20+4*t,4)}")
    a(f"""
    v_lshlrev_b32 v10, 5, v8
    v_lshl_add_u32 v10, v9, 3, v10
    s_lshl_b32 s11, s29, 9
    s_sub_u32 s11, s33, s11
    s_add_u32 s11, s11, {KC + 4088 - 3072}
    v_sub_u32 v10, s11, v10
    v_lshrrev_b32 v15, 2, v8
    s_movk_i32 s34, {KS-4}
    """)
    for k in range(4):
        a(f"""v_add_u32 v{16+k}, {k}, v15
        v_and_b32 v{16+k}, 3, v{16+k}
        v_mad_u32_u24 v{16+k}, v{16+k}, s34, v10""")
    a(f"""
    v_mul_u32_u24 v11, {KS-4}, v9
    v_lshl_add_u32 v11, v8, 2, v11
    v_add_u32 v11, s33, v11
    v_mov_b32 v36, 0
    v_mov_b32 v37, 0
    v_mov_b32 v38, 0
    v_mov_b32 v39, 0
    v_min_u32 v12, 27, v2
    s_mul_i32 s11, s29, {US}
    s_add_u32 s11, s11, s33
    v_lshl_add_u32 v12, v12, 4, s11
    """)
    for t in range(4):
        a(f"v_cvt_pk_bf16_f32 v{40+2*t}, v{23+4*t}, v{22+4*t}\nv_cvt_pk_bf16_f32 v{41+2*t}, v{21+4*t}, v{20+4*t}")
    a("s_barrier")
    for t in range(4):
        for k in range(4):
            a(f"ds_write_b32 v{16+k}, v{40+2*t} offset:{1024*(3-t)}\nds_write_b32 v{16+k}, v{41+2*t} offset:{1024*(3-t)+4}")
    a(f"""
    ds_write_b32 v11, v36 offset:{KC+4096}
    ds_write_b128 v12, v[36:39] offset:{UA}
    s_waitcnt vmcnt(0)
    """)
    for i in range(5):
        g = 200 + 4 * i
        a(f"""v_and_b32 v{g+3}, 0xffff0000, v{g+3}
        v_mul_f32 v{g+3}, v{g+3}, v{g+2}
        v_lshlrev_b32 v{220+4*i}, 16, v{g}
        v_and_b32 v{221+4*i}, 0xffff0000, v{g}
        v_lshlrev_b32 v{222+4*i}, 16, v{g+1}
        v_and_b32 v{223+4*i}, 0xffff0000, v{g+1}""")
        for c in range(4):
            a(f"v_fma_f32 v{220+4*i+c}, v{220+4*i+c}, v{g+2}, -v{g+3}")
    a(f"""
    v_cmp_ne_u32 vcc, 0, v0
    v_lshlrev_b32 v13, 3, v0
    v_lshlrev_b32 v14, 5, v0
    v_add_u32 v15, {2*CH}, v13
    v_add_u32 v14, {XR}, v14
    """)
    for c in range(4): a(f"v_cndmask_b32 v{220+c}, 0, v{220+c}, vcc")
    for c in range(4):
        x = lambda i: 220 + 4 * (i + 1) + c
        a(f"""v_cvt_pk_bf16_f32 v{40+4*c}, v{x(0)}, v{x(1)}
        v_cvt_pk_bf16_f32 v{41+4*c}, v{x(2)}, v{x(3)}
        v_cvt_pk_bf16_f32 v{42+4*c}, v{x(-1)}, v{x(0)}
        v_cvt_pk_bf16_f32 v{43+4*c}, v{x(1)}, v{x(2)}
        ds_write_b64 v{13 if c < 2 else 15}, {vr(40+4*c,2)} offset:{(c&1)*CH+UA+448}
        ds_write_b64 v{13 if c < 2 else 15}, {vr(42+4*c,2)} offset:{(c&1)*CH+UB+448}""")
    for i in range(4):
        a(f"ds_write_b64 v14, {vr(204+4*i,2)} offset:{8*i}")
    a(f"""
    v_and_b32 v10, 3, v8
    v_sub_u32 v10, 3, v10
    v_mul_u32_u24 v10, {KS}, v10
    v_lshrrev_b32 v11, 2, v8
    v_sub_u32 v11, v9, v11
    v_lshl_add_u32 v10, v11, 4, v10
    s_add_u32 s11, s33, {KC + 16*255 - 512*7}
    v_add_u32 v10, s11, v10
    v_and_b32 v11, 1, v8
    v_sub_u32 v11, 1, v11
    v_mul_u32_u24 v11, {US}, v11
    v_lshrrev_b32 v12, 1, v8
    v_lshl_add_u32 v12, v12, 2, v9
    v_lshl_add_u32 v11, v12, 4, v11
    s_add_u32 s11, s33, {UA + 448}
    v_add_u32 v11, s11, v11
    s_waitcnt lgkmcnt(0)
    s_barrier
    s_cmp_ge_u32 s10, 4
    s_cbranch_scc1 conv_skip
    """)
    KO = 64; UO_ = 96; AC = 128
    def rdK(i): a(f"ds_read_b128 {vr(KO+4*i,4)}, v10 offset:{512*(7-i)}")
    def rdU(i): a(f"ds_read_b128 {vr(UO_+4*i,4)}, v11 offset:{512*i}")
    order = []
    for i in range(7): order += [("U", 7 - i), ("K", i)]
    order += [("U", 0), ("K", 7)]
    for kind, i in order: (rdK if kind == "K" else rdU)(i)
    for r in range(0, 32, 2): a(f"v_mov_b64 {vr(AC+r,2)}, 0")
    a("s_mov_b32 s11, 8\nconv_loop:\nv_subrev_u32 v10, 64, v10\nv_subrev_u32 v11, 64, v11")
    pend = list(order)
    for i in range(8):
        for ip in range(7 - i, -1, -1):
            pos = max([k for k, o in enumerate(pend) if o in (("K", i), ("U", ip))], default=-1)
            if pos >= 0:
                a(f"s_waitcnt lgkmcnt({min(15, len(pend)-1-pos)})")
                pend = pend[pos + 1:]
            g = i + ip
            a(f"v_mfma_f32_16x16x32_bf16 {vr(AC+4*g,4)}, {vr(UO_+4*ip,4)}, {vr(KO+4*i,4)}, {vr(AC+4*g,4)}")
            if ip == 7 - i: rdU(ip); pend.append(("Un", ip))
            if ip == 0: rdK(i); pend.append(("Kn", i))
    a(f"""
    s_sub_u32 s11, s11, 1
    s_cmp_lg_u32 s11, 0
    s_cbranch_scc1 conv_loop
    v_lshlrev_b32 v12, 7, v9
    v_lshl_add_u32 v12, v8, 2, v12
    v_add_u32 v12, s33, v12
    s_waitcnt lgkmcnt(0)
    """)
    for g in range(8):
        a(f"""v_cvt_pk_bf16_f32 v{AC+4*g}, v{AC+4*g}, v{AC+4*g+1}
        v_cvt_pk_bf16_f32 v{AC+4*g+2}, v{AC+4*g+2}, v{AC+4*g+3}
        ds_write_b32 v12, v{AC+4*g} offset:{YY+512*g}
        ds_write_b32 v12, v{AC+4*g+2} offset:{YY+512*g+64}""")
    a("conv_skip:")
    a("""v_lshlrev_b32 v250, 16, v254
    v_and_b32 v251, 0xffff0000, v254
    v_lshlrev_b32 v252, 16, v255
    v_and_b32 v253, 0xffff0000, v255""")
    for e in range(16): a(f"v_mul_f32 v{40+e}, {f2u(-LOG2E)}, v{224+e}")
    for e in range(16): a(f"v_exp_f32 v{40+e}, v{40+e}")
    for e in range(16): a(f"v_add_f32 v{40+e}, 1.0, v{40+e}")
    for e in range(16): a(f"v_rcp_f32 v{40+e}, v{40+e}")
    for e in range(16): a(f"v_mul_f32 v{40+e}, v{40+e}, v{224+e}")
    for e in range(16): a(f"v_mul_f32 v{224+e}, v{250+(e&3)}, v{224+e}")
    a(f"""
    v_mul_u32_u24 v16, 4608, v0
    v_add_u32 v16, v5, v16
    s_waitcnt lgkmcnt(0)
    s_barrier
    """)
    for c in range(4):
        a(f"ds_read_b64 {vr(56+2*c,2)}, v{13 if c < 2 else 15} offset:{(c&1)*CH+YY}")
    a("s_waitcnt lgkmcnt(0)")
    for i in range(4):
        for c in range(4):
            y = 56 + 2 * c + (i >> 1); xr = 204 + 4 * i + (c >> 1)
            a(f"v_lshlrev_b32 v{64+c}, 16, v{y}" if i % 2 == 0 else f"v_and_b32 v{64+c}, 0xffff0000, v{y}")
            a(f"v_lshlrev_b32 v{68+c}, 16, v{xr}" if c % 2 == 0 else f"v_and_b32 v{68+c}, 0xffff0000, v{xr}")
            a(f"v_add_f32 v{64+c}, v{64+c}, v{224+4*i+c}")
            a(f"v_fmac_f32 v{68+c}, v{64+c}, v{40+4*i+c}")
        a(f"""v_cvt_pk_bf16_f32 v{72+2*i}, v68, v69
        v_cvt_pk_bf16_f32 v{73+2*i}, v70, v71
        global_store_dwordx2 v16, {vr(72+2*i,2)}, s[6:7] offset:{1152*i}""")
    a(f"""
    s_cmp_lg_u32 s10, 7
    s_cbranch_scc1 conv_wait
    v_and_b32 v17, 7, v0
    v_lshlrev_b32 v18, 2, v17
    v_add_u32 v18, {IDX}, v18
    global_load_dword v19, v18, s[8:9]
    s_mul_i32 s11, s2, 9216
    s_add_u32 s11, s11, {PART + 4096}
    v_lshl_add_u32 v18, v2, 4, s11
    v_add_u32 v20, 4096, v18
    """)
    for k in range(9):
        a(f"global_load_dwordx4 {vr(80+4*k,4)}, v{18 if k < 8 else 20}, s[8:9] offset:{1024*k-4096 if k < 8 else 0}")
    a(f"""
    s_waitcnt vmcnt(9)
    v_and_b32 v21, 0x7ff, v19
    v_sub_u32 v21, 2047, v21           ; token
    v_lshlrev_b32 v22, 1, v21
    v_add_u32 v23, {2*CH}, v22
    v_lshlrev_b32 v24, 3, v21
    v_add_u32 v24, {XR}, v24
    ds_read_b64 v[26:27], v24
    """)
    for c in range(4):
        a(f"ds_read_u16 v{28+c}, v{22 if c < 2 else 23} offset:{(c&1)*CH+UA+448}")
        a(f"ds_read_u16 v{32+c}, v{22 if c < 2 else 23} offset:{(c&1)*CH+YY}")
    a(f"""
    v_lshlrev_b32 v19, 5, v19
    v_not_b32 v25, v19
    v_ashrrev_i32 v25, 31, v25
    v_or_b32 v25, 0x80000000, v25
    v_xor_b32 v19, v19, v25
    v_and_b32 v19, 0xffff0000, v19
    v_mul_f32 v19, {f2u(-LOG2E)}, v19
    v_exp_f32 v19, v19
    v_mul_u32_u24 v21, 1152, v21
    v_add_f32 v19, 1.0, v19
    v_rcp_f32 v19, v19
    v_add_u32 v21, v5, v21
    s_waitcnt vmcnt(0)
    """)
    for k in range(1, 9):
        a(f"v_pk_add_f32 v[80:81], v[80:81], {vr(80+4*k,2)}\nv_pk_add_f32 v[82:83], v[82:83], {vr(82+4*k,2)}")
    for c in range(4): a(f"v_add_f32_dpp v{80+c}, v{80+c}, v{80+c} row_ror:8 row_mask:0xf bank_mask:0xf")
    for c in range(4): a(f"v_mov_b32 v{84+c}, v{80+c}")
    for c in range(4): a(f"v_permlane16_swap_b32 v{80+c}, v{84+c}")
    for c in range(4): a(f"v_add_f32 v{80+c}, v{80+c}, v{84+c}")
    for c in range(4): a(f"v_mov_b32 v{84+c}, v{80+c}")
    for c in range(4): a(f"v_permlane32_swap_b32 v{80+c}, v{84+c}")
    for c in range(4): a(f"v_add_f32 v{80+c}, v{80+c}, v{84+c}")
    a("s_waitcnt lgkmcnt(0)")
    for c in range(4):
        a(f"""v_lshlrev_b32 v{28+c}, 16, v{28+c}
        v_lshlrev_b32 v{32+c}, 16, v{32+c}
        v_fma_f32 v{80+c}, v{80+c}, v19, v{28+c}
        v_fmac_f32 v{32+c}, v{28+c}, v{250+c}
        v_mul_f32 v{84+c}, {f2u(-LOG2E)}, v{80+c}
        v_exp_f32 v{84+c}, v{84+c}""")
        a(f"v_lshlrev_b32 v{88+c}, 16, v{26+(c>>1)}" if c % 2 == 0 else f"v_and_b32 v{88+c}, 0xffff0000, v{26+(c>>1)}")
        a(f"""v_add_f32 v{84+c}, 1.0, v{84+c}
        v_rcp_f32 v{84+c}, v{84+c}
        v_mul_f32 v{80+c}, v{80+c}, v{32+c}
        v_fmac_f32 v{88+c}, v{80+c}, v{84+c}""")
    a(f"""
    v_cvt_pk_bf16_f32 v88, v88, v89
    v_cvt_pk_bf16_f32 v89, v90, v91
    s_barrier
    s_mov_b64 exec, 0xff
    global_store_dwordx2 v21, v[88:89], s[6:7]
    s_endpgm
conv_wait:
    s_waitcnt vmcnt(0)
    s_barrier
conv_end:
    s_endpgm
    """)

def build(extra_launch="", extra_code=None):
    a = Asm()
    k_ln(a); k_ffn(a); k_conv(a)
    xd = ""
    if extra_code: xd = extra_code(a)
    txt = HEADER + extra_launch + f"""; @launch kernel=ln_kernel grid=(256,1,1) block=(512,1,1) lds=256
; @launch kernel=ffn_kernel grid=(72,1,1) block=(512,1,1) lds={F_LDS}
; @launch kernel=conv_kernel grid=(144,1,1) block=(512,1,1) lds={C_LDS}
.amdgcn_target "amdgcn-amd-amdhsa--gfx950"
""" + a.text() + """.section .rodata,"a"
.p2align 6
""" + descriptor("ln_kernel", 56, 40) + ".p2align 6\n" + descriptor("ffn_kernel", 256, 40) + ".p2align 6\n" + descriptor("conv_kernel", 256, 40) + xd
    return txt
if __name__ == "__main__":
    open(sys.argv[1], "w").write(build())
```

```python
import sys
from parts import *
KN = "recurrent_scan__ssm_conv_s4__moe_arch_mod__prompt_kernel"

EPOCH = 0
STATS = 0x4000
PARTS = 0x10000
PSTR = 73 * 128
TILE = 0x200000
REC = 0x1000000
SPIN = 4096
LDSZ = 163840
SM = 147456
LNS = SM; LNROW = 1216; LNST = LNS + 8 * LNROW
F_MAX = SM; F_LIST = SM + 128; F_H = F_LIST + 8192 + 16
ROW = 528; NG = 26; TCH = 58 * ROW
KS = 2240; KCH = 4 * KS + 320
K8 = 4 * KS
UBASE = 4 * KCH; UPAD = 480; UCH = 4640
YBASE = UBASE + 4 * UCH
assert UBASE % 256 == 0 or True
S_W, S_XCD, S_SLOT, S_T16, S_T8, S_TT = 39, 40, 41, 44, 45, 46

class G:
    def __init__(self, stamps=False, **opt):
        self.a = Asm(); self.stamps = stamps; self.opt = opt
    def stamp(self, k):
        if self.stamps: self.a(f"s_memrealtime s[{70+2*k}:{71+2*k}]")
    def dump(self):
        if not self.stamps: return
        a = self.a
        a("s_waitcnt lgkmcnt(0)\ns_mov_b64 exec, -1")
        for k in range(16): a(f"v_mov_b32 v{100+k}, s{70+2*k}")
        a(f"""s_lshl_b32 s42, s2, 3
        s_add_u32 s42, s42, s{S_W}
        s_lshl_b32 s42, s42, 6
        s_add_u32 s42, s42, {REC}
        v_mov_b32 v116, s42
        s_mov_b64 exec, 1""")
        for k in range(4): a(f"global_store_dwordx4 v116, {vr(100+4*k,4)}, s[36:37] offset:{16*k}")

    def prologue(self):
        a = self.a
        kernel_begin(a, KN)
        if self.stamps:
            for k in range(16): a(f"s_mov_b32 s{70+2*k}, 0")
        self.stamp(0)
        a(f"""
        s_load_dwordx16 s[4:19], s[0:1], 0
        s_load_dwordx16 s[20:35], s[0:1], 64
        s_load_dwordx2 s[36:37], s[0:1], 128
        s_cmp_ge_u32 s2, 256
        s_cbranch_scc1 L_end
        s_lshr_b32 s{S_SLOT}, s2, 3
        """)
        if self.opt.get("codepf", True):
            a(f"""
            s_getpc_b64 s[42:43]
L_pc:
            s_mul_i32 s47, s{S_SLOT}, 640
            s_add_u32 s42, s42, s47
            s_addc_u32 s43, s43, 0
            v_lshlrev_b32 v4, 7, v0
            v_mov_b32 v5, s43
            v_add_co_u32 v4, vcc, s42, v4
            v_addc_co_u32 v5, vcc, 0, v5, vcc
            v_cmp_gt_u32 vcc, 5, v0
            s_cmp_lt_u32 s47, L_end - L_pc - 516
            s_cselect_b64 vcc, vcc, 0
            s_and_saveexec_b64 s[48:49], vcc
            s_cbranch_execz L_nopf
            global_load_dword v255, v[4:5], off
L_nopf:
            s_mov_b64 exec, -1
            """)
        a(f"""
        v_lshrrev_b32 v1, 6, v0
        v_and_b32 v2, 63, v0
        v_readfirstlane_b32 s{S_W}, v1
        s_and_b32 s{S_XCD}, s2, 7
        s_mul_i32 s42, s2, 9216
        v_lshlrev_b32 v3, 4, v2
        v_lshlrev_b32 v4, 1, v2
        v_mul_u32_u24 v5, 1152, v1
        v_add3_u32 v6, v5, v3, s42
        v_add3_u32 v7, v5, v4, s42
        s_waitcnt lgkmcnt(0)
        global_load_dwordx4 v[12:15], v6, s[4:5]
        global_load_ushort v16, v7, s[4:5] offset:1024
        s_load_dword s38, s[36:37], {EPOCH}
        global_load_dwordx4 v[20:23], v3, s[24:25]
        global_load_ushort v24, v4, s[24:25] offset:1024
        """)
        self.stamp(1)
        a(f"""
        s_cmp_lt_u32 s{S_SLOT}, 18
        s_cbranch_scc1 L_conv_pre
        s_cmp_lt_u32 s{S_SLOT}, 27
        s_cbranch_scc1 L_ffn_pre
        """)
    def spare_pre(self):
        a = self.a
        a(f"""
        s_sub_u32 s42, s{S_SLOT}, 27
        s_lshl_b32 s42, s42, 9
        v_add_u32 v60, s42, v0
        v_add_u32 v61, 2560, v60
        s_mul_i32 s43, s{S_XCD}, {576*1152}
        """)
        for r in (60, 61):
            a(f"""v_mul_u32_u24 v62, 7282, v{r}
            v_lshrrev_b32 v62, 16, v62
            v_mul_u32_u24 v63, 9, v62
            v_sub_u32 v63, v{r}, v63
            v_mul_u32_u24 v63, 576, v63
            v_add_u32 v62, v62, v63
            v_lshl_add_u32 v{r}, v62, 7, s43""")
        a(f"""
        s_barrier
        s_cmp_ge_u32 s{S_W}, 3
        s_cbranch_scc1 L_ln0
        global_load_dword v64, v60, s[30:31]
        s_waitcnt vmcnt(1)
        s_branch L_ln
        """)
    def ffn_pre(self):
        a = self.a
        R1 = self.opt.get("r1", 3)
        a(f"""
L_ffn_pre:
        s_mul_i32 s50, s{S_XCD}, 9
        s_add_u32 s50, s50, s{S_SLOT}
        s_sub_u32 s50, s50, 18             ; f
        v_bfe_u32 v60, v0, 3, 5            ; row 8*(w&3) + r
        v_bfe_u32 v61, v0, 4, 1
        v_bfe_u32 v62, v0, 6, 1
        v_lshl_add_u32 v61, v62, 1, v61
        v_lshlrev_b32 v61, 1, v61
        v_and_b32 v62, 7, v0
        v_xor_b32 v61, v61, v62
        v_mul_u32_u24 v60, 9216, v60
        v_lshlrev_b32 v61, 4, v61
        s_lshl_b32 s42, s50, 7
        v_add3_u32 v60, v60, v61, s42
        s_and_b32 s51, s{S_W}, 3
        s_lshl_b32 s51, s51, 10
        s_cmp_ge_u32 s{S_W}, 4
        s_cselect_b32 s52, s28, s26
        s_cselect_b32 s53, s29, s27
        s_cselect_b32 s42, 36864, 0
        s_add_u32 s51, s51, s42
        s_barrier
        """)
        self.dma(R1)
        a(f"s_waitcnt vmcnt({R1})\ns_branch L_ln")
    def dma(self, n, flag=""):
        a = self.a
        for i in range(n):
            a(f"""s_mov_b32 m0, s51
            s_add_u32 s51, s51, 4096
            global_load_lds_dwordx4 v60, s[52:53] {flag}
            v_add_u32 v60, {32*9216}, v60""")
    def conv_pre(self):
        a = self.a
        a(f"""
L_conv_pre:
        s_mul_i32 s50, s{S_XCD}, 18
        s_add_u32 s50, s50, s{S_SLOT}      ; group
        s_and_b32 s51, s{S_W}, 3
        s_lshr_b32 s52, s{S_W}, 2          ; half
        s_lshl_b32 s53, s50, 2
        s_add_u32 s53, s53, s51            ; channel
        s_lshl_b32 s42, s53, 8
        s_lshl_b32 s43, s52, 7
        s_add_u32 s42, s42, s43
        v_add_u32 v60, s42, v4
        s_lshl_b32 s42, s53, 1
        v_mov_b32 v61, s42
        s_lshl_b32 s54, s50, 3
        v_mov_b32 v62, s54
        global_load_ushort v70, v61, s[18:19]
        global_load_ushort v64, v60, s[6:7]
        global_load_ushort v65, v60, s[8:9]
        global_load_ushort v66, v60, s[10:11]
        global_load_ushort v67, v60, s[12:13]
        global_load_ushort v68, v60, s[14:15]
        global_load_ushort v69, v60, s[16:17]
        global_load_dwordx2 v[72:73], v62, s[20:21]
        v_and_b32 v74, 255, v0
        v_min_u32 v74, 143, v74
        v_mul_u32_u24 v75, 7282, v74
        v_lshrrev_b32 v75, 16, v75
        v_mul_u32_u24 v76, {9216 - 9*128}, v75
        v_lshl_add_u32 v76, v74, 7, v76
        s_mul_i32 s42, s{S_SLOT}, {16*9216}
        s_mul_i32 s43, s{S_XCD}, 1152
        s_add_u32 s42, s42, s43
        s_add_u32 s42, s42, {288*9216}
        v_add_u32 v76, s42, v76
        s_cmp_eq_u32 s52, 0
        s_cselect_b32 s56, s26, s28
        s_cselect_b32 s57, s27, s29
        s_barrier
        global_load_dword v77, v76, s[56:57]
        v_and_b32 v8, 15, v0
        v_bfe_u32 v9, v0, 4, 2
        v_lshlrev_b32 v78, 3, v9
        s_movk_i32 s42, 0x3f80
        s_mov_b32 s43, 0x10001
        """)
        for bi, m in ((0, 0x7f << 5), (1, 0x1ff << 4)):
            a(f"""v_mov_b32 v79, {m}
            v_lshlrev_b32 v79, v8, v79
            v_lshrrev_b32 v79, v78, v79""")
            for j in range(4):
                r = 80 + 4 * bi + j
                a(f"""v_bfe_u32 v{r}, v79, {2*j}, 2
                v_lshl_or_b32 v{r}, v{r}, 15, v{r}
                v_and_b32 v{r}, s43, v{r}
                v_mul_u32_u24 v{r}, s42, v{r}""")
        a("s_waitcnt vmcnt(9)\ns_branch L_ln")

    def ln(self):
        a = self.a
        a(f"""
L_ln0:
        s_waitcnt vmcnt(0)
L_ln:
        """)
        self.stamp(2)
        a(f"""
        s_mov_b32 s42, 0x3f803f80
        v_mov_b32 v40, 0
        v_mov_b32 v41, 0
        v_mov_b32 v42, 0
        v_mov_b32 v43, 0
        """)
        for i in range(5):
            a(f"""v_dot2c_f32_bf16 v40, s42, v{12+i}
            v_dot2c_f32_bf16 v41, v{12+i}, v{12+i}
            v_dot2c_f32_bf16 v42, v{12+i}, v{20+i}
            v_dot2c_f32_bf16 v43, s42, v{20+i}""")
        a(f"""
        s_waitcnt lgkmcnt(0)
        s_add_u32 s38, s38, 0x9e370001
        s_lshr_b32 s{S_T16}, s38, 16
        s_and_b32 s{S_T8}, s38, 0xff
        """)
        dpp_reduce(a, "v_add_f32", [40, 41, 42, 43])
        a(f"""
        s_and_b32 s{S_TT}, s38, 0xfb
        s_bitcmp0_b32 s38, 0
        s_cselect_b32 s43, 4, 0
        v_readlane_b32 s58, v40, 63
        v_readlane_b32 s59, v41, 63
        s_or_b32 s{S_TT}, s{S_TT}, s43
        v_mov_b32 v44, {f2u(1/576)}
        v_mul_f32 v40, s58, v44
        v_mul_f32 v41, s59, v44
        v_fma_f32 v41, -v40, v40, v41
        v_max_f32 v41, 0, v41
        v_cvt_pk_bf16_f32 v44, v40, v41
        v_and_b32 v41, 0xffff0000, v44
        v_add_f32 v41, {f2u(1e-5)}, v41
        v_cvt_pk_bf16_f32 v41, v41, v41
        v_lshlrev_b32 v41, 16, v41
        v_sqrt_f32 v41, v41
        v_lshlrev_b32 v49, 16, v44
        v_cvt_pk_bf16_f32 v45, v41, v41
        v_lshlrev_b32 v41, 16, v45
        v_rcp_f32 v48, v41
        s_bitcmp1_b32 s{S_TT}, s{S_W}
        s_cselect_b32 s43, 0x40004000, 0
        v_mul_f32 v46, {f2u(1/32)}, v48
        v_mul_f32 v47, v49, v46
        s_mov_b32 s58, 0xbfffbfff
        v_mov_b32 v39, s43
        """)
        for i in range(4):
            a(f"""v_lshlrev_b32 v{28+2*i}, 16, v{12+i}
            v_and_b32 v{29+2*i}, 0xffff0000, v{12+i}""")
        a("v_lshlrev_b32 v36, 16, v16")
        for i in range(9): a(f"v_fma_f32 v{28+i}, v{28+i}, v46, -v47")
        for i in range(4):
            a(f"v_cvt_pk_bf16_f32 v{28+i}, v{28+2*i}, v{29+2*i}")
        a(f"""v_cvt_pk_bf16_f32 v32, v36, v36
        s_mul_i32 s43, s{S_W}, {LNROW}
        s_add_u32 s43, s43, {LNS}""")
        for i in range(5): a(f"v_and_or_b32 v{28+i}, v{28+i}, s58, v39")
        a(f"""
        v_add_u32 v33, s43, v3
        v_add_u32 v34, s43, v4
        ds_write_b128 v33, v[28:31]
        ds_write_b16 v34, v32 offset:1024
        v_fma_f32 v42, -v49, v43, v42
        s_mov_b32 s58, 0xffff
        v_mul_f32 v42, v42, v48
        v_bfi_b32 v50, s58, v44, v45
        v_cvt_pk_bf16_f32 v42, v42, v42
        v_ashrrev_i32 v43, 31, v42
        v_or_b32 v43, 0x80000000, v43
        v_xor_b32 v42, v42, v43
        v_and_b32 v42, 0xffff0000, v42
        v_or_b32 v51, s{S_T16}, v42
        s_lshl_b32 s43, s{S_W}, 3
        s_add_u32 s43, s43, {LNST}
        v_mov_b32 v35, s43
        s_mov_b32 exec_lo, 0
        s_mov_b32 exec_hi, 0x80000000
        ds_write_b64 v35, v[50:51]
        s_mov_b64 exec, -1
        v_bfe_u32 v36, v0, 2, 2
        v_mul_u32_u24 v36, {LNROW}, v36
        v_and_b32 v37, 3, v0
        v_lshl_add_u32 v36, v37, 3, v36
        v_lshrrev_b32 v37, 4, v0
        v_lshl_add_u32 v36, v37, 5, v36
        v_add_u32 v36, {LNS}, v36
        v_lshrrev_b32 v37, 3, v0
        v_lshlrev_b32 v37, 15, v37
        v_and_b32 v38, 0x70, v3
        s_lshl_b32 s43, s2, 7
        s_add_u32 s43, s43, {TILE}
        v_add3_u32 v37, v37, v38, s43
        s_waitcnt lgkmcnt(0)
        s_barrier
        ds_read_b64_tr_b16 v[28:29], v36
        ds_read_b64_tr_b16 v[30:31], v36 offset:{4*LNROW}
        s_cmp_eq_u32 s{S_W}, 7
        s_cbranch_scc1 L_ln_stat
        s_cmp_eq_u32 s{S_W}, 0
        s_cbranch_scc0 L_ln_st
        ds_read_b64_tr_b16 v[32:33], v36 offset:1024
        ds_read_b64_tr_b16 v[34:35], v36 offset:{4*LNROW+1024}
        v_add_u32 v38, {64*32768}, v37
        s_waitcnt lgkmcnt(0)
        global_store_dwordx4 v38, v[32:35], s[36:37] sc1
        s_branch L_ln_st
L_ln_stat:
        v_add_u32 v38, {LNST}, v3
        s_mov_b64 exec, 15
        ds_read_b128 v[32:35], v38
        s_lshl_b32 s43, s2, 6
        s_add_u32 s43, s43, {STATS}
        v_add_u32 v38, s43, v3
        s_waitcnt lgkmcnt(0)
        global_store_dwordx4 v38, v[32:35], s[36:37] sc1
        s_mov_b64 exec, -1
L_ln_st:
        s_waitcnt lgkmcnt(0)
        global_store_dwordx4 v37, v[28:31], s[36:37] sc1
        """)
        self.stamp(3)
        a(f"""
        s_cmp_lt_u32 s{S_SLOT}, 18
        s_cbranch_scc1 L_conv
        s_cmp_lt_u32 s{S_SLOT}, 27
        s_cbranch_scc1 L_ffn
        ; ---- spare
        s_cmp_lt_u32 s{S_W}, 3
        s_cbranch_scc1 L_sp2
        global_load_dword v64, v60, s[30:31]
L_sp2:
        s_barrier
        global_load_dword v65, v61, s[30:31]
        s_waitcnt vmcnt(0)
        """)
        self.stamp(4)
        self.dump()
        a("s_endpgm")

    def ffn(self):
        a = self.a
        R1 = self.opt.get("r1", 3)
        XS, GO, UO = 40, 112, 184
        a("L_ffn:")
        self.dma(9 - R1)
        a(f"""
        s_add_u32 s51, s51, 36864
        v_lshlrev_b32 v8, 4, v0
        v_add_u32 v9, {STATS + 4096}, v8
        v_add_u32 v61, {STATS + 4096 + 8192}, v8
        global_load_dwordx4 v[12:15], v9, s[36:37] offset:-4096 sc1
        global_load_dwordx4 v[16:19], v61, s[36:37] offset:-4096 sc1
        """)
        self.dma(9)
        a(f"""
        s_mov_b32 s54, {SM}
        s_barrier
        v_mov_b32 v20, 0
        v_mov_b32 v21, 0
        v_mov_b32 v22, 0
        v_mov_b32 v23, 0
        v_add_u32 v10, s54, v8
        ds_write_b128 v10, v[20:23] offset:32
        ds_write_b128 v10, v[20:23] offset:144
        s_mov_b32 s56, 0x3f803f80
        s_mov_b32 s57, 0x3f803f80
        """)
        for i in range(36):
            if XS + 2 * i in (60,): continue
            a(f"v_mov_b64 {vr(XS+2*i,2)}, s[56:57]")
        a(f"""
        v_lshlrev_b32 v10, 1, v0
        v_sub_u32 v10, 2047, v10
        v_lshl_add_u32 v25, v1, 2, s54
        v_mov_b32 v26, s54
        v_mov_b32 v27, 4
        s_movk_i32 s55, {SPIN}
        s_waitcnt vmcnt(9)
L_ffn_poll:
        v_xor_b32 v20, s{S_T16}, v13
        v_xor_b32 v21, s{S_T16}, v15
        v_xor_b32 v22, s{S_T16}, v17
        v_xor_b32 v23, s{S_T16}, v19
        v_or3_b32 v24, v20, v21, v22
        v_or_b32 v24, v24, v23
        v_and_b32 v24, 0xffff, v24
        v_cmp_ne_u32 vcc, 0, v24
        s_sub_u32 s55, s55, 1
        s_cselect_b64 vcc, 0, vcc
        s_cbranch_vccz L_ffn_go
        global_load_dwordx4 v[12:15], v9, s[36:37] offset:-4096 sc1
        global_load_dwordx4 v[16:19], v61, s[36:37] offset:-4096 sc1
        s_waitcnt vmcnt(0)
        s_branch L_ffn_poll
L_ffn_go:
        """)
        self.stamp(4)
        a(f"""
        v_lshrrev_b32 v20, 5, v20
        v_lshrrev_b32 v21, 5, v21
        v_lshrrev_b32 v22, 5, v22
        v_lshrrev_b32 v23, 5, v23
        v_add_u32 v20, v20, v10
        v_add3_u32 v21, v21, v10, -1
        v_add_u32 v10, 0xfffffc00, v10
        v_add_u32 v22, v22, v10
        v_add3_u32 v23, v23, v10, -1
        v_max_u32 v24, v20, v21
        v_max3_u32 v24, v24, v22, v23
        """)
        dpp_reduce(a, "v_max_u32", [24])
        a(f"""
        s_mov_b32 exec_lo, 0
        s_mov_b32 exec_hi, 0x80000000
        ds_write_b32 v25, v24
        s_mov_b64 exec, -1
        v_mov_b64 v[60:61], s[56:57]
        s_waitcnt lgkmcnt(0)
        s_barrier
        ds_read_b128 v[28:31], v26
        ds_read_b128 v[32:35], v26 offset:16
        s_waitcnt lgkmcnt(0)
        v_min3_u32 v28, v28, v29, v30
        v_min3_u32 v31, v31, v32, v33
        v_min3_u32 v28, v28, v34, v35
        v_min_u32 v28, v28, v31
        """)
        for k in range(4): a(f"v_cmp_ge_u32 s[{58+2*k}:{59+2*k}], v{20+k}, v28")
        for k in range(4):
            a(f"""s_mov_b64 exec, s[{58+2*k}:{59+2*k}]
            ds_add_rtn_u32 v{30+k}, v26, v27 offset:32""")
        a("s_mov_b64 exec, -1\ns_waitcnt lgkmcnt(0)")
        for k in range(4): a(f"v_add_u32 v{30+k}, s54, v{30+k}")
        for k in range(4):
            a(f"""s_mov_b64 exec, s[{58+2*k}:{59+2*k}]
            ds_write_b32 v{30+k}, v{20+k} offset:128""")
        a(f"""
        s_mov_b64 exec, -1
        v_xor_b32 v29, 256, v0
        v_lshlrev_b32 v29, 2, v29
        s_xor_b32 s55, s{S_W}, 4
        s_lshl_b32 s55, s55, 8
        v_bfe_u32 v14, v0, 4, 2            ; kq
        v_bfe_u32 v15, v0, 2, 2            ; r4
        v_and_b32 v16, 3, v0               ; c
        v_and_b32 v11, 7, v0
        s_waitcnt lgkmcnt(0)
        s_barrier
        ds_read_b32 v28, v26 offset:32
        v_add_u32 v30, s54, v29
        ds_read_b32 v31, v30 offset:128
        s_waitcnt lgkmcnt(0)
        v_readfirstlane_b32 s58, v28       ; 4*count
L_rk_outer:
        s_cmp_ge_u32 s55, s58
        s_cbranch_scc1 L_rk_done
        v_mov_b32 v32, 0
        v_mov_b32 v33, s54
        s_mov_b32 s59, 0
L_rk_inner:
        ds_read_b128 v[36:39], v33 offset:128
        ds_read_b128 v[20:23], v33 offset:144
        v_add_u32 v33, 32, v33
        s_add_u32 s59, s59, 32
        v_mov_b32 v34, 0
        s_waitcnt lgkmcnt(0)
        """)
        for r in (36, 37, 38, 39, 20, 21, 22, 23):
            a(f"v_sub_u32 v{r}, v31, v{r}\nv_alignbit_b32 v34, v34, v{r}, 31")
        a(f"""
        v_bcnt_u32_b32 v32, v34, v32
        s_cmp_lt_u32 s59, s58
        s_cbranch_scc1 L_rk_inner
        v_cmp_gt_u32 vcc, 8, v32
        v_cmp_gt_u32 s[60:61], s58, v29
        v_lshl_add_u32 v32, v32, 2, s54
        s_and_b64 exec, vcc, s[60:61]
        ds_write_b32 v32, v31 offset:64
        s_mov_b64 exec, -1
        v_add_u32 v29, 2048, v29
        v_add_u32 v30, s54, v29
        ds_read_b32 v31, v30 offset:128
        s_add_u32 s55, s55, 2048
        s_waitcnt lgkmcnt(0)
        s_branch L_rk_outer
L_rk_done:
        v_lshl_add_u32 v12, v11, 2, s54
        s_mov_b32 s58, 0x00ff00ff
        s_mov_b32 s59, 0x00ff00ff
        s_cmp_ge_u32 s{S_W}, 4
        s_cbranch_scc1 L_down
        v_lshl_add_u32 v17, v14, 3, v15
        v_bfe_u32 v18, v0, 3, 2
        v_xor_b32 v18, v18, v1
        v_lshlrev_b32 v18, 5, v18
        v_lshl_add_u32 v18, v16, 3, v18
        v_lshl_add_u32 v18, v17, 7, v18
        v_add_u32 v19, 36864, v18
        v_add_u32 v20, 73728, v18
        v_add_u32 v21, {73728+36864}, v18
        """)
        def trs(half):
            for s in range(9):
                for m, base in ((0, GO), (1, UO)):
                    for e in range(2):
                        a(f"ds_read_b64_tr_b16 {vr(base+4*(s+9*half)+2*e,2)}, v{18+2*half+m} offset:{4096*s+512*e}")
        trs(0)
        a(f"""
        s_waitcnt lgkmcnt(0)
        s_barrier
        ds_read_b32 v13, v12 offset:64
        s_waitcnt lgkmcnt(0)
        """)
        self.stamp(5)
        a(f"""
        v_and_b32 v22, 0x7ff, v13
        v_sub_u32 v22, 2047, v22
        v_mul_u32_u24 v23, 1152, v22
        v_lshl_add_u32 v23, v14, 4, v23
        v_lshlrev_b32 v24, 3, v22
        v_add_u32 v24, {STATS}, v24
        s_mov_b64 exec, s[58:59]
        """)
        for s in range(18):
            a(f"global_load_dwordx4 {vr(XS+4*s,4)}, v23, s[4:5] offset:{64*s}")
        a(f"""s_mov_b64 exec, -1
        global_load_dword v25, v24, s[36:37] sc1
        s_waitcnt vmcnt(19)
        s_barrier""")
        self.stamp(6)
        trs(1)
        a(f"""
        v_lshlrev_b32 v36, 5, v13
        v_not_b32 v37, v36
        v_ashrrev_i32 v37, 31, v37
        v_or_b32 v37, 0x80000000, v37
        v_xor_b32 v36, v36, v37
        v_and_b32 v36, 0xffff0000, v36
        v_mul_f32 v36, {f2u(-LOG2E)}, v36
        v_exp_f32 v36, v36
        v_lshlrev_b32 v27, 4, v2
        v_add_f32 v36, 1.0, v36
        v_rcp_f32 v5, v36
        v_lshrrev_b32 v37, 1, v1
        v_lshl_add_u32 v27, v37, 10, v27
        v_and_b32 v37, 1, v1
        v_lshl_add_u32 v27, v37, 3, v27
        v_add_u32 v27, {F_H}, v27
        """)
        for s in range(18):
            w = f"s_waitcnt vmcnt({18-s})"
            if s == 9: w += " lgkmcnt(0)"
            a(w)
            a(f"v_mfma_f32_16x16x32_bf16 v[28:31], {vr(GO+4*s,4)}, {vr(XS+4*s,4)}, {'0' if s==0 else 'v[28:31]'}")
            a(f"v_mfma_f32_16x16x32_bf16 v[32:35], {vr(UO+4*s,4)}, {vr(XS+4*s,4)}, {'0' if s==0 else 'v[32:35]'}")
        self.stamp(7)
        a(f"""
        s_waitcnt vmcnt(0)
        v_and_b32 v7, 0xffff0000, v25
        v_rcp_f32 v26, v7
        v_lshlrev_b32 v6, 16, v25
        v_xor_b32 v25, 0x80000000, v6
        """)
        for r in range(28, 36): a(f"v_fmac_f32_dpp v{r}, v{r}, v25 row_newbcast:8 row_mask:0xf bank_mask:0xf")
        for r in range(28, 36): a(f"v_mul_f32 v{r}, v{r}, v26")
        for r in range(4): a(f"v_mul_f32 v{36+r}, {f2u(-LOG2E)}, v{28+r}")
        for r in range(4): a(f"v_exp_f32 v{36+r}, v{36+r}")
        for r in range(4): a(f"v_add_f32 v{36+r}, 1.0, v{36+r}")
        for r in range(4): a(f"v_rcp_f32 v{36+r}, v{36+r}")
        for r in range(4): a(f"v_mul_f32 v{28+r}, v{28+r}, v{32+r}")
        for r in range(4): a(f"v_mul_f32 v{28+r}, v{28+r}, v{36+r}")
        a(f"""
        v_cvt_pk_bf16_f32 v28, v28, v29
        v_cvt_pk_bf16_f32 v29, v30, v31
        ds_write_b64 v27, v[28:29]
        s_waitcnt lgkmcnt(0)
        s_barrier
        """)
        self.stamp(8)
        a(f"""
        s_cmp_lg_u32 s{S_W}, 0
        s_cbranch_scc1 L_gu_end
        v_lshl_or_b32 v4, v22, 8, s{S_T8}
        v_and_b32 v5, 0xffffff00, v5
        v_or_b32 v5, s{S_T8}, v5
        v_or_b32 v6, s{S_T8}, v6
        v_or_b32 v7, s{S_T8}, v7
        v_bfe_u32 v8, v0, 3, 1
        v_mul_u32_u24 v8, {PSTR}, v8
        v_lshl_add_u32 v8, v11, 4, v8
        s_mul_i32 s42, s50, {2*PSTR}
        s_add_u32 s42, s42, {PARTS + 72*128}
        v_add_u32 v8, s42, v8
        s_mov_b64 exec, 0xffff
        global_store_dwordx4 v8, v[4:7], s[36:37] sc1
        s_cmp_lg_u32 s50, 0
        s_cbranch_scc1 L_gu_end
        v_mov_b32 v9, {EPOCH}
        v_mov_b32 v10, s38
        s_mov_b64 exec, 1
        global_store_dword v9, v10, s[36:37]
L_gu_end:
        """)
        self.dump()
        a(f"""
        s_endpgm
L_down:
        s_sub_u32 s55, s{S_W}, 4
        s_mul_i32 s60, s55, 288
        s_mul_i32 s42, s50, 73728
        s_add_u32 s42, s42, s60
        """)
        for i in range(9):
            a(f"""v_add_u32 v17, {64*i}, v2
            v_mul_u32_u24 v18, 3641, v17
            v_lshrrev_b32 v18, 16, v18
            v_mul_u32_u24 v18, {1152-288}, v18
            v_lshl_add_u32 v17, v17, 4, v18
            v_add_u32 v{XS+i}, s42, v17""")
        a(f"""
        s_mul_i32 s51, s55, 18432
        s_add_u32 s52, s30, {32*1152}
        s_addc_u32 s53, s31, 0
        v_lshl_add_u32 v17, v14, 2, v15
        v_mul_u32_u24 v17, 288, v17
        v_lshl_add_u32 v17, v16, 3, v17
        v_add_u32 v17, s51, v17
        s_waitcnt lgkmcnt(0)
        s_barrier
        s_waitcnt vmcnt(0)
        s_barrier
        """)
        self.stamp(6)
        for hh in range(2):
            for i in range(9):
                a(f"""s_mov_b32 m0, s51
                s_add_u32 s51, s51, 1024
                global_load_lds_dwordx4 v{XS+i}, {'s[30:31]' if hh == 0 else 's[52:53]'}""")
        a(f"""
        v_lshlrev_b32 v27, 4, v2
        v_add_u32 v27, {F_H}, v27
        v_mul_u32_u24 v18, {PSTR}, v14
        v_lshl_add_u32 v18, v11, 4, v18
        s_mul_i32 s42, s55, {36*PSTR}
        s_lshl_b32 s43, s50, 7
        s_add_u32 s42, s42, s43
        s_add_u32 s42, s42, {PARTS}
        v_add_u32 v18, s42, v18
        v_mov_b32 v19, s{S_T8}
        s_movk_i32 s60, 0xff
        """)
        for s in range(2):
            a(f"s_waitcnt vmcnt({9*(1-s)})")
            if s == 1: self.stamp(7)
            for t in range(9):
                for e in range(2):
                    a(f"ds_read_b64_tr_b16 {vr(GO+8*t+4*s+2*e,2)}, v17 offset:{32*t+288*(32*s+16*e)}")
        a(f"""
        s_barrier
        ds_read_b128 v[28:31], v27
        ds_read_b128 v[32:35], v27 offset:1024
        s_waitcnt lgkmcnt(0)
        """)
        self.stamp(8)
        for t in range(9):
            a(f"v_mfma_f32_16x16x32_bf16 {vr(XS+4*t,4)}, {vr(GO+8*t,4)}, v[28:31], 0")
            a(f"v_mfma_f32_16x16x32_bf16 {vr(XS+4*t,4)}, {vr(GO+8*t+4,4)}, v[32:35], {vr(XS+4*t,4)}")
        a("s_mov_b64 exec, s[58:59]")
        for t in range(9):
            for r in range(4): a(f"v_bfi_b32 v{XS+4*t+r}, s60, v19, v{XS+4*t+r}")
            a(f"global_store_dwordx4 v18, {vr(XS+4*t,4)}, s[36:37] sc1")
            if t < 8: a(f"v_add_u32 v18, {4*PSTR}, v18")
        self.stamp(9)
        self.dump()
        a("s_endpgm")

    def conv(self):
        a = self.a
        a(f"""
L_conv:
        s_mul_i32 s55, s51, {TCH}
        s_lshl_b32 s42, s52, 8
        s_add_u32 m0, s55, s42
        s_waitcnt vmcnt(2)
        v_lshlrev_b32 v70, 16, v70
        v_mul_f32 v70, {f2u(LOG2E)}, v70
        v_exp_f32 v70, v70
        """)
        for r in range(64, 70): a(f"v_lshlrev_b32 v{r}, 16, v{r}")
        a(f"""
        v_cvt_pk_bf16_f32 v70, v70, v70
        v_lshlrev_b32 v70, 16, v70
        v_mul_f32 v64, v70, v64
        v_mul_f32 v65, v70, v65
        v_mul_f32 v70, {f2u(1024.0)}, v70
        v_mul_f32 v64, {f2u(LOG2E)}, v64
        v_mul_f32 v65, {f2u(INV2PI)}, v65
        v_mul_f32 v66, v70, v66
        v_mul_f32 v67, v70, v67
        """)
        E = ((22, 1.0, True), (24, 16.0, False), (26, 512.0, True))
        for k, (d, e, cj) in enumerate(E):
            a(f"v_mul_f32 v{12+k}, {f2u(e)}, v64\nv_mul_f32 v{16+k}, {f2u(e)}, v65")
        for k, (d, e, cj) in enumerate(E): a(f"v_exp_f32 v{12+k}, v{12+k}\nv_fract_f32 v{16+k}, v{16+k}")
        cmul(a, 90, 68, 66, 20)
        for k, (d, e, cj) in enumerate(E): a(f"v_cos_f32 v{d}, v{16+k}\nv_sin_f32 v{d+1}, v{16+k}")
        a("v_xor_b32 v91, 0x80000000, v91\nv_mov_b32 v34, 0x3f80\nds_write_addtid_b32 v34")
        for k, (d, e, cj) in enumerate(E):
            a(f"v_mul_f32 v{d}, v{12+k}, v{d}\nv_mul_f32 v{d+1}, {'-' if cj else ''}v{12+k}, v{d+1}")
        H = lambda e: 90 + 2 * e
        gops = []
        for e in range(1, 17): gops.append((H(e), H(e - 1), 22, 32 + e))
        for k, e in enumerate((0, 4, 8, 12, 16)): gops.append((H(e), H(e), 26, 32 + 17 + k))
        for k, e in enumerate((8, 16)): gops.append((H(e), H(e), 26, 32 + 22 + k))
        for k, e in enumerate((8, 16)): gops.append((H(e), H(e), 26, 32 + 24 + k))
        a(f"""v_cvt_pk_bf16_f32 v35, v90, v91
        ds_write_addtid_b32 v35 offset:{32*ROW}
        v_cvt_pk_bf16_f32 v36, v24, v25
        ds_write_addtid_b32 v36 offset:{ROW}""")
        POLL_AT = self.opt.get("tile_at", 31)
        for i in range(2, 32):
            t = 34 + (i & 1) * 2
            cmul(a, 28, 24 if i == 2 else 28, 24, 30)
            if i - 2 < len(gops):
                d, s, z, row = gops[i - 2]
                cmul(a, d, s, z, 32)
            a(f"v_cvt_pk_bf16_f32 v{t}, v28, v29\nds_write_addtid_b32 v{t} offset:{i*ROW}")
            if i - 2 < len(gops):
                a(f"v_cvt_pk_bf16_f32 v{t+1}, v{d}, v{d+1}\nds_write_addtid_b32 v{t+1} offset:{row*ROW}")
            if i == POLL_AT:
                a(f"""
                s_lshr_b32 s42, s50, 1
                s_lshl_b32 s42, s42, 15
                s_and_b32 s43, s50, 1
                s_lshl_b32 s43, s43, 6
                s_add_u32 s42, s42, s43
                s_add_u32 s42, s42, {TILE}
                v_lshrrev_b32 v12, 2, v0
                v_lshlrev_b32 v13, 7, v12
                v_and_b32 v14, 0x30, v3
                v_add3_u32 v6, v13, v14, s42
                v_add_u32 v7, 16384, v6
                global_load_dwordx4 v[40:43], v6, s[36:37] sc1
                global_load_dwordx4 v[44:47], v7, s[36:37] sc1
                v_and_b32 v14, 3, v0
                v_mul_u32_u24 v14, {UCH}, v14
                v_lshl_add_u32 v5, v12, 4, v14
                s_cmp_eq_u32 s52, 0
                s_cbranch_scc1 L_nostat
                v_and_b32 v240, 255, v0
                v_lshlrev_b32 v241, 4, v240
                v_add_u32 v241, {STATS + 4096}, v241
                v_add_u32 v242, 8192, v241
                global_load_dwordx4 v[224:227], v241, s[36:37] offset:-4096 sc1
                global_load_dwordx4 v[228:231], v241, s[36:37] sc1
                global_load_dwordx4 v[232:235], v242, s[36:37] offset:-4096 sc1
                global_load_dwordx4 v[236:239], v242, s[36:37] sc1
L_nostat:
                """)
        self.stamp(4)
        a(f"""
        v_and_b32 v10, 1, v9
        v_lshrrev_b32 v11, 1, v9
        v_lshlrev_b32 v10, 8, v10
        v_lshl_add_u32 v10, v11, 7, v10
        v_add_u32 v10, s55, v10
        s_lshl_b32 s42, s52, 4
        v_add_u32 v11, s42, v8
        s_movk_i32 s43, {ROW}
        v_mad_u32_u24 v11, v11, s43, v10
        v_add_u32 v10, {32*ROW}, v10
        v_bfe_u32 v12, v8, 1, 1
        v_and_b32 v12, s52, v12
        v_add_u32 v12, v12, v8
        s_not_b32 s42, s52
        v_and_b32 v12, s42, v12
        v_mad_u32_u24 v12, v12, s43, v10
        v_lshrrev_b32 v13, 2, v8
        v_and_b32 v14, 3, v8
        v_lshlrev_b32 v15, 3, v14
        v_mov_b32 v16, 0x16121104
        v_lshrrev_b32 v15, v15, v16
        v_and_b32 v15, 0xff, v15
        v_cmp_eq_u32 vcc, 0, v14
        v_cndmask_b32 v13, v13, v8, vcc
        v_add_u32 v13, v13, v15
        v_mad_u32_u24 v13, v13, s43, v10
        s_waitcnt lgkmcnt(0)
        s_barrier
        """)
        for s in range(8):
            a(f"""ds_read_b128 {vr(128+4*s,4)}, v11 offset:{16*s}
            ds_read_b128 {vr(160+4*s,4)}, v12 offset:{16*s}
            ds_read_b128 {vr(192+4*s,4)}, v13 offset:{16*s}""")
            if s >= 3: self.kg_mfma(s - 3, 9)
        a(f"""
        s_mul_i32 s55, s51, {KCH}
        v_lshlrev_b32 v10, 5, v8
        v_lshl_add_u32 v10, v9, 3, v10
        s_lshl_b32 s42, s52, 9
        s_sub_u32 s42, s55, s42
        s_add_u32 s42, s42, {2104 - 1024}
        v_sub_u32 v10, s42, v10
        """)
        self.kg_mfma(5, 6)
        a(f"""
        v_bfe_u32 v15, v8, 2, 1
        v_mul_u32_u24 v15, {2*KS - 4}, v15
        v_add_u32 v16, v10, v15            ; copy 0 / 2
        v_sub_u32 v17, v10, v15
        v_add_u32 v17, {2*KS - 4}, v17
        """)
        self.kg_mfma(6, 3)
        a(f"""
        v_add_u32 v14, 1, v9
        v_lshrrev_b32 v14, 1, v14
        v_lshlrev_b32 v14, 2, v14
        v_sub_u32 v14, 2112, v14
        v_min_u32 v15, 4, v8
        v_lshlrev_b32 v15, 1, v15
        v_add_u32 v15, 54, v15
        s_cmp_eq_u32 s52, 0
        s_cselect_b64 s[58:59], -1, 0
        """)
        self.kg_mfma(7, 0)
        a(f"""
        v_mov_b32 v18, 2110
        v_cndmask_b32 v14, 0, v14, s[58:59]
        v_cndmask_b32 v15, v15, v18, s[58:59]
        v_mul_u32_u24 v18, {KS}, v9
        v_add3_u32 v14, v14, v18, s55
        v_lshl_add_u32 v14, v8, 2, v14
        v_mul_u32_u24 v18, {KS-2}, v9
        v_add3_u32 v15, v15, v18, s55
        v_lshrrev_b32 v18, 1, v9
        v_lshlrev_b32 v18, 6, v18
        v_and_b32 v19, 1, v9
        v_lshl_add_u32 v18, v8, 1, v18
        v_add_u32 v18, v18, v19
        s_lshl_b32 s42, s52, 5
        s_sub_u32 s42, 127, s42
        v_sub_u32 v18, s42, v18
        v_lshl_add_u32 v18, v18, 1, s55
        v_cmp_eq_u32 vcc, 0, v19
        v_mov_b32 v36, 0
        v_mov_b32 v37, 0
        v_mov_b32 v38, 0
        v_mov_b32 v39, 0
        v_readlane_b32 s42, v20, 0
        v_readlane_b32 s43, v26, 63
        v_cndmask_b32 v19, v26, v25, vcc   ; X
        v_cvt_pk_bf16_f32 v28, v23, v22
        v_cvt_pk_bf16_f32 v29, v21, v20
        v_cvt_pk_bf16_f32 v30, v24, v23
        v_cvt_pk_bf16_f32 v31, v22, v21
        v_cvt_pk_bf16_f32 v32, v26, v19
        v_cvt_pk_bf16_f32 v33, v25, v25
        v_cvt_pk_bf16_f32 v34, v26, v26
        v_cvt_pk_bf16_f32 v35, v19, v25
        s_cmp_eq_u32 s52, 0
        s_cselect_b32 s42, s42, s43
        v_cvt_pk_bf16_f32 v27, v27, s42
        v_min_u32 v12, 29, v2
        s_mul_i32 s60, s51, {UCH}
        v_lshl_add_u32 v12, v12, 4, s60
        v_lshl_add_u32 v13, v8, 2, s55
        s_barrier
        """)
        self.stamp(5)
        a(f"ds_write_b32 v14, v36")
        for t in range(2):
            for ad in (16, 17):
                for par in range(2):
                    for k in range(2):
                        a(f"ds_write_b32 v{ad}, v{28+4*t+2*par+k} offset:{1024*(1-t) + par*(KS-4) + 4*k}")
        a(f"""
        ds_write_b16_d16_hi v15, v27
        ds_write_b16 v18, v27 offset:{K8}
        ds_write_b32 v13, v36 offset:{K8+256}
        ds_write_b128 v12, v[36:39] offset:{UBASE}
        """)
        for k in range(4):
            a(f"""s_bfe_u32 s42, s{S_TT}, {(2<<16) | (2*k)}
            s_mul_i32 s42, s42, 0x20004000
            s_and_b32 s{62+k}, s42, 0x40004000""")
        a(f"""
        s_movk_i32 s61, {SPIN}
        s_waitcnt vmcnt(0)
L_tile_poll:
        """)
        for r in range(8): a(f"v_xor_b32 v{40+r}, s{62+(r&3)}, v{40+r}")
        a(f"""
        v_or3_b32 v48, v40, v41, v42
        v_or3_b32 v49, v43, v44, v45
        v_or3_b32 v48, v48, v46, v47
        v_or_b32 v48, v48, v49
        v_and_b32 v48, 0x40004000, v48
        v_cmp_ne_u32 vcc, 0, v48
        s_sub_u32 s61, s61, 1
        s_cselect_b64 vcc, 0, vcc
        s_cbranch_vccz L_tile_ok
        global_load_dwordx4 v[40:43], v6, s[36:37] sc1
        global_load_dwordx4 v[44:47], v7, s[36:37] sc1
        s_waitcnt vmcnt(0)
        s_branch L_tile_poll
L_tile_ok:
        ds_write_b128 v5, v[40:43] offset:{UBASE+UPAD}
        ds_write_b128 v5, v[44:47] offset:{UBASE+UPAD+2048}
        """)
        self.stamp(6)
        a(f"""
        s_cmp_eq_u32 s52, 0
        s_cbranch_scc0 L_helper
        """)
        self.mfma_waves()
        self.helper()

    def kg_mfma(self, s, cnt):
        a = self.a
        a(f"s_waitcnt lgkmcnt({cnt})")
        a(f"v_mfma_f32_16x16x32_bf16 v[20:23], {vr(160+4*s,4)}, {vr(128+4*s,4)}, {'0' if s==0 else 'v[20:23]'}")
        a(f"v_mfma_f32_16x16x32_bf16 v[24:27], {vr(192+4*s,4)}, {vr(128+4*s,4)}, {'0' if s==0 else 'v[24:27]'}")

    def mfma_waves(self):
        a = self.a
        KR = lambda i, j: 128 + 32 * i + 4 * j
        K32, TT, BAND, VP, ACC, UR, NU = 12, 16, 80, 88, 32, 64, 4
        URING = [64, 68, 72, 76, 104, 108, 112, 116, 120, 124]
        VFT = lambda tau: (208, 216, 240, 248)[tau]
        a(f"""
        s_setprio 1
        v_and_b32 v10, 3, v8
        v_sub_u32 v10, 3, v10
        v_mul_u32_u24 v10, {KS}, v10
        v_lshrrev_b32 v11, 2, v8
        v_lshlrev_b32 v4, 1, v9
        v_sub_u32 v11, v4, v11
        v_lshl_add_u32 v10, v11, 3, v10
        s_add_u32 s42, s55, 24
        v_add_u32 v10, s42, v10
        v_lshl_add_u32 v11, v8, 1, v9
        v_lshl_add_u32 v11, v11, 4, s60
        v_lshlrev_b32 v4, 2, v9
        v_sub_u32 v4, v4, v8
        s_add_u32 s42, s55, {K8 + 60}
        v_lshl_add_u32 v4, v4, 2, s42
        v_lshlrev_b32 v7, 5, v8
        v_lshl_add_u32 v7, v9, 3, v7
        s_lshl_b32 s42, s51, 12
        s_add_u32 s42, s42, {YBASE}
        v_add_u32 v7, s42, v7              ; y address
        s_waitcnt lgkmcnt(0)
        s_barrier
        """)
        self.stamp(7)
        ops = []
        first = set()
        def mm(accreg, A, B):
            c0 = accreg not in first; first.add(accreg)
            ops.append(("m", accreg, A, B, c0))
        U = lambda nu, ph: ("U", nu, ph)
        for j in range(8):
            mm(ACC + 0, ("K", 0, j), U(-j, 0)); mm(ACC + 4, ("K", 1, j), U(-j, 0)); mm(ACC + 4, ("K", 0, j), U(8 - j, 0))
        for tau in range(4):
            mm(VFT(tau), U(8 * tau, 9), ("R", BAND)); mm(ACC + 16 + 4 * tau, ("K32",), U(8 * tau, 9))
            mm(VFT(tau) + 4, ("US", 8 * tau), ("R", BAND + 4))
            if tau == 1: ops.append(("y", 0)); ops.append(("y", 1))
            if tau == 3: ops.append(("bar",))
        wins = [(g, tau) for g in range(4, 8) for tau in range(0, g - 3)]
        for j in range(8):
            for i, ip in ((0, 2), (1, 2), (1, 1), (0, 3), (2, 1), (2, 0), (3, 0)):
                mm(ACC + 4 * (i + ip), ("K", i, j), U(8 * ip - j, 1))
                if j == 0 and (i, ip) == (1, 1): ops.append(("cvtV", 0))
                if j == 0 and (i, ip) == (2, 1): ops.append(("cvtV", 1))
                if j == 0 and (i, ip) == (3, 0): ops.append(("cvtV", 2))
                if j == 1 and (i, ip) == (1, 2): ops.append(("cvtV", 3))
            if j >= 1:
                for _ in range(2):
                    if wins:
                        g, tau = wins.pop(0); mm(ACC + 4 * g, ("R", VP + 4 * tau), ("T", g - tau))
        for ph, g0 in ((2, 4), (3, 6)):
            for j in range(8):
                for ip in range(g0 - 3, g0 + 2):
                    for g in (g0, g0 + 1):
                        i = g - ip
                        if 0 <= i <= 3: mm(ACC + 4 * g, ("K", i, j), U(8 * ip - j, ph))
                if j == 0: ops.append(("y", g0 - 2)); ops.append(("y", g0 - 1))
                if j == 1: ops.append(("bar",))
        ops.append(("y", 6)); ops.append(("y", 7)); ops.append(("bar",))
        need = []
        for k, o in enumerate(ops):
            if o[0] == "m":
                for x in (o[2], o[3]):
                    if x[0] != "R" and x not in [n[0] for n in need]: need.append((x, k))
        last = {}
        for k, o in enumerate(ops):
            if o[0] == "m":
                for x in (o[2], o[3]): last[x] = k
        cvt_done = max(k for k, o in enumerate(ops) if o[0] == "cvtV")
        reg = {}; free = list(URING); q = []
        ni = 0; AHEAD = self.opt.get("ahead", 9)
        def issue(x):
            if x[0] in ("U", "US"):
                r = free.pop(0); reg[x] = r
                off = UBASE + 16 * (28 + 4 * x[1]) - (16 if x[0] == "US" else 0)
                a(f"ds_read_b128 {vr(r,4)}, v11 offset:{off}"); q.append(x)
            elif x[0] in ("K", "K32"):
                r = KR(x[1], x[2]) if x[0] == "K" else K32
                mu = x[2] + 8 * x[1] if x[0] == "K" else 32
                reg[x] = r
                a(f"ds_read_b64 {vr(r,2)}, v10 offset:{64*(32-mu)}\nds_read_b64 {vr(r+2,2)}, v10 offset:{64*(32-mu)+8}")
                q.append(None); q.append(x)
            else:
                r = TT + 4 * (x[1] - 4); reg[x] = r; o = 16 * (7 - x[1])
                a(f"ds_read2_b32 {vr(r,2)}, v4 offset0:{o} offset1:{o+1}\nds_read2_b32 {vr(r+2,2)}, v4 offset0:{o+2} offset1:{o+3}")
                q.append(None); q.append(x)
        def wait_for(keys):
            nonlocal q
            pos = max([k for k, o in enumerate(q) if o in keys], default=-1)
            if pos >= 0:
                a(f"s_waitcnt lgkmcnt({min(15, len(q)-1-pos)})"); q = q[pos + 1:]
        def can(x, k):
            if x[0] in ("U", "US") and not free: return False
            if x[0] == "K" and x[1] >= 2 and x[2] >= 4 and k <= cvt_done: return False
            return True
        for k, o in enumerate(ops):
            n = 0
            while ni < len(need) and need[ni][1] <= k + AHEAD and can(need[ni][0], k) and len(q) < 13 and (n < 2 or k == 0 or need[ni][1] <= k):
                issue(need[ni][0]); ni += 1; n += 1
            if o[0] == "m":
                assert all(x[0] == "R" or x in reg for x in (o[2], o[3])), (k, o)
                wait_for([o[2], o[3]])
                R = lambda x: vr(x[1] if x[0] == "R" else reg[x], 4)
                a(f"v_mfma_f32_16x16x32_bf16 {vr(o[1],4)}, {R(o[2])}, {R(o[3])}, {'0' if o[4] else vr(o[1],4)}")
                for x in (o[2], o[3]):
                    if x[0] in ("U", "US") and last[x] == k: free.append(reg[x])
            elif o[0] == "y":
                r = ACC + 4 * o[1]
                a(f"""v_cvt_pk_bf16_f32 v{r}, v{r}, v{r+1}
                v_cvt_pk_bf16_f32 v{r+1}, v{r+2}, v{r+3}
                ds_write_b64 v7, {vr(r,2)} offset:{512*o[1]}""")
                q.append(("Y", o[1]))
            elif o[0] == "bar":
                wait_for([x for x in q if x and x[0] == "Y"])
                a("s_barrier")
            elif o[0] == "cvtV":
                for tau in o[1:]:
                    for r in range(4): a(f"v_cvt_pk_bf16_f32 v{VP+4*tau+r}, v{VFT(tau)+4+r}, v{VFT(tau)+r}")
        self.stamp(8)
        a(f"""
        s_cmp_lg_u32 s{S_W}, 0
        s_cbranch_scc1 L_mw_end
        s_mul_i32 s42, s50, {PSTR}
        s_add_u32 s42, s42, {PARTS + 4096}
        v_add_u32 v18, s42, v3
        v_add_u32 v20, 4096, v18
        v_and_b32 v21, 0x70, v3
        s_add_u32 s42, s42, {72*128 - 4096}
        v_add_u32 v21, s42, v21
        s_movk_i32 s61, {SPIN}
        v_mov_b32 v62, s54
        """)
        a("L_part_poll:")
        for k in range(9):
            a(f"global_load_dwordx4 {vr(128+4*k,4)}, v{18 if k < 8 else 20}, s[36:37] offset:{1024*k-4096 if k < 8 else 0} sc1")
        a(f"""global_load_dwordx4 v[164:167], v21, s[36:37] sc1
        global_load_dwordx2 v[72:73], v62, s[20:21]
        v_mov_b32 v22, 0
        v_mov_b32 v23, -1
        s_waitcnt vmcnt(0)""")
        for k in range(20):
            a(f"v_or3_b32 v22, v22, v{128+2*k}, v{129+2*k}\nv_bitop3_b32 v23, v23, v{128+2*k}, v{129+2*k} bitop3:0x80")
        a(f"""
        v_xor_b32 v22, s{S_T8}, v22
        v_xor_b32 v23, s{S_T8}, v23
        v_or_b32 v22, v22, v23
        v_and_b32 v22, 0xff, v22
        v_cmp_ne_u32 vcc, 0, v22
        s_sub_u32 s61, s61, 1
        s_cselect_b64 vcc, 0, vcc
        s_cbranch_vccnz L_part_poll
        """)
        self.stamp(9)
        a(f"""
        v_lshrrev_b32 v21, 8, v164
        v_and_b32 v21, 0x7ff, v21
        v_lshlrev_b32 v22, 1, v21
        v_add_u32 v23, {YBASE}, v22
        """)
        for c in range(4):
            a(f"ds_read_u16_d16_hi v{28+c}, v22 offset:{UBASE+UPAD+c*UCH}")
            a(f"ds_read_u16_d16_hi v{32+c}, v23 offset:{4096*c}")
        for k in range(1, 9):
            a(f"v_pk_add_f32 v[128:129], v[128:129], {vr(128+4*k,2)}\nv_pk_add_f32 v[130:131], v[130:131], {vr(130+4*k,2)}")
        a(f"""v_mul_u32_u24 v21, 1152, v21
        v_add_u32 v21, s54, v21
        v_and_b32 v166, 0xffff0000, v166
        v_and_b32 v167, 0xffff0000, v167""")
        for c in range(4): a(f"v_add_f32_dpp v{128+c}, v{128+c}, v{128+c} row_ror:8 row_mask:0xf bank_mask:0xf")
        for c in range(4): a(f"v_mov_b32 v{132+c}, v{128+c}")
        a("""v_lshlrev_b32 v12, 16, v72
        v_and_b32 v13, 0xffff0000, v72""")
        for c in range(4): a(f"v_permlane16_swap_b32 v{128+c}, v{132+c}")
        for c in range(4): a(f"v_add_f32 v{128+c}, v{128+c}, v{132+c}")
        for c in range(4): a(f"v_mov_b32 v{132+c}, v{128+c}")
        a("""v_lshlrev_b32 v14, 16, v73
        v_and_b32 v15, 0xffff0000, v73""")
        for c in range(4): a(f"v_permlane32_swap_b32 v{128+c}, v{132+c}")
        for c in range(4): a(f"v_add_f32 v{128+c}, v{128+c}, v{132+c}")
        a("s_waitcnt lgkmcnt(0)")
        for c in range(4): a(f"v_and_b32 v{28+c}, 0xffff0000, v{28+c}\nv_and_b32 v{32+c}, 0xffff0000, v{32+c}")
        for c in range(4): a(f"v_mul_f32 v{28+c}, {f2u(32.0)}, v{28+c}\nv_mul_f32 v{32+c}, {f2u(1/32)}, v{32+c}")
        for c in range(4): a(f"v_fma_f32 v{128+c}, v{128+c}, v165, v{28+c}\nv_fmac_f32 v{32+c}, v{28+c}, v{12+c}")
        for c in range(4): a(f"v_mul_f32 v{132+c}, {f2u(-LOG2E)}, v{128+c}")
        for c in range(4): a(f"v_exp_f32 v{132+c}, v{132+c}")
        for c in range(4): a(f"v_fma_f32 v{136+c}, v{28+c}, v167, v166")
        for c in range(4): a(f"v_add_f32 v{132+c}, 1.0, v{132+c}")
        for c in range(4): a(f"v_rcp_f32 v{132+c}, v{132+c}")
        for c in range(4): a(f"v_mul_f32 v{128+c}, v{128+c}, v{32+c}")
        for c in range(4): a(f"v_fmac_f32 v{136+c}, v{128+c}, v{132+c}")
        a(f"""
        v_cvt_pk_bf16_f32 v136, v136, v137
        v_cvt_pk_bf16_f32 v137, v138, v139
        s_barrier
        s_mov_b64 exec, 0xff
        global_store_dwordx2 v21, v[136:137], s[32:33]
        """)
        self.stamp(10)
        a("L_mw_end:")
        self.dump()
        a("s_endpgm")

    def helper(self):
        a = self.a
        a(f"""
L_helper:
        s_movk_i32 s61, {SPIN}
        v_lshlrev_b32 v13, 2, v240
        v_mul_u32_u24 v14, 2304, v240
        v_add_u32 v14, s54, v14
        v_add_u32 v15, {YBASE}, v13
        v_lshlrev_b32 v4, 16, v72
        v_and_b32 v5, 0xffff0000, v72
        v_lshlrev_b32 v6, 16, v73
        v_and_b32 v7, 0xffff0000, v73
        """)
        for c in range(4): a(f"v_mul_f32 v{4+c}, {f2u(1024.0)}, v{4+c}")
        a(f"""
        s_mov_b32 s60, 4
        s_waitcnt lgkmcnt(0)
        s_barrier
        """)
        self.stamp(7)
        a("L_h_loop:")
        for c in range(4): a(f"ds_read_b32 v{32+c}, v13 offset:{UBASE+UPAD+c*UCH}")
        a("s_waitcnt lgkmcnt(0)")
        for c in range(4): a(f"v_lshlrev_b32 v{40+c}, 16, v{32+c}\nv_and_b32 v{44+c}, 0xffff0000, v{32+c}")
        for e in range(8): a(f"v_mul_f32 v{48+e}, {f2u(-32*LOG2E)}, v{40+e}")
        for e in range(8): a(f"v_exp_f32 v{48+e}, v{48+e}")
        for e in range(8): a(f"v_add_f32 v{48+e}, 1.0, v{48+e}")
        for e in range(8): a(f"v_rcp_f32 v{48+e}, v{48+e}")
        for e in range(8): a(f"v_mul_f32 v{56+e}, v{4+(e&3)}, v{40+e}")
        for e in range(8): a(f"v_mul_f32 v{48+e}, v{48+e}, v{40+e}")
        a(f"""
        s_cmp_lg_u32 s60, 4
        s_cbranch_scc1 L_h_st_ok
L_h_poll:
        """)
        a(f"""v_xor_b32 v32, s{S_T16}, v225
        v_xor_b32 v33, s{S_T16}, v227""")
        for r in (229, 231, 233, 235, 237, 239):
            a(f"v_xor_b32 v34, s{S_T16}, v{r}\nv_or_b32 v32, v32, v34")
        a(f"""
        v_or_b32 v32, v32, v33
        v_and_b32 v32, 0xffff, v32
        v_cmp_ne_u32 vcc, 0, v32
        s_sub_u32 s61, s61, 1
        s_cselect_b64 vcc, 0, vcc
        s_cbranch_vccz L_h_st_ok
        global_load_dwordx4 v[224:227], v241, s[36:37] offset:-4096 sc1
        global_load_dwordx4 v[228:231], v241, s[36:37] sc1
        global_load_dwordx4 v[232:235], v242, s[36:37] offset:-4096 sc1
        global_load_dwordx4 v[236:239], v242, s[36:37] sc1
        s_waitcnt vmcnt(0)
        s_branch L_h_poll
L_h_st_ok:
        v_lshlrev_b32 v32, 16, v224
        v_and_b32 v33, 0xffff0000, v224
        v_lshlrev_b32 v34, 16, v226
        v_and_b32 v35, 0xffff0000, v226
        v_mul_f32 v33, {f2u(32.0)}, v33
        v_mul_f32 v35, {f2u(32.0)}, v35
        v_mov_b32 v224, v228
        v_mov_b32 v226, v230
        v_mov_b32 v228, v232
        v_mov_b32 v230, v234
        v_mov_b32 v232, v236
        v_mov_b32 v234, v238
        """)
        for e in range(8): a(f"v_fma_f32 v{40+e}, v{40+e}, v{33+2*(e>>2)}, v{32+2*(e>>2)}")
        for e in range(8): a(f"v_fmac_f32 v{40+e}, v{56+e}, v{48+e}")
        a(f"""
        s_barrier
        ds_read2st64_b32 v[32:33], v15 offset0:0 offset1:16
        ds_read2st64_b32 v[34:35], v15 offset0:32 offset1:48
        v_add_u32 v13, 1024, v13
        v_add_u32 v15, 1024, v15
        s_waitcnt lgkmcnt(0)
        """)
        for c in range(4): a(f"v_lshlrev_b32 v{56+c}, 16, v{32+c}")
        for c in range(4): a(f"v_fmac_f32 v{40+c}, v{56+c}, v{48+c}")
        a("""v_cvt_pk_bf16_f32 v36, v40, v41
        v_cvt_pk_bf16_f32 v37, v42, v43
        global_store_dwordx2 v14, v[36:37], s[32:33]""")
        for c in range(4): a(f"v_and_b32 v{60+c}, 0xffff0000, v{32+c}")
        for c in range(4): a(f"v_fmac_f32 v{44+c}, v{60+c}, v{52+c}")
        a(f"""v_cvt_pk_bf16_f32 v38, v44, v45
        v_cvt_pk_bf16_f32 v39, v46, v47
        global_store_dwordx2 v14, v[38:39], s[32:33] offset:1152
        v_add_u32 v14, {512*1152}, v14
        s_sub_u32 s60, s60, 1
        s_cmp_lg_u32 s60, 0
        s_cbranch_scc1 L_h_loop
        """)
        self.stamp(8)
        a("s_waitcnt vmcnt(0)")
        self.stamp(9)
        a("s_barrier")
        self.dump()
        a("L_end:\ns_endpgm")

    def build(self):
        self.prologue(); self.spare_pre(); self.ffn_pre(); self.conv_pre(); self.ln(); self.ffn(); self.conv()
        return HEADER + f"""; @launch grid=(256,1,1) block=(512,1,1) lds={LDSZ}
.amdgcn_target "amdgcn-amd-amdhsa--gfx950"
""" + self.a.text() + """.section .rodata,"a"
.p2align 6
""" + descriptor(KN, 256, 102)

if __name__ == "__main__":
    opt = {}
    for s in sys.argv[2:]:
        k, v = s.split("="); opt[k] = int(v)
    open(sys.argv[1], "w").write(G(**opt).build())
```

```python
import re, sys
from parts import *
REC = 0x1000000
def reporter(field, wg_lo, wg_hi, factor, op="max"):
    a = Asm()
    kernel_begin(a, "rep_kernel")
    lo, hi = wg_lo * 8, wg_hi * 8
    a(f"""
    s_load_dwordx2 s[8:9], s[0:1], 128
    s_cmp_ge_u32 s2, 1
    s_cbranch_scc1 rep_end
    v_lshlrev_b32 v1, 6, v0
    v_add_u32 v1, {REC}, v1
    v_mov_b32 v6, v0
    s_waitcnt lgkmcnt(0)
    """)
    for i in range(32):
        a(f"""global_load_dword v{20+i}, v1, s[8:9]
        global_load_dword v{60+i}, v1, s[8:9] offset:{4*field}
        v_add_u32 v1, 4096, v1""")
        if i == 15: a("s_waitcnt vmcnt(0)")
    a("""s_waitcnt vmcnt(0)
    v_readfirstlane_b32 s12, v20
    s_sub_u32 s12, s12, 100000
    v_mov_b32 v2, -1
    v_mov_b32 v3, 0""")
    for i in range(32):
        a(f"""v_cmp_ne_u32 vcc, 0, v{60+i}
        v_subrev_u32 v4, s12, v{20+i}
        v_subrev_u32 v5, s12, v{60+i}
        v_cndmask_b32 v5, 0, v5, vcc
        v_min_u32 v2, v2, v4
        v_cmp_le_u32 vcc, {lo}, v6
        v_cndmask_b32 v5, 0, v5, vcc
        v_cmp_gt_u32 vcc, {hi}, v6
        v_cndmask_b32 v5, 0, v5, vcc
        v_max_u32 v3, v3, v5
        v_add_u32 v6, 64, v6""")
    dpp_reduce(a, "v_min_u32", [2]); dpp_reduce(a, "v_max_u32", [3])
    a(f"""
    v_sub_u32 v2, v3, v2
    v_readlane_b32 s10, v2, 63
    s_min_u32 s10, s10, 4000
    s_mul_i32 s10, s10, {factor}
    s_memrealtime s[12:13]
    s_waitcnt lgkmcnt(0)
rep_spin:
    s_memrealtime s[14:15]
    s_waitcnt lgkmcnt(0)
    s_sub_u32 s14, s14, s12
    s_cmp_lt_u32 s14, s10
    s_cbranch_scc1 rep_spin
rep_end:
    s_endpgm
    """)
    return a.text()
def make(text, field, lo, hi, factor=32):
    KN = "recurrent_scan__ssm_conv_s4__moe_arch_mod__prompt_kernel"
    t = re.sub(r"; @launch grid", f"; @launch kernel={KN} grid", text, 1)
    t = t.replace(".amdgcn_target", "; @launch kernel=rep_kernel grid=(1,1,1) block=(64,1,1) lds=0\n.amdgcn_target", 1)
    t = t.replace('.section .rodata,"a"', reporter(field, lo, hi, factor) + '.section .rodata,"a"', 1)
    t += ".p2align 6\n" + descriptor("rep_kernel", 96, 24)
    return t
if __name__ == "__main__":
    src = open(sys.argv[1]).read()
    for spec in sys.argv[2:]:
        f, lo, hi, fac = map(int, spec.split(","))
        open(sys.argv[1][:-2] + f"_p{f}_{lo}_{hi}_{fac}.s", "w").write(make(src, f, lo, hi, fac))
```

```python
from probe2 import *
src = open("v2s.s").read()
KN = "recurrent_scan__ssm_conv_s4__moe_arch_mod__prompt_kernel"
t = make(src, 13, 0, 256, 32)
t = t.replace("rep_kernel:\n", "rep_kernel:\n    s_memrealtime s[20:21]\n", 1)
t = t.replace("    v_sub_u32 v2, v3, v2\n", "    s_sub_u32 s20, s20, s12\n    v_sub_u32 v2, s20, v3\n    s_nop 1\n", 1)
open("g_post.s", "w").write(t)
def front(t, grid=1, block=64, lds=0):
    a = Asm(); kernel_begin(a, "front_kernel")
    a(f"""s_load_dwordx2 s[8:9], s[0:1], 128
    s_cmp_ge_u32 s2, 1
    s_cbranch_scc1 front_end
    v_mov_b32 v1, {REC-64}
    s_waitcnt lgkmcnt(0)
    s_memrealtime s[12:13]
    s_waitcnt lgkmcnt(0)
    v_mov_b32 v2, s12
    global_store_dword v1, v2, s[8:9]
front_end:
    s_endpgm""")
    t = t.replace(f"; @launch kernel={KN}", f"; @launch kernel=front_kernel grid=({grid},1,1) block=({block},1,1) lds={lds}\n; @launch kernel={KN}", 1)
    t = t.replace('.section .rodata,"a"', a.text() + '.section .rodata,"a"', 1)
    return t + ".p2align 6\n" + descriptor("front_kernel", 8, 24)
t = front(make(src, 13, 0, 256, 32))
t = t.replace("    v_sub_u32 v2, v3, v2\n", f"    v_mov_b32 v7, {REC-64}\n    global_load_dword v7, v7, s[8:9]\n    s_waitcnt vmcnt(0)\n    v_subrev_u32 v7, s12, v7\n    v_sub_u32 v2, v2, v7\n    s_nop 1\n", 1)
open("g_pre.s", "w").write(t)
open("g_pre0.s", "w").write(front(make(src, 13, 0, 256, 0)))
open("g_pre_dur.s", "w").write(front(make(src, 13, 0, 256, 32)))
v2 = open("v2.s").read()
t = re.sub(r"; @launch grid", f"; @launch kernel={KN} grid", v2, 1)
open("g_front_v2.s", "w").write(front(t))
open("g_v2_twice.s", "w").write(t.replace(".amdgcn_target", f"; @launch kernel={KN} grid=(256,1,1) block=(512,1,1) lds=163840\n.amdgcn_target", 1))
```

```python
import sys, re
from parts import *
KN = "recurrent_scan__ssm_conv_s4__moe_arch_mod__prompt_kernel"

EPOCH = 0
STATS = 0x4000
PARTS = 0x10000
PSTR = 73 * 128
TILE = 0x200000
REC = 0x1000000
SPIN = 4096
LDSZ = 163840
LNROW = 1216; LNS = LDSZ - 8 * LNROW - 64; LNST = LNS + 8 * LNROW
SM = 147456
F_CT = SM
F_H = SM + 512; F_X = SM + 2560; XSTR = 1040; F_E = F_X + 9 * XSTR
ROW = 528; TCH = 64 * ROW
KS = 2240; KCH = 4 * KS + 320; K8 = 4 * KS
YBASE = 4 * KCH
UBASE = 4 * TCH; UPAD = 480; UCH = 4640
CFL = UBASE + 4 * UCH
assert CFL + 64 <= LNS and CFL & 0xf0
S_W, S_XCD, S_SLOT, S_T16, S_T8, S_TT = 39, 40, 41, 44, 45, 46

class G:
    def __init__(self, stamps=False, **opt):
        self.a = Asm(); self.stamps = stamps; self.opt = opt
        self.R1 = self.o("r1", 3); self.R0 = 32 * self.R1; self.P1 = self.o("p1", 10)
    def o(self, k, d): return self.opt.get(k, d)
    def stamp(self, k):
        if self.stamps: self.a(f"s_memrealtime s[{70+2*k}:{71+2*k}]")
    def fs(self, k, key="fine"):
        return f"s_memrealtime s[{70+2*k}:{71+2*k}]" if self.stamps and self.o(key, 0) else ""
    def dump(self):
        if not self.stamps: return
        a = self.a
        a("s_memtime s[100:101]\ns_memrealtime s[96:97]\ns_waitcnt lgkmcnt(0)\ns_mov_b64 exec, -1")
        for k in range(16): a(f"v_mov_b32 v{100+k}, s{70+2*k}")
        a(f"""s_lshl_b32 s42, s2, 3
        s_add_u32 s42, s42, s{S_W}
        s_lshl_b32 s42, s42, 6
        s_add_u32 s42, s42, {REC}
        v_mov_b32 v116, s42
        s_mov_b64 exec, 1""")
        for k in range(4): a(f"global_store_dwordx4 v116, {vr(100+4*k,4)}, s[36:37] offset:{16*k}")

    def prologue(self):
        a = self.a
        kernel_begin(a, KN)
        if self.stamps:
            for k in range(16): a(f"s_mov_b32 s{70+2*k}, 0")
        self.stamp(0)
        if self.stamps: a("s_memtime s[98:99]")
        a(f"""
        s_load_dwordx16 s[4:19], s[0:1], 0
        s_load_dwordx16 s[20:35], s[0:1], 64
        s_load_dwordx2 s[36:37], s[0:1], 128
        s_cmp_ge_u32 s2, 256
        s_cbranch_scc1 L_end
        s_lshr_b32 s{S_SLOT}, s2, 3
        s_getpc_b64 s[42:43]
L_pc:
        s_mul_i32 s47, s{S_SLOT}, 640
        s_add_u32 s42, s42, s47
        s_addc_u32 s43, s43, 0
        v_lshlrev_b32 v4, 7, v0
        v_mov_b32 v5, s43
        v_add_co_u32 v4, vcc, s42, v4
        v_lshrrev_b32 v1, 6, v0
        v_and_b32 v2, 63, v0
        v_addc_co_u32 v5, vcc, 0, v5, vcc
        v_cmp_gt_u32 vcc, 5, v0
        s_cmp_lt_u32 s47, L_end - L_pc - 516
        s_cselect_b64 vcc, vcc, 0
        s_and_saveexec_b64 s[48:49], vcc
        s_cbranch_execz L_nopf
        global_load_dword v255, v[4:5], off
L_nopf:
        s_mov_b64 exec, -1
        v_readfirstlane_b32 s{S_W}, v1
        s_and_b32 s{S_XCD}, s2, 7
        s_mul_i32 s42, s2, 9216
        v_lshlrev_b32 v3, 4, v2
        v_lshlrev_b32 v4, 1, v2
        v_mul_u32_u24 v5, 1152, v1
        v_add3_u32 v6, v5, v3, s42
        v_add3_u32 v7, v5, v4, s42
        s_waitcnt lgkmcnt(0)
        global_load_dwordx4 v[12:15], v6, s[4:5]
        global_load_ushort v16, v7, s[4:5] offset:1024
        s_load_dword s38, s[36:37], {EPOCH}
        global_load_dwordx4 v[20:23], v3, s[24:25]
        global_load_ushort v24, v4, s[24:25] offset:1024
        """)
        self.stamp(1)
        a(f"""
        s_and_b32 s51, s{S_W}, 3
        s_lshr_b32 s52, s{S_W}, 2
        s_cmp_lt_u32 s{S_SLOT}, 18
        s_cbranch_scc1 L_conv_pre
        s_cmp_lt_u32 s{S_SLOT}, 27
        s_cbranch_scc1 L_ffn_pre
        """)
    def touch_setup(self):
        NL = 9 * (576 - self.R0) - 1
        self.a(f"""
        s_mul_i32 s43, s{S_XCD}, 1152
        s_add_u32 s43, s43, {self.R0*9216}
        s_mul_i32 s59, s{S_XCD}, {576*1152}
        s_cmp_eq_u32 s58, 0
        s_cselect_b32 s56, s26, s28
        s_cselect_b32 s57, s27, s29
        s_cmp_eq_u32 s58, 2
        s_cselect_b32 s56, s30, s56
        s_cselect_b32 s57, s31, s57
        s_cselect_b32 s43, s59, s43
        s_movk_i32 s58, 128
        s_movk_i32 s59, 8064
        s_movk_i32 s60, {NL}
        s_cmov_b32 s58, 73728
        s_cmov_b32 s59, {-(9*73728-128)}
        s_cmovk_i32 s60, 5183
        v_add_u32 v76, s42, v2
        v_min_u32 v76, s60, v76
        v_mul_u32_u24 v63, 7282, v76
        v_lshrrev_b32 v63, 16, v63
        v_mul_u32_u24 v76, s58, v76
        v_mad_i32_i24 v76, v63, s59, v76
        v_add_u32 v76, s43, v76
        """)
    def spare_pre(self):
        a = self.a
        a(f"""
        s_sub_u32 s53, s{S_SLOT}, 27
        s_and_b32 s58, s{S_W}, 1
        s_lshr_b32 s43, s{S_W}, 1
        s_mul_i32 s42, s43, 320
        s_add_u32 s42, s42, 2304
        s_cmp_eq_u32 s43, 0
        s_cmovk_i32 s42, 1152
        s_cmp_eq_u32 s43, 1
        s_cselect_b32 s48, 1, 0
        s_mul_i32 s59, s58, 320
        s_cmp_eq_u32 s43, 3
        s_cselect_b32 s42, s59, s42
        s_cmovk_i32 s58, 2
        s_lshl_b32 s53, s53, 6
        s_add_u32 s42, s42, s53
        """)
        self.touch_setup()
        a(f"""
        s_barrier
        s_mov_b32 s47, 0
        s_cmp_ge_u32 s{S_W}, {self.o('sp1', 2)}
        s_cbranch_scc1 L_lnp
        global_load_dword v1, v76, s[56:57]
        s_mov_b32 s47, 1
        s_branch L_lnp
        """)
    def ffn_pre(self):
        a = self.a
        a(f"""
L_ffn_pre:
        s_sub_u32 s54, s{S_SLOT}, 18
        s_mul_i32 s50, s{S_XCD}, 9
        s_add_u32 s50, s50, s54            ; f
        v_bfe_u32 v76, v0, 3, 5            ; row 8*(w&3) + r
        v_bfe_u32 v61, v0, 4, 1
        v_bfe_u32 v62, v0, 6, 1
        v_lshl_add_u32 v61, v62, 1, v61
        v_lshlrev_b32 v61, 1, v61
        v_and_b32 v62, 7, v0
        v_xor_b32 v61, v61, v62
        v_mul_u32_u24 v76, 9216, v76
        v_lshlrev_b32 v61, 4, v61
        s_lshl_b32 s42, s50, 7
        v_add3_u32 v76, v76, v61, s42
        s_lshl_b32 s53, s51, 10
        s_cmp_eq_u32 s52, 0
        s_cselect_b32 s56, s26, s28
        s_cselect_b32 s57, s27, s29
        s_cselect_b32 s42, 0, 73728
        s_add_u32 s42, s53, s42
        s_barrier
        """)
        for i in range(self.R1):
            a(f"""s_add_u32 m0, s42, {4096*i}
            s_nop 0
            global_load_lds_dwordx4 v76, s[56:57]
            v_add_u32 v76, {32*9216}, v76""")
        a(f"""
        v_mov_b32 v62, 0
        v_mov_b32 v63, 0
        v_lshrrev_b32 v61, 1, v3
        v_add_u32 v61, {F_CT}, v61
        ds_write_b64 v61, v[62:63]
        s_mov_b32 s47, {self.R1}
        s_mov_b32 s48, 0
        s_branch L_lnp
        """)
    def conv_pre(self):
        a = self.a
        a(f"""
L_conv_pre:
        s_mul_i32 s50, s{S_XCD}, 18
        s_add_u32 s50, s50, s{S_SLOT}      ; group
        s_lshl_b32 s53, s50, 2
        s_add_u32 s53, s53, s51            ; channel
        s_lshl_b32 s42, s53, 8
        s_lshl_b32 s43, s52, 7
        s_add_u32 s42, s42, s43
        v_add_u32 v60, s42, v4
        s_lshl_b32 s54, s50, 3
        s_lshl_b32 s42, s53, 1
        v_mov_b32 v61, s42
        s_barrier
        global_load_ushort v70, v61, s[18:19]
        global_load_ushort v71, v61, s[20:21]
        global_load_ushort v64, v60, s[6:7]
        global_load_ushort v65, v60, s[8:9]
        global_load_ushort v66, v60, s[10:11]
        global_load_ushort v67, v60, s[12:13]
        global_load_ushort v68, v60, s[14:15]
        global_load_ushort v69, v60, s[16:17]
        s_lshr_b32 s42, s51, 1
        s_mul_i32 s42, s42, 1472
        s_and_b32 s58, s51, 1
        s_mul_i32 s43, s51, {-18*64}
        s_add_u32 s43, s43, {63*64}
        s_cmp_eq_u32 s52, 0
        s_cselect_b32 s42, s43, s42
        s_cmovk_i32 s58, 2
        s_lshl_b32 s43, s{S_SLOT}, 6
        s_add_u32 s42, s42, s43
        """)
        self.touch_setup()
        a(f"""
        s_mov_b32 s47, 8
        s_lshr_b32 s42, s{S_W}, 1
        s_cmp_eq_u32 s42, 3
        s_cselect_b32 s48, 1, 0
        s_cmp_lg_u32 s42, 2
        s_cbranch_scc1 L_cp2
        global_load_dword v1, v76, s[56:57]
        s_mov_b32 s47, 9
L_cp2:
        v_and_b32 v8, 15, v0
        v_bfe_u32 v9, v0, 4, 2
        s_mul_i32 s55, s51, {TCH}
        v_mul_u32_u24 v78, {ROW}, v8
        v_and_b32 v79, 0x100, v3
        v_add3_u32 v78, v78, v79, s55
        v_and_b32 v79, 0x200, v3
        v_lshrrev_b32 v79, 2, v79
        v_add_u32 v78, v78, v79
        s_mul_i32 s42, s52, {16*ROW}
        v_add_u32 v79, s42, v78
        v_and_b32 v80, 3, v0
        v_add_u32 v80, -1, v80
        v_lshrrev_b32 v80, 16, v80
        v_and_b32 v80, {12*ROW}, v80
        v_sub_u32 v80, v78, v80
        s_mul_i32 s62, s51, {KCH}
        s_lshl_b32 s42, s52, 9
        s_sub_u32 s42, s62, s42
        s_add_u32 s42, s42, {2104 - 1024}
        v_lshlrev_b32 v81, 5, v8
        v_lshl_add_u32 v81, v9, 3, v81
        v_sub_u32 v81, s42, v81
        v_bfe_u32 v83, v0, 2, 1
        v_mul_u32_u24 v83, {2*KS - 4}, v83
        v_sub_u32 v82, v81, v83
        v_add_u32 v82, {2*KS - 4}, v82
        v_add_u32 v81, v81, v83
        ; zero pad of u (outside the tables) and the flag words
        v_min_u32 v83, 29, v2
        s_mul_i32 s63, s51, {UCH}
        s_add_u32 s63, s63, {UBASE}
        v_lshl_add_u32 v83, v83, 4, s63
        v_mov_b32 v84, 0
        v_mov_b32 v85, 0
        v_mov_b32 v86, 0
        v_mov_b32 v87, 0
        ds_write_b128 v83, v[84:87]
        v_and_b32 v88, 0x30, v3
        v_add_u32 v88, {CFL}, v88
        ds_write_b128 v88, v[84:87]
        """)
    def ln(self):
        a = self.a
        T64 = self.o("tile64", 1)
        a(f"""
L_lnp:
        s_mul_i32 s43, s{S_W}, {LNROW}
        s_add_u32 s43, s43, {LNS}
        v_add_u32 v52, s43, v3
        v_add_u32 v53, s43, v4
        s_lshl_b32 s43, s{S_W}, 3
        s_add_u32 s43, s43, {LNST}
        v_mov_b32 v54, s43
        v_bfe_u32 v55, v0, 2, 2
        v_mul_u32_u24 v55, {LNROW}, v55
        v_and_b32 v56, 3, v0
        v_lshl_add_u32 v55, v56, 3, v55
        v_lshrrev_b32 v56, 4, v0
        v_lshl_add_u32 v55, v56, 5, v55
        v_add_u32 v55, {LNS}, v55
        v_lshrrev_b32 v56, {2 if T64 else 3}, v0
        v_lshlrev_b32 v56, {14 if T64 else 15}, v56
        v_and_b32 v57, {0x30 if T64 else 0x70}, v3
        s_lshl_b32 s43, s2, {6 if T64 else 7}
        s_add_u32 s43, s43, {TILE}
        v_add3_u32 v56, v56, v57, s43
        v_mov_b32 v40, 0
        v_mov_b32 v41, 0
        v_mov_b32 v42, 0
        v_mov_b32 v43, 0
        v_mov_b32 v44, {f2u(1/576)}
        v_mov_b32 v38, 0xbfffbfff
        v_mov_b32 v37, 0xffff
        s_lshl_b32 s58, s2, 3
        s_add_u32 s58, s58, s{S_W}
        s_xor_b32 s58, s58, 0x7ff
        s_lshl_b32 s58, s58, 5
        s_waitcnt lgkmcnt(0)
        s_add_u32 s38, s38, 0x9e370001
        s_lshr_b32 s{S_T16}, s38, 16
        s_and_b32 s{S_T8}, s38, 0xff
        s_and_b32 s{S_TT}, s38, 0xfb
        s_bitcmp0_b32 s38, 0
        s_cselect_b32 s43, 4, 0
        s_or_b32 s{S_TT}, s{S_TT}, s43
        s_bitcmp1_b32 s{S_TT}, s{S_W}
        s_cselect_b32 s43, 0x40004000, 0
        v_mov_b32 v39, s43
        s_xor_b32 s58, s58, s{S_T16}
        v_mov_b32 v57, s58
        s_mov_b32 s42, 0x3f803f80
        """)
        for v in sorted({0, 1, self.R1, 8, 9}, reverse=True):
            a(f"s_waitcnt vmcnt({v})")
            if v != 0: a(f"s_cmp_eq_u32 s47, {v}\ns_cbranch_scc1 L_ln")
        a("L_ln:")
        self.stamp(2)
        if self.o("e1", 0): a("s_cmp_eq_u32 s48, 0\ns_cbranch_scc1 L_ln1\nglobal_load_dword v1, v76, s[56:57]\nL_ln1:")
        for i in range(5):
            a(f"""v_dot2c_f32_bf16 v40, s42, v{12+i}
            v_dot2c_f32_bf16 v41, v{12+i}, v{12+i}
            v_dot2c_f32_bf16 v42, v{12+i}, v{20+i}
            v_dot2c_f32_bf16 v43, s42, v{20+i}""")
        un = [f"v_lshlrev_b32 v{28+2*i}, 16, v{12+i}\nv_and_b32 v{29+2*i}, 0xffff0000, v{12+i}" for i in range(4)]
        a(f"""
        v_lshlrev_b32 v36, 16, v16
        {un[0]}
        v_permlane32_swap_b32 v40, v42
        v_permlane32_swap_b32 v41, v43
        v_add_f32 v40, v40, v42
        v_add_f32 v41, v41, v43
        {un[1]}
        v_permlane16_swap_b32 v40, v41
        v_add_f32 v40, v40, v41
        {un[2]}
        v_add_f32_dpp v40, v40, v40 row_ror:8 row_mask:0xf bank_mask:0xf
        {un[3]}
        v_add_f32_dpp v40, v40, v40 row_ror:4 row_mask:0xf bank_mask:0xf
        v_add_f32_dpp v40, v40, v40 row_ror:2 row_mask:0xf bank_mask:0xf
        v_add_f32_dpp v40, v40, v40 row_ror:1 row_mask:0xf bank_mask:0xf
        v_readlane_b32 s58, v40, 0
        v_readlane_b32 s59, v40, 16
        v_readlane_b32 s60, v40, 32
        v_readlane_b32 s61, v40, 48
        v_mul_f32 v40, s58, v44
        v_mul_f32 v41, s59, v44
        v_fma_f32 v41, -v40, v40, v41
        v_max_f32 v41, 0, v41
        v_cvt_pk_bf16_f32 v44, v41, v40
        v_lshlrev_b32 v41, 16, v44
        v_add_f32 v41, {f2u(1e-5)}, v41
        v_cvt_pk_bf16_f32 v41, v41, v41
        v_and_b32 v41, 0xffff0000, v41
        v_sqrt_f32 v41, v41
        v_and_b32 v49, 0xffff0000, v44
        v_cvt_pk_bf16_f32 v50, v49, v41
        v_and_b32 v41, 0xffff0000, v50
        v_rcp_f32 v48, v41
        v_mul_f32 v42, s61, v49
        v_mul_f32 v46, {f2u(1/32)}, v48
        v_mul_f32 v47, v49, v46
        """)
        key = f"""v_sub_f32 v42, s60, v42
        v_mul_f32 v42, v42, v48
        v_cvt_pk_bf16_f32 v42, v42, v42
        v_ashrrev_i32 v43, 31, v42
        v_or_b32 v43, 0x80000000, v43
        v_xor_b32 v42, v42, v43
        v_bitop3_b32 v51, v37, v57, v42 bitop3:0xca
        s_mov_b64 exec, 1
        ds_write_b64 v54, v[50:51]
        s_mov_b64 exec, -1"""
        def norm():
            for i in range(9): a(f"v_fma_f32 v{28+i}, v{28+i}, v46, -v47")
            for i in range(4): a(f"v_cvt_pk_bf16_f32 v{28+i}, v{28+2*i}, v{29+2*i}")
            a("v_cvt_pk_bf16_f32 v32, v36, v36")
            for i in range(5): a(f"v_bitop3_b32 v{28+i}, v{28+i}, v38, v39 bitop3:0xea")
            a("ds_write_b128 v52, v[28:31]\nds_write_b16 v53, v32 offset:1024")
        stat = lambda mid, cnt: f"""v_and_b32 v41, 0x30, v3
        v_add_u32 v40, {LNST}, v41
        ds_read_b128 v[48:51], v40
        {mid}
        s_lshl_b32 s43, s2, 6
        s_add_u32 s43, s43, {STATS}
        v_add_u32 v41, s43, v41
        s_mov_b64 exec, 15
        s_waitcnt lgkmcnt({cnt})
        global_store_dwordx4 v41, v[48:51], s[36:37] sc1
        s_mov_b64 exec, -1"""
        tr = f"ds_read_b64_tr_b16 v[28:29], v55\nds_read_b64_tr_b16 v[30:31], v55 offset:{4*LNROW}"
        w0 = f"""s_cmp_eq_u32 s{S_W}, 0
        s_cbranch_scc0 L_ln_st
        ds_read_b64_tr_b16 v[32:33], v55 offset:1024
        ds_read_b64_tr_b16 v[34:35], v55 offset:{4*LNROW+1024}
        v_add_u32 v38, {64*32768}, v56
        s_waitcnt lgkmcnt(0)
        global_store_dwordx4 v38, v[32:35], s[36:37] sc1"""
        if self.o("early", 1):
            a(key)
            a(f"""s_waitcnt lgkmcnt(0)
            s_barrier
            s_cmp_eq_u32 s{S_W}, 1
            s_cbranch_scc0 L_ln_n
            {stat("", 0)}
L_ln_n:""")
            norm()
            a(f"s_waitcnt lgkmcnt(0)\ns_barrier\n{tr}\n{w0}")
        else:
            norm(); a(key)
            a(f"""s_waitcnt lgkmcnt(0)
            s_barrier
            s_cmp_eq_u32 s{S_W}, 1
            s_cbranch_scc1 L_ln_stat
            {tr}
            {w0}
            s_branch L_ln_st
L_ln_stat:
            {stat(tr, 2)}""")
        a("""L_ln_st:
        s_waitcnt lgkmcnt(0)
        global_store_dwordx4 v56, v[28:31], s[36:37] sc1""")
        self.stamp(3)
        a(f"""
        s_cmp_lt_u32 s{S_SLOT}, 18
        s_cbranch_scc1 L_conv
        s_barrier
        s_cmp_lt_u32 s{S_SLOT}, 27
        s_cbranch_scc1 L_ffn
        ; ---- spare
        s_cmp_lt_u32 s{S_W}, {4 if self.o('e1', 0) else 2}
        s_cbranch_scc1 L_sp2
        {"s_waitcnt vmcnt(0)" if self.o("spwait", 1) else ""}
        global_load_dword v1, v76, s[56:57]
L_sp2:
        """)
        if self.o("sp2", 1):
            a(f"""s_mul_i32 s42, s{S_W}, 320
            s_add_u32 s42, s42, s53
            s_add_u32 s42, s42, 640
            s_mov_b32 s58, 2""")
            self.touch_setup()
            a("s_barrier\nglobal_load_dword v1, v76, s[56:57]")
        a(f"""
        s_waitcnt vmcnt(0)
        """)
        self.stamp(4)
        self.dump()
        a("s_endpgm")

    def ffn(self):
        a = self.a
        KY, IV, SL = 28, 128, 112
        RAW, OP, EX, AC, EXR = 40, 112, 104, 176, 216
        spin = lambda lab, off, tgt: f"""{lab}:
        ds_read_b32 v24, v26 offset:{off}
        s_waitcnt lgkmcnt(0)
        v_readfirstlane_b32 s61, v24
        s_and_b32 s60, s61, 0xffff
        s_cmp_ge_u32 s60, {tgt}
        s_cbranch_scc1 {lab}_ok
        s_sub_u32 s55, s55, 1
        s_cbranch_scc0 {lab}
{lab}_ok:"""
        a(f"""
L_ffn:
        v_bfe_u32 v14, v0, 4, 2            ; kq
        v_and_b32 v11, 7, v0
        v_mov_b32 v26, {F_CT}
        v_mov_b32 v27, 4
        s_cmp_eq_u32 s52, 0
        s_cbranch_scc0 L_gu
        s_setprio 1
        v_lshlrev_b32 v8, 4, v0
        v_add_u32 v9, {STATS + 4096}, v8
        v_add_u32 v10, 8192, v9
        v_lshlrev_b32 v13, 6, v0
        """)
        for k in range(8): a(f"v_xor_b32 v{IV+k}, {(0x7ff ^ (512*(k>>1)) ^ (k&1)) << 5}, v13")
        a(f"""
        v_mov_b32 v36, s{S_T16}
        v_lshrrev_b32 v25, 5, v0
        v_lshl_add_u32 v25, v25, 2, v26
        s_mul_i32 s62, s{S_W}, 80
        s_add_u32 s62, s62, {F_CT + 128}
        v_and_b32 v15, 0x3c, v0
        v_add_u32 v15, s62, v15
        v_and_b32 v16, 3, v0
        v_mul_u32_u24 v16, 80, v16
        v_add_u32 v16, {F_CT + 128}, v16
        v_lshrrev_b32 v12, 3, v2
        v_lshl_add_u32 v17, v12, 2, v26
        v_lshl_add_u32 v18, v11, 2, v26
        v_and_b32 v12, 6, v12
        v_xor_b32 v12, v12, v11
        v_lshlrev_b32 v12, 4, v12
        v_lshl_add_u32 v12, v1, 7, v12
        v_add_u32 v12, {2047*1152}, v12
        s_lshl_b32 s63, s54, 7
        s_add_u32 s63, s63, {2047*1152}
        v_mov_b32 v37, s63
        s_movk_i32 s63, -1152
        s_mul_i32 s64, s{S_W}, {XSTR}
        s_mul_i32 s42, s50, 73728
        s_add_u32 s12, s30, s42
        s_addc_u32 s13, s31, 0
        s_add_u32 s14, s12, {16*1152}
        s_addc_u32 s15, s13, 0
        s_add_u32 s16, s12, {32*1152}
        s_addc_u32 s17, s13, 0
        s_add_u32 s18, s12, {48*1152}
        s_addc_u32 s19, s13, 0
        v_mul_u32_u24 v19, 4608, v14
        v_and_b32 v20, 0xf0, v3
        s_lshl_b32 s42, s51, 8
        v_add3_u32 v19, v19, v20, s42
        v_lshrrev_b32 v20, 1, v2
        v_mul_u32_u24 v20, 1152, v20
        v_and_b32 v21, 16, v3
        s_lshl_b32 s42, s51, 5
        v_add3_u32 v20, v20, v21, s42
        v_bfe_i32 v232, v0, 3, 1
        v_mul_u32_u24 v4, {8*PSTR}, v14
        v_lshl_add_u32 v4, v11, 4, v4
        v_and_b32 v5, {PSTR}, v232
        s_lshl_b32 s43, s50, 7
        s_add_u32 s43, s43, {PARTS}
        s_mul_i32 s42, s51, {32*PSTR}
        s_add_u32 s42, s42, s43
        v_add3_u32 v4, v4, v5, s42
        v_add_u32 v5, {2*PSTR}, v4
        v_add_u32 v6, {4*PSTR}, v4
        v_add_u32 v7, {6*PSTR}, v4
        v_mul_u32_u24 v8, {PSTR}, v14
        v_lshl_add_u32 v8, v11, 4, v8
        s_mul_i32 s42, s51, {4*PSTR}
        s_add_u32 s42, s42, s43
        s_add_u32 s42, s42, {128*PSTR}
        v_add_u32 v8, s42, v8
        v_mov_b32 v233, s{S_T8}
        v_mov_b32 v234, 0xff
        v_and_b32 v235, 0x370, v3
        v_add_u32 v235, {F_H}, v235
        s_lshl_b32 s42, s51, 10
        s_add_u32 s42, s42, {F_E}
        v_add_u32 v236, s42, v3
        v_lshl_add_u32 v237, v2, 3, s42
        s_mov_b32 s66, 0x05040100
        s_mov_b32 s67, 0x07060302
        s_movk_i32 s55, {SPIN}
        s_waitcnt vmcnt(0)
        """)
        self.stamp(10)
        ld = "\n".join(f"global_load_dwordx4 {vr(SL+4*k,4)}, v{9+(k>>1)}, s[36:37] offset:{-4096 if k%2==0 else 0} sc1" for k in range(4))
        a("s_barrier\ns_barrier" if self.o("bq", 0) else "s_barrier")
        if self.o("polldelay", 0): a(f"s_sleep {self.o('polldelay', 0)}")
        if self.o("npoll", 0): a("s_memrealtime s[72:73]\ns_mov_b32 s74, 0")
        a(f"{ld}\ns_barrier\nL_ffn_poll:")
        NP = "s_memrealtime s[68:69]\ns_waitcnt lgkmcnt(0)\ns_cmp_eq_u32 s74, 0\ns_cselect_b32 s74, s68, s74\ns_sub_u32 s94, 4097, s55\ns_mul_i32 s94, s94, 100\ns_add_u32 s94, s94, s70" if self.o("npoll", 0) else ""
        a("v_mov_b32 v24, 0")
        for k in range(8):
            if k % 2 == 0: a(f"s_waitcnt vmcnt({3-(k>>1)})")
            a(f"v_xor_b32 v{KY+k}, v36, v{SL+1+2*k}\nv_bitop3_b32 v24, v24, v{KY+k}, v{IV+k} bitop3:0xf6")
        a(f"""
        v_and_b32 v24, 0xffff, v24
        v_cmp_ne_u32 vcc, 0, v24
        v_max3_u32 v38, v28, v29, v30
        v_max3_u32 v39, v31, v32, v33
        {NP}
        s_cbranch_vccz L_ffn_go
        {ld}
        s_sub_u32 s55, s55, 1
        s_cbranch_scc0 L_ffn_poll
        s_waitcnt vmcnt(0)
L_ffn_go:
        """)
        self.stamp(4)
        T = IV
        a(f"""
        v_max3_u32 v38, v38, v34, v35
        v_max_u32 v38, v38, v39
        v_alignbit_b32 v24, 1, v38, 5
        v_sub_u32 v{T}, v28, v38
        v_sub_u32 v{T+1}, v29, v38
        v_max_u32_dpp v21, v24, v24 row_ror:1 row_mask:0xf bank_mask:0xf
        v_sub_u32 v{T+2}, v30, v38
        v_sub_u32 v{T+3}, v31, v38
        v_max_u32_dpp v21, v21, v21 row_ror:2 row_mask:0xf bank_mask:0xf
        v_sub_u32 v{T+4}, v32, v38
        v_sub_u32 v{T+5}, v33, v38
        v_max_u32_dpp v21, v21, v21 row_ror:4 row_mask:0xf bank_mask:0xf
        v_sub_u32 v{T+6}, v34, v38
        v_sub_u32 v{T+7}, v35, v38
        v_max_u32_dpp v21, v21, v21 row_ror:8 row_mask:0xf bank_mask:0xf
        v_max3_u32 v39, v{T}, v{T+1}, v{T+2}
        v_max3_u32 v22, v{T+3}, v{T+4}, v{T+5}
        v_max_u32_dpp v21, v21, v21 row_bcast:15 row_mask:0xa bank_mask:0xf
        s_mov_b32 exec_lo, 0x80000000
        s_mov_b32 exec_hi, 0x80000000
        ds_write_b32 v25, v21
        s_mov_b64 exec, -1
        s_mov_b32 s55, {SPIN*64}
        ds_read_b128 {vr(SL,4)}, v26
        ds_read_b128 {vr(SL+4,4)}, v26 offset:16
        v_max3_u32 v39, v39, v{T+6}, v{T+7}
        v_max_u32 v39, v39, v22
        v_add_u32 v39, v39, v38
        v_alignbit_b32 v23, 1, v39, 5
        {self.fs(1)}
L_s1:
        s_waitcnt lgkmcnt(0)
        v_min3_u32 v21, v{SL}, v{SL+1}, v{SL+2}
        v_min3_u32 v22, v{SL+3}, v{SL+4}, v{SL+5}
        v_min3_u32 v21, v21, v{SL+6}, v{SL+7}
        v_min_u32 v21, v21, v22
        v_cmp_eq_u32 vcc, 0, v21
        v_cmp_ge_u32 s[6:7], v24, v21
        v_cmp_ge_u32 s[8:9], v23, v21
        s_cbranch_vccz L_s1_ok
        ds_read_b128 {vr(SL,4)}, v26
        ds_read_b128 {vr(SL+4,4)}, v26 offset:16
        s_sub_u32 s55, s55, 1
        s_cbranch_scc0 L_s1
L_s1_ok:
        {self.fs(2)}
        s_bcnt1_i32_b64 s10, s[6:7]
        v_mbcnt_lo_u32_b32 v22, s6, 0
        v_mbcnt_lo_u32_b32 v13, s8, 0
        v_mbcnt_hi_u32_b32 v22, s7, v22
        v_mbcnt_hi_u32_b32 v13, s9, v13
        v_min_u32 v22, 16, v22
        v_add_u32 v13, s10, v13
        v_lshl_add_u32 v22, v22, 2, s62
        v_min_u32 v13, 16, v13
        s_mov_b64 exec, s[6:7]
        ds_write_b32 v22, v24
        v_lshl_add_u32 v13, v13, 2, s62
        s_mov_b64 exec, s[8:9]
        ds_write_b32 v13, v23
        s_mov_b64 exec, 1
        ds_add_u32 v26, v27 offset:32
        s_mov_b64 exec, -1
        ds_read_b32 v22, v26 offset:32
        ds_read_b32 v13, v15
        """)
        rd4 = "\n".join(f"ds_read_b128 {vr(SL+4*k,4)}, v16 offset:{16*k}" for k in range(4))
        a(rd4)
        if self.o("ctouch", 1):
            a(f"""
        v_and_b32 v24, 0x7ff, v24
        v_and_b32 v23, 0x7ff, v23
        v_mad_i32_i24 v24, v24, s63, v37
        v_mad_i32_i24 v23, v23, s63, v37
        s_mov_b64 exec, s[6:7]
        global_load_dword v239, v24, s[4:5]
        s_cmp_eq_u64 s[8:9], 0
        s_cbranch_scc1 L_no2
        s_mov_b64 exec, s[8:9]
        global_load_dword v239, v23, s[4:5]
L_no2:
        s_mov_b64 exec, -1""")
        a(f"""
        {self.fs(3)}
L_s2:
        s_waitcnt lgkmcnt(0)
        v_cmp_ne_u32 vcc, 16, v22
        v_mov_b32 v24, 0
        s_cbranch_vccz L_s2_ok
        ds_read_b32 v22, v26 offset:32
        ds_read_b32 v13, v15
        {rd4}
        s_sub_u32 s55, s55, 1
        s_cbranch_scc0 L_s2
L_s2_ok:
        {self.fs(11)}
        """)
        for k in range(16): a(f"v_sub_u32 v{SL+k}, v13, v{SL+k}\nv_alignbit_b32 v24, v24, v{SL+k}, 31")
        a(f"""
        v_bcnt_u32_b32 v24, v24, 0
        v_add_u32_dpp v24, v24, v24 quad_perm:[1,0,3,2] row_mask:0xf bank_mask:0xf
        v_add_u32_dpp v24, v24, v24 quad_perm:[2,3,0,1] row_mask:0xf bank_mask:0xf
        v_cmp_gt_u32 vcc, 8, v24
        v_lshl_add_u32 v24, v24, 2, v26
        s_mov_b64 exec, vcc
        ds_write_b32 v24, v13 offset:64
        s_mov_b64 exec, -1
        {self.fs(12)}
L_s3:
        ds_read_b32 v23, v17 offset:64
        ds_read_b32 v13, v18 offset:64
        s_add_u32 m0, s64, {F_X}
        s_waitcnt lgkmcnt(0)
        v_cmp_eq_u32 vcc, 0, v23
        v_and_b32 v23, 0x7ff, v23
        s_sub_u32 s55, s55, 1
        s_cselect_b64 vcc, 0, vcc
        s_cbranch_vccnz L_s3
        """)
        self.stamp(5)
        xdma = f"""
        v_mad_i32_i24 v23, v23, s63, v12
        global_load_lds_dwordx4 v23, s[4:5]
        s_add_u32 m0, s64, {F_X + 4*XSTR - 512}
        v_and_b32 v22, 0x7ff, v13
        global_load_lds_dwordx4 v23, s[4:5] offset:512
        v_sub_u32 v22, 2047, v22
        s_cmp_lg_u32 s{S_W}, 0
        s_cbranch_scc1 L_nox9@
        s_mov_b32 m0, {F_X + 8*XSTR - 1024}
        s_nop 0
        global_load_lds_dwordx4 v23, s[4:5] offset:1024
        s_branch L_x3@
L_nox9@:
        v_lshlrev_b32 v24, 3, v22
        v_add_u32 v24, {STATS}, v24
        global_load_dword v25, v24, s[36:37] sc1
L_x3@:
        """
        xflag = f"""
        s_cmp_lg_u32 s{S_W}, 1
        s_cbranch_scc1 L_nost@
        ds_write_b32 v18, v25 offset:448
L_nost@:
        s_mov_b64 exec, 1
        ds_add_u32 v26, v36 offset:36
        s_mov_b64 exec, -1
        """
        a(xdma.replace("@", ""))
        x4 = lambda s, e: f"global_load_dwordx4 {vr(RAW+32*s+4*e,4)}, v19, s[{12+4*s+2*(e>>2)}:{13+4*s+2*(e>>2)}] offset:{1152*(e&3)}"
        loads = [x4(0, e) for e in range(8)] + [f"global_load_dwordx4 {vr(EXR+4*s,4)}, v20, s[{12+4*s}:{13+4*s}] offset:1024" for s in range(2)] + [x4(1, e) for e in range(8)]
        NB = self.o("nb", 4)
        ver = ["v_readlane_b32 s10, v13, 7", "s_mov_b32 s11, 0", "s_lshl_b32 s10, s10, 5"]
        for k in range(8): ver += [f"v_cmp_le_u32 vcc, s10, v{KY+k}", "s_bcnt1_i32_b64 s56, vcc", "s_add_u32 s11, s11, s56"]
        ver += ["s_lshl_b32 s11, s11, 16", "s_or_b32 s11, s11, 4", "v_mov_b32 v36, s11"]
        for l in loads[:NB]:
            a(l)
            for _ in range(6):
                if ver: a(ver.pop(0))
        while ver: a(ver.pop(0))
        a(f"s_waitcnt vmcnt({NB})")
        a(xflag.replace("@", ""))
        self.stamp(6)
        for l in loads[NB:]: a(l)
        a(spin("L_s4", 36, 16))
        a(f"""
        s_cmp_eq_u32 s61, 0x80010
        s_cbranch_scc0 L_slow
L_dgo:
        """)
        for s in range(2):
            for d in range(4):
                a(f"s_waitcnt vmcnt({17 - (10*s + 2*d + 1)})")
                if s == 1 and d == 0:
                    for k in range(2):
                        a(f"""ds_write_b128 v236, {vr(EXR+4*k,4)}
                        ds_read_b64_tr_b16 {vr(EX+4*k,2)}, v237
                        ds_read_b64_tr_b16 {vr(EX+4*k+2,2)}, v237 offset:512""")
                for j in range(8):
                    a(f"v_perm_b32 v{OP+32*s+4*j+d}, v{RAW+32*s+4*(2*d+1)+(j>>1)}, v{RAW+32*s+4*(2*d)+(j>>1)}, s{66+(j&1)}")
        self.stamp(7)
        a(f"""
        s_barrier
        ds_read_b128 v[28:31], v235
        ds_read_b128 v[32:35], v235 offset:1024
        s_mov_b32 s58, 0x00ff00ff
        s_mov_b32 s59, 0x00ff00ff
        s_waitcnt lgkmcnt(0)
        """)
        self.stamp(8)
        sel = lambda c, r: f"v_bitop3_b32 v{RAW+4*r+c}, v232, v{AC+16+4*c+r}, v{AC+4*c+r} bitop3:0xca"
        fill = []
        for n, j in enumerate((8, 0, 4, 1, 5, 2, 6, 3, 7)):
            A = lambda s: vr(OP + 32 * s + 4 * j, 4) if j < 8 else vr(EX + 4 * s, 4)
            for s in range(2):
                a(f"v_mfma_f32_16x16x32_bf16 {vr(AC+4*j,4)}, {A(s)}, {'v[28:31]' if s == 0 else 'v[32:35]'}, {'0' if s == 0 else vr(AC+4*j,4)}")
                for _ in range(2):
                    if fill: a(fill.pop(0))
            if n == 4:
                a(f"""v_bitop3_b32 v{AC+32}, v234, v233, v{AC+32} bitop3:0xca
                s_mov_b64 exec, s[58:59]
                global_store_dwordx4 v8, {vr(AC+32,4)}, s[36:37] sc1
                s_mov_b64 exec, -1""")
                fill += [sel(0, r) for r in range(4)] + [f"v_bitop3_b32 v{RAW+4*r}, v234, v233, v{RAW+4*r} bitop3:0xca" for r in range(4)]
            if n == 6: fill += [sel(1, r) for r in range(4)]
        while fill: a(fill.pop(0))
        for r in range(4): a(sel(2, r))
        for r in range(4):
            a(sel(3, r))
            a(f"global_store_dwordx4 v{4+r}, {vr(RAW+4*r,4)}, s[36:37] sc1")
        self.stamp(9)
        self.dump()
        a(f"""
        s_endpgm
L_slow:
        v_mov_b32 v21, 0
        v_mov_b32 v38, v26
        s_mov_b32 s10, 16
L_slow_r:
        """)
        for k in range(8): a(f"v_sub_u32 v{AC+k}, v{KY+k}, v21")
        a(f"""
        v_max3_u32 v24, v{AC}, v{AC+1}, v{AC+2}
        v_max3_u32 v24, v24, v{AC+3}, v{AC+4}
        v_max3_u32 v24, v24, v{AC+5}, v{AC+6}
        v_max_u32 v24, v24, v{AC+7}
        ds_max_u32 v38, v24 offset:96
        s_mov_b64 exec, 1
        ds_add_u32 v26, v27 offset:40
        s_mov_b64 exec, -1
L_slow_s:
        ds_read_b32 v24, v26 offset:40
        ds_read_b32 v39, v38 offset:96
        s_waitcnt lgkmcnt(0)
        v_readfirstlane_b32 s11, v24
        s_cmp_ge_u32 s11, s10
        s_cbranch_scc1 L_slow_ok
        s_sub_u32 s55, s55, 1
        s_cbranch_scc0 L_slow_s
L_slow_ok:
        v_add_u32 v21, v21, v39
        v_alignbit_b32 v24, 1, v21, 5
        ds_write_b32 v38, v24 offset:64
        v_add_u32 v38, 4, v38
        s_add_u32 s10, s10, 16
        s_cmp_le_u32 s10, 128
        s_cbranch_scc1 L_slow_r
        ds_read_b32 v23, v17 offset:64
        ds_read_b32 v13, v18 offset:64
        s_add_u32 m0, s64, {F_X}
        s_waitcnt lgkmcnt(0)
        v_and_b32 v23, 0x7ff, v23
        """)
        a(xdma.replace("@", "b"))
        a("v_mov_b32 v36, 4\ns_waitcnt vmcnt(0)")
        a(xflag.replace("@", "b"))
        a("s_branch L_dgo")
        XS, GO, UO = 40, 112, 184
        N1 = self.o("n1", 9); THR = self.o("thr", 0)
        def dma(lab, n, thr):
            a(f"""s_movk_i32 s55, {n}
{lab}:
            s_mov_b32 m0, s53
            s_add_u32 s42, s53, 73728
            global_load_lds_dwordx4 v76, s[26:27]
            s_mov_b32 m0, s42
            s_add_u32 s53, s53, 4096
            global_load_lds_dwordx4 v76, s[28:29]
            v_add_u32 v76, {32*9216}, v76
            {"s_waitcnt vmcnt(%d)" % thr if thr else ""}
            s_sub_u32 s55, s55, 1
            s_cmp_lg_u32 s55, 0
            s_cbranch_scc1 {lab}""")
        a(f"L_gu:\ns_add_u32 s53, s53, {4096*self.R1}")
        dma("L_dma1", self.P1, 0)
        a(f"""
        v_min_u32 v12, 8, v2
        v_mul_u32_u24 v12, {XSTR}, v12
        v_add_u32 v12, {F_X + 1024}, v12
        v_mov_b32 v20, 0x3f803f80
        v_mov_b32 v21, v20
        v_mov_b32 v22, v20
        v_mov_b32 v23, v20
        ds_write_b128 v12, v[20:23]
        v_bfe_u32 v15, v0, 2, 2
        v_and_b32 v16, 3, v0
        v_lshl_add_u32 v17, v14, 3, v15
        v_bfe_u32 v18, v0, 3, 2
        v_xor_b32 v18, s51, v18
        v_lshlrev_b32 v18, 5, v18
        v_lshl_add_u32 v18, v16, 3, v18
        v_lshl_add_u32 v4, v17, 7, v18
        v_add_u32 v5, 36864, v4
        v_add_u32 v6, 73728, v4
        v_add_u32 v7, {73728+36864}, v4
        """)
        addr = f"""v_and_b32 v19, 6, v11
        v_xor_b32 v19, v19, v14
        v_lshlrev_b32 v19, 4, v19
        v_lshl_add_u32 v19, v11, 7, v19
        v_xor_b32 v20, 64, v19
        v_bfe_i32 v21, v0, 3, 1
        v_mov_b32 v22, 1024
        v_bfi_b32 v19, v21, v22, v19
        v_bfi_b32 v20, v21, v22, v20
        v_add_u32 v19, {F_X}, v19
        v_add_u32 v20, {F_X}, v20
        v_lshl_add_u32 v18, v11, 2, v26
        s_lshr_b32 s42, s51, 1
        s_lshl_b32 s42, s42, 10
        s_and_b32 s43, s51, 1
        s_lshl_b32 s43, s43, 3
        s_add_u32 s42, s42, s43
        s_add_u32 s42, s42, {F_H}
        v_add_u32 v27, s42, v3
        v_and_b32 v8, {PSTR}, v21
        v_lshl_add_u32 v8, v11, 4, v8
        s_mul_i32 s42, s50, {2*PSTR}
        s_add_u32 s42, s42, {PARTS + 72*128}
        v_add_u32 v8, s42, v8""".split("\n")
        for t in addr: a(t)
        def trs(lo, hi):
            for s in range(lo, hi):
                for m, base in ((0, GO), (1, UO)):
                    for e in range(2):
                        a(f"ds_read_b64_tr_b16 {vr(base+4*s+2*e,2)}, v{4+2*m+s//9} offset:{4096*(s%9)+512*e}")
        S1 = self.R1 + self.P1
        a("s_waitcnt vmcnt(0)")
        self.stamp(10)
        a("s_barrier")
        if self.o("bq", 0):
            trs(0, S1)
            a("s_waitcnt lgkmcnt(0)\ns_barrier\ns_barrier")
            dma("L_dma2", 18 - S1, THR)
        else:
            a("s_barrier")
            dma("L_dma2", 18 - S1, THR)
            trs(0, S1)
        self.stamp(4)
        a(f"""s_mov_b32 s55, {SPIN*64}
        v_mov_b32 v23, 4
        s_waitcnt vmcnt(0)
        s_mov_b64 exec, 1
        ds_add_u32 v26, v23 offset:44
        s_mov_b64 exec, -1""")
        a(spin("L_s5", 44, 16))
        self.stamp(5)
        trs(S1, 18)
        self.stamp(6)
        a(spin("L_s6", 36, 16))
        a("s_cmp_eq_u32 s61, 0x80010\ns_cbranch_scc1 L_s7_ok")
        a(spin("L_s7", 36, 32))
        self.stamp(11)
        fill1 = ["v_and_b32 v7, 0xffff0000, v25", "v_rcp_f32 v26, v7", "v_lshlrev_b32 v6, 16, v25", "v_xor_b32 v25, 0x80000000, v6"]
        fill2 = []
        for r in range(28, 32): fill2.append(f"v_fmac_f32_dpp v{r}, v{r}, v25 row_newbcast:8 row_mask:0xf bank_mask:0xf")
        for r in range(4): fill2.append(f"v_mul_f32 v{36+r}, v9, v{28+r}")
        for r in range(4): fill2.append(f"v_exp_f32 v{36+r}, v{36+r}")
        for r in range(28, 32): fill2.append(f"v_mul_f32 v{r}, v{r}, v10")
        for r in range(4): fill2.append(f"v_add_f32 v{36+r}, 1.0, v{36+r}")
        for r in range(4): fill2.append(f"v_rcp_f32 v{36+r}, v{36+r}")
        for r in range(4): fill2.append(f"v_mul_f32 v{28+r}, v{28+r}, v{36+r}")
        fill1 += [f"v_mul_f32 v9, {f2u(-LOG2E)}, v26", "v_mul_f32 v10, v26, v26"]
        rdx = lambda s: a(f"ds_read_b128 {vr(XS+4*s,4)}, v{19+(s&1)} offset:{XSTR*(s>>1)}")
        I = 5
        order = [(m, s) for s in range(I) for m in (0, 1)] + [(0, s) for s in range(I, 18)] + [(1, s) for s in range(I, 18)]
        nrd = 6
        for s in range(nrd): rdx(s)
        done = 0
        for n, (m, s) in enumerate(order):
            if s >= done:
                done = min(18, s + (1 if n == 0 else 2 if n < 2 * I else 4))
                a(f"s_waitcnt lgkmcnt({nrd - done})")
            acc = "v[28:31]" if m == 0 else "v[32:35]"
            a(f"v_mfma_f32_16x16x32_bf16 {acc}, {vr((GO, UO)[m]+4*s,4)}, {vr(XS+4*s,4)}, {'0' if s==0 else acc}")
            if nrd < 18: rdx(nrd); nrd += 1
            elif nrd == 18: a("ds_read_b32 v25, v18 offset:448"); nrd += 1
            elif nrd == 19: a("ds_read_b32 v13, v18 offset:64"); nrd += 1
            elif n == 20: a("s_waitcnt lgkmcnt(0)")
            elif n > 20 and fill1: a(fill1.pop(0))
            elif n >= 27:
                for _ in range(2):
                    if fill2: a(fill2.pop(0))
        assert not fill1
        self.stamp(7)
        while fill2: a(fill2.pop(0))
        for r in range(32, 36): a(f"v_fmac_f32_dpp v{r}, v{r}, v25 row_newbcast:8 row_mask:0xf bank_mask:0xf")
        for r in range(4): a(f"v_mul_f32 v{28+r}, v{28+r}, v{32+r}")
        a(f"""
        v_cvt_pk_bf16_f32 v28, v28, v29
        v_cvt_pk_bf16_f32 v29, v30, v31
        ds_write_b64 v27, v[28:29]
        s_waitcnt lgkmcnt(0)
        """)
        self.stamp(8)
        a(f"""
        s_barrier
        s_cmp_lg_u32 s{S_W}, 4
        s_cbranch_scc1 L_gu_end
        v_lshlrev_b32 v36, 5, v13
        v_not_b32 v37, v36
        v_ashrrev_i32 v38, 31, v37
        v_or_b32 v38, 0x80000000, v38
        v_xor_b32 v36, v36, v38
        v_and_b32 v36, 0xffff0000, v36
        v_mul_f32 v36, {f2u(-LOG2E)}, v36
        v_exp_f32 v36, v36
        v_bfe_u32 v4, v37, 5, 11
        v_add_f32 v36, 1.0, v36
        v_rcp_f32 v5, v36
        v_lshl_or_b32 v4, v4, 8, s{S_T8}
        s_mov_b64 exec, 0xffff
        global_store_dwordx4 v8, v[4:7], s[36:37] sc1
        s_cmp_lg_u32 s50, 0
        s_cbranch_scc1 L_gu_end
        v_mov_b32 v9, {EPOCH}
        v_mov_b32 v10, s38
        s_mov_b64 exec, 1
        global_store_dword v9, v10, s[36:37]
L_gu_end:
        """)
        self.dump()
        a("s_endpgm")

    def conv(self):
        a = self.a
        BAND, ST = 40, 224
        T64 = self.o("tile64", 1)
        a(f"""
L_conv:
        s_cmp_eq_u32 s52, 0
        s_cbranch_scc1 L_cprio
        s_setprio {self.o("pt", 1)}
L_cprio:
        s_lshl_b32 s42, s52, 8
        s_add_u32 m0, s55, s42
        s_waitcnt vmcnt(2)
        s_lshr_b32 s43, s{S_W}, 1
        {"s_cmp_lg_u32 s43, 1" if self.o("e1", 0) else "s_cmp_lt_u32 s51, 2"}
        s_cbranch_scc1 L_cw
        s_waitcnt vmcnt(1)
L_cw:
        v_lshlrev_b32 v70, 16, v70
        v_mul_f32 v70, {f2u(LOG2E)}, v70
        v_exp_f32 v70, v70
        """)
        for r in range(64, 70): a(f"v_lshlrev_b32 v{r}, 16, v{r}")
        a(f"""
        v_cvt_pk_bf16_f32 v70, v70, v70
        v_and_b32 v70, 0xffff0000, v70
        v_mul_f32 v64, v70, v64
        v_mul_f32 v65, v70, v65
        v_mul_f32 v70, {f2u(1024.0)}, v70
        v_mul_f32 v64, {f2u(LOG2E)}, v64
        v_mul_f32 v65, {f2u(INV2PI)}, v65
        v_mul_f32 v66, v70, v66
        v_mul_f32 v67, v70, v67
        """)
        def touch(cond, lab):
            return f"""{cond}
            s_cbranch_scc0 {lab}
            global_load_dword v1, v76, s[56:57]
{lab}:"""
        T2 = f"s_cmp_eq_u32 s47, 9\ns_cbranch_scc0 L_ct2\nv_add_u32 v76, {352*9216}, v76\nglobal_load_dword v1, v76, s[56:57]\nL_ct2:"
        if not self.o("e1", 0): a(touch("s_cmp_eq_u32 s48, 1", "L_ct1"))
        T3 = touch(f"s_cmp_lt_u32 s{S_W}, {self.o('n3', 2)}", "L_ct3"); self.T3 = T3
        t2at, t3at, TA = self.o("t2at", 8), self.o("t3at", 32), self.o("tile_at", 28)
        if t2at == 0: a(T2)
        E = ((22, 1.0, True), (24, 16.0, False), (26, 512.0, True))
        for k, (d, e, cj) in enumerate(E):
            if k: a(f"v_mul_f32 v{12+k}, {f2u(e)}, v64\nv_mul_f32 v{16+k}, {f2u(e)}, v65")
        for k, (d, e, cj) in enumerate(E): a(f"v_exp_f32 v{12+k}, v{12+k if k else 64}\nv_fract_f32 v{16+k}, v{16+k if k else 65}")
        a("""v_pk_mul_f32 v[20:21], v[68:69], v[66:67] op_sel:[0,0] op_sel_hi:[0,1] neg_hi:[0,1]
        v_pk_fma_f32 v[90:91], v[68:69], v[66:67], v[20:21] op_sel:[1,1,0] op_sel_hi:[1,0,1] neg_lo:[0,1,0] neg_hi:[0,1,0]""")
        for k, (d, e, cj) in enumerate(E): a(f"v_cos_f32 v{d}, v{16+k}\nv_sin_f32 v{d+1}, v{16+k}")
        a("v_mov_b32 v34, 0x3f80\nds_write_addtid_b32 v34")
        for k, (d, e, cj) in enumerate(E):
            a(f"v_mul_f32 v{d}, v{12+k}, v{d}\nv_mul_f32 v{d+1}, {'-' if cj else ''}v{12+k}, v{d+1}")
        H = lambda e: 90 + 2 * e
        gops = []
        for e in range(1, 17): gops.append((H(e), H(e - 1), 22, [32 + e]))
        for k, e in enumerate((0, 4, 8, 12, 16)):
            gops.append((H(e), H(e), 26, ([49 + 4 * k] if k < 4 else []) + ([46 + 4 * k] if k > 0 else [])))
        for k, e in enumerate((8, 16)): gops.append((H(e), H(e), 26, [51 + 4 * k]))
        for k, e in enumerate((8, 16)): gops.append((H(e), H(e), 26, [59 + 4 * k]))
        a(f"""v_cvt_pk_bf16_f32 v35, v90, v91
        ds_write_addtid_b32 v35 offset:{32*ROW}
        v_cvt_pk_bf16_f32 v36, v24, v25
        ds_write_addtid_b32 v36 offset:{ROW}""")
        self.tile_ld = [f"global_load_dwordx4 {vr(40+4*k,4)}, v6, s[{12+2*k}:{13+2*k}] sc1" for k in range(4)]
        self.stat_ld = [f"global_load_dwordx4 {vr(ST+4*k,4)}, v{(4, 7)[k>>1]}, s[36:37] offset:{-4096 if k%2==0 else 0} sc1" for k in range(4)]
        def hp_only(n, txt):
            return f"s_cmp_eq_u32 s52, 0\ns_cbranch_scc1 L_hp{n}\n{txt}\nL_hp{n}:"
        ins = {TA: hp_only(0, f"""v_bfe_u32 v12, v0, 2, 6
                v_and_b32 v6, 0x30, v3
                v_lshl_add_u32 v6, v12, {6 if T64 else 7}, v6
                {self.tile_ld[0]}
                {self.tile_ld[1]}"""),
               TA + 3: hp_only(1, self.tile_ld[2] + "\n" + self.tile_ld[3])}
        salu = []
        for k in range(4):
            salu += [f"s_bfe_u32 s43, s{S_TT}, {(2<<16) | (2*k)}", "s_mul_i32 s43, s43, 0x20004000", f"s_and_b32 s{4+k}, s43, 0x40004000"]
        salu += ["s_sub_u32 s8, s52, 1", "s_lshl_b32 s9, s52, 2", "s_and_b32 s10, s8, 2056", "s_add_u32 s10, s10, 54", "s_add_u32 s10, s10, s62",
                 "s_lshl_b32 s11, s52, 6", "s_sub_u32 s11, s62, s11", f"s_add_u32 s11, s11, {K8 + 254}",
                 ] + (["s_lshl_b32 s42, s50, 14"] if T64 else ["s_lshr_b32 s42, s50, 1", "s_lshl_b32 s42, s42, 15", "s_and_b32 s43, s50, 1", "s_lshl_b32 s43, s43, 6", "s_add_u32 s42, s42, s43"]) + [f"s_add_u32 s42, s42, {TILE}",
                 "s_add_u32 s12, s36, s42\ns_addc_u32 s13, s37, 0"]
        for k in range(1, 4): salu.append(f"s_add_u32 s{12+2*k}, s12, {(4096 if T64 else 8192)*k}\ns_addc_u32 s{13+2*k}, s13, 0")
        dup = []
        for i in range(2, 32):
            t = 34 + (i & 1) * 2
            cmul(a, 28, 24 if i == 2 else 28, 24, 30)
            a(f"v_cvt_pk_bf16_f32 v{t}, v28, v29")
            if salu: a(salu.pop(0))
            a(f"ds_write_addtid_b32 v{t} offset:{i*ROW}")
            if i - 2 < len(gops):
                d, s, z, rows = gops[i - 2]
                cmul(a, d, s, z, 32)
                tg = t + 1 if len(rows) == 1 else 12 + 1 + len(dup)
                a(f"v_cvt_pk_bf16_f32 v{tg}, v{d}, v{d+1}")
                if salu: a(salu.pop(0))
                a(f"ds_write_addtid_b32 v{tg} offset:{rows[0]*ROW}")
                if len(rows) > 1: dup.append(f"ds_write_addtid_b32 v{tg} offset:{rows[1]*ROW}")
            if i == 31:
                for t in dup: a(t)
            if i in ins:
                assert not salu
                a(ins[i])
            if i == t2at: a(T2)
            if i == t3at: a(T3)
        self.stamp(4)
        band = f"""v_lshlrev_b32 v5, 3, v9
        v_mov_b32 v6, {0x7f << 5}
        v_lshlrev_b32 v6, v8, v6
        v_bfe_u32 v6, v6, v5, 8
        v_lshl_or_b32 v6, v6, 15, v6""".split("\n")
        for j in range(4): band += [f"v_and_b32 v{BAND+j}, {0x10001 << (2*j)}, v6", f"v_mul_u32_u24 v{BAND+j}, {0x3f80 >> (2*j)}, v{BAND+j}"]
        band += [f"v_mov_b32 v6, {0x1ff << 4}", "v_lshlrev_b32 v6, v8, v6", "v_bfe_u32 v6, v6, v5, 8", "v_lshl_or_b32 v6, v6, 15, v6"]
        for j in range(4): band += [f"v_and_b32 v{BAND+4+j}, {0x10001 << (2*j)}, v6", f"v_mul_u32_u24 v{BAND+4+j}, {0x3f80 >> (2*j)}, v{BAND+4+j}"]
        self.band = band
        a("s_waitcnt lgkmcnt(0)\ns_barrier")
        self.stamp(11)
        fill = f"""v_add_u32 v14, 1, v9
        v_and_b32 v14, 6, v14
        v_add_u32 v14, v14, v14
        v_sub_u32 v14, 2112, v14
        v_and_b32 v14, s8, v14
        v_lshl_add_u32 v17, v8, 2, s62
        v_mul_u32_u24 v18, {KS}, v9
        v_add3_u32 v14, v14, v18, v17
        v_min_u32 v15, s9, v8
        v_sub_u32 v15, v15, v9
        v_lshl_add_u32 v15, v15, 1, v18
        v_add_u32 v15, s10, v15
        v_and_b32 v18, 32, v0
        v_add_u32 v18, v18, v8
        v_bfe_i32 v19, v0, 4, 1
        v_add_u32 v18, v18, v18
        v_sub_u32 v18, v19, v18
        v_lshl_add_u32 v18, v18, 1, s11""".split("\n")
        self.kfill = fill
        a("s_cmp_eq_u32 s52, 0\ns_cbranch_scc0 L_helper")
        self.mfma_waves()
        self.helper()

    def kg(self, extra, tail, h):
        a = self.a
        fill = extra + self.kfill if h else self.kfill + extra
        per = (len(fill) - 8 + 3) // 4 if tail else (len(fill) - 8 + 6) // 7
        def F(n):
            for _ in range(n):
                if fill: a(fill.pop(0))
        for s in range(8):
            a(f"""ds_read_b128 {vr(128+4*s,4)}, v79 offset:{16*s}
            ds_read_b128 {vr(160+4*s,4)}, v78 offset:{32*ROW+16*s}
            ds_read_b128 {vr(192+4*s,4)}, v80 offset:{48*ROW+16*s}""")
            if s == 3: F(8)
            if s >= 4: self.kg_mfma(s - 4, 12); F(per)
        n = 0
        for s in range(4, 8):
            if tail:
                a(tail[s - 4]); n += 1
            self.kg_mfma(s, 3 * (7 - s) + n)
            if s < 7: F(per)
        assert not fill
        a("s_barrier")
        self.stamp(5)
        a(f"""
        ds_write_b32 v14, v84
        ds_write_b32 v17, v84 offset:{K8+256}
        """)
        if h:
            a("""v_readlane_b32 s42, v26, 63
            v_bitop3_b32 v19, v19, v26, v25 bitop3:0xca
            v_cvt_pk_bf16_f32 v28, v24, v22
            v_cvt_pk_bf16_f32 v29, v20, v20""")
        else:
            a("""v_add_f32 v20, v20, v71
            v_bitop3_b32 v19, v19, v26, v25 bitop3:0xca
            v_readlane_b32 s42, v20, 0
            v_cvt_pk_bf16_f32 v28, v23, v22
            v_cvt_pk_bf16_f32 v29, v21, v20""")

    def copies(self, extra, h):
        a = self.a
        pend = [f"v_cvt_pk_bf16_f32 v30, v24, v{24 if h else 23}", f"v_cvt_pk_bf16_f32 v31, v22, v{20 if h else 21}", "v_cvt_pk_bf16_f32 v32, v26, v19", "v_cvt_pk_bf16_f32 v33, v25, v25",
                "v_cvt_pk_bf16_f32 v34, v26, v26", "v_cvt_pk_bf16_f32 v35, v19, v25", "v_cvt_pk_bf16_f32 v27, v27, s42"] + extra
        n = 0
        for t in range(2):
            for par in range(2):
                for ad in (81, 82):
                    for k in range(2):
                        a(f"ds_write_b32 v{ad}, v{28+4*t+2*par+k} offset:{1024*(1-t) + par*(KS-4) + 4*k}")
                        n += 1
                        for _ in range(1 if n <= 7 else 3):
                            if pend: a(pend.pop(0))
        a("ds_write_b16_d16_hi v15, v27\nds_write_b16 v18, v27")
        while pend: a(pend.pop(0))

    def kg_mfma(self, s, cnt):
        a = self.a
        a(f"s_waitcnt lgkmcnt({cnt})")
        a(f"v_mfma_f32_16x16x32_bf16 v[20:23], {vr(160+4*s,4)}, {vr(128+4*s,4)}, {'0' if s==0 else 'v[20:23]'}")
        a(f"v_mfma_f32_16x16x32_bf16 v[24:27], {vr(192+4*s,4)}, {vr(128+4*s,4)}, {'0' if s==0 else 'v[24:27]'}")

    def mfma_waves(self):
        a = self.a
        KR = lambda i, j: 128 + 32 * i + 4 * j
        K32, TT, BAND, VP = 12, 16, 40, 92
        ACC = lambda g: (80, 84, 32, 36, 48, 52, 56, 60)[g]
        URING = [64, 68, 72, 76, 108, 112, 116, 120, 124]
        VFT = lambda tau: (80, 32)[tau & 1]
        addr = f"""v_and_b32 v10, 3, v8
        v_mul_u32_u24 v10, {KS - 2}, v10
        v_lshl_add_u32 v11, v8, 1, v9
        v_mul_u32_u24 v4, 17, v9
        v_sub_u32 v4, v4, v11
        s_add_u32 s43, s62, {24 + 3*KS}
        v_sub_u32 v10, v4, v10
        v_add_u32 v10, s43, v10
        v_lshl_add_u32 v11, v11, 4, s63
        v_lshlrev_b32 v7, 5, v8
        v_lshl_add_u32 v7, v9, 3, v7
        s_lshl_b32 s43, s51, 12
        s_add_u32 s43, s43, {YBASE}
        v_add_u32 v7, s43, v7
        v_lshlrev_b32 v4, 2, v9
        v_sub_u32 v4, v4, v8
        s_add_u32 s43, s62, {K8 + 60}
        v_lshl_add_u32 v4, v4, 2, s43
        s_lshl_b32 s43, s51, 2
        s_add_u32 s43, s43, {CFL}
        v_mov_b32 v88, s43""".split("\n")
        ds = f"""v_add_u32 v72, -1, v2
        v_lshlrev_b32 v71, 16, v71
        v_and_b32 v71, v71, v72
        v_mul_f32 v71, {f2u(1024.0)}, v71""".split("\n")
        self.kg(ds + ([self.T3] if self.o("t3at", 32) == 32 else []) + addr, None, 0)
        self.copies(self.band, 0)
        self.stamp(12)
        if self.o("t3at", 32) == 33: a(self.T3)
        a(f"s_waitcnt lgkmcnt(0)\ns_barrier\ns_setprio {self.o('pm', 1)}")
        self.stamp(7)
        ops = []; first = set()
        def mm(accreg, A, B, fresh=False):
            c0 = fresh or accreg not in first; first.add(accreg)
            ops.append(("m", accreg, A, B, c0))
        U = lambda nu, ph: ("U", nu, ph)
        def cls(g0, j):
            n = 0
            for ip in range(max(0, g0 - 3), g0 + 2):
                for g in (g0, g0 + 1):
                    i = g - ip
                    if 0 <= i <= 3:
                        mm(ACC(g), ("K", i, j), U(8 * ip - j, g0)); n += 1
                        if j == 0 and g0 > 0 and n in (3, 4): ops.append(("y", g0 - 2 + (n == 4)))
            if j == 0 and g0 > 0: ops.append(("flag",))
        def vgen(tau):
            mm(VFT(tau), U(8 * tau, 9), ("R", BAND), True); mm(ACC(4 + tau), ("K32",), U(8 * tau, 9))
            mm(VFT(tau) + 4, ("US", 8 * tau), ("R", BAND + 4), True)
        def win(g, tau): mm(ACC(g), ("R", VP + 4 * tau), ("T", g - tau))
        for j in range(8): cls(0, j)
        for j in range(8): cls(2, j)
        cls(4, 0); cls(4, 1); vgen(0); vgen(1)
        cls(4, 2); ops.append(("cvtV", 0))
        cls(4, 3); ops.append(("cvtV", 1))
        cls(4, 4); win(4, 0); win(5, 1); win(5, 0)
        for j in range(5, 8): cls(4, j)
        cls(6, 0); vgen(2); vgen(3)
        cls(6, 1); ops.append(("cvtV", 2)); win(6, 1); win(7, 1)
        cls(6, 2); ops.append(("cvtV", 3)); win(6, 0); win(7, 0)
        cls(6, 3); win(6, 2); win(7, 3); win(7, 2)
        for j in range(4, 8): cls(6, j)
        ops.append(("y", 6)); ops.append(("y", 7)); ops.append(("flag",))
        assert sum(o[0] == "m" for o in ops) == 230
        need = []; seen = set(); last = {}
        for k, o in enumerate(ops):
            if o[0] == "m":
                for x in (o[2], o[3]):
                    last[x] = k
                    if x[0] != "R" and x not in seen:
                        seen.add(x)
                        if x[0] in ("U", "US"): need.append((x, k, 1))
                        else: need += [(x, k, 0), (x, k, 1)]
        reg = {}; free = list(URING); q = []
        def issue(x, hf):
            if x[0] in ("U", "US"):
                r = free.pop(0)
                off = 16 * (28 + 4 * x[1]) - (16 if x[0] == "US" else 0)
                a(f"ds_read_b128 {vr(r,4)}, v11 offset:{off}")
            elif x[0] in ("K", "K32"):
                r = KR(x[1], x[2]) if x[0] == "K" else K32
                mu = x[2] + 8 * x[1] if x[0] == "K" else 32
                a(f"ds_read_b64 {vr(r+2*hf,2)}, v10 offset:{64*(32-mu)+8*hf}")
            else:
                r = TT + 4 * (x[1] - 4); o = 16 * (7 - x[1]) + 2 * hf
                a(f"ds_read2_b32 {vr(r+2*hf,2)}, v4 offset0:{o} offset1:{o+1}")
            if hf: reg[x] = r
            q.append(x if hf else None)
        def wait_for(keys):
            nonlocal q
            pos = max([k for k, o in enumerate(q) if o in keys], default=-1)
            if pos >= 0:
                a(f"s_waitcnt lgkmcnt({min(15, len(q)-1-pos)})"); q = q[pos + 1:]
        AHEAD = self.o("ahead", 14); WG = self.o("wgrp", 4); URG = self.o("urg", 9)
        nfl = 0; side = []
        for k, o in enumerate(ops):
            if o[0] == "y":
                r = ACC(o[1])
                side += [f"v_cvt_pk_bf16_f32 v{r}, v{r}, v{r+1}", f"v_cvt_pk_bf16_f32 v{r+1}, v{r+2}, v{r+3}", f"ds_write_b64 v7, {vr(r,2)} offset:{512*o[1]}"]
                continue
            if o[0] == "flag":
                nfl += 1
                side += [f"ds_write_b32 v88, v88 offset:{16*(nfl-1)}\n" + (self.fs(nfl, "barstamp") if nfl <= 3 else "")]
                continue
            if o[0] == "cvtV":
                side += [f"v_cvt_pk_bf16_f32 v{VP+4*o[1]+r}, v{VFT(o[1])+4+r}, v{VFT(o[1])+r}" for r in range(4)]
                continue
            if o[2][0] == "R" or o[3][0] == "R":
                if o[2][0] == "R" and any(f"v{o[2][1]}," in t or f"v{o[2][1]+3}," in t for t in side) or o[3][0] == "R" and side:
                    for t in side:
                        a(t)
                        if "ds_" in t: q.append(None)
                    side = []
            n = 0
            ok = lambda: need and (free or need[0][0][0] not in ("U", "US")) and len(q) < 15
            while ok() and need[0][1] <= k + AHEAD and (k == 0 and n < 14 or n < 1 or (need[0][1] <= k + URG and n < 2) or need[0][1] <= k):
                x = need.pop(0); issue(x[0], x[2]); n += 1
            assert all(x[0] == "R" or x in reg for x in (o[2], o[3])), (k, o)
            if any(x in q for x in (o[2], o[3])):
                keys = []
                for oo in ops[k:k + (WG if k > 0 else 1)]:
                    if oo[0] == "m": keys += [oo[2], oo[3]]
                wait_for(keys); n += 1
            if side: n = min(n, 1)
            while side and n < 2:
                t = side.pop(0); a(t); n += 1
                if "ds_" in t: q.append(None)
            R = lambda x: vr(x[1] if x[0] == "R" else reg[x], 4)
            a(f"v_mfma_f32_16x16x32_bf16 {vr(o[1],4)}, {R(o[2])}, {R(o[3])}, {'0' if o[4] else vr(o[1],4)}")
            for x in (o[2], o[3]):
                if x[0] in ("U", "US") and last[x] == k: free.append(reg[x])
        for t in side: a(t)
        self.stamp(8)
        a(f"""
        s_cmp_lg_u32 s{S_W}, 0
        s_cbranch_scc1 L_mw_end
        s_mul_i32 s42, s50, {PSTR}
        s_add_u32 s42, s42, {PARTS + 4096}
        v_add_u32 v18, s42, v3
        v_add_u32 v20, 4096, v18
        v_and_b32 v21, 0x70, v3
        s_add_u32 s42, s42, {72*128 - 4096}
        v_add_u32 v21, s42, v21
        s_movk_i32 s61, {SPIN}
        v_lshl_add_u32 v24, v9, 1, s54
        v_mov_b32 v35, s{S_T8}
        {"s_barrier" if self.o("pollafter", 0) else ""}
L_part_poll:
        global_load_dwordx4 v[164:167], v21, s[36:37] sc1
        """)
        for k in range(9):
            a(f"global_load_dwordx4 {vr(128+4*k,4)}, v{18 if k < 8 else 20}, s[36:37] offset:{1024*k-4096 if k < 8 else 0} sc1")
        a(f"""v_mul_u32_u24 v26, {UCH}, v9
        v_add_u32 v26, {UBASE+UPAD}, v26
        v_lshlrev_b32 v27, 12, v9
        s_waitcnt vmcnt(9)
        v_bfe_u32 v28, v164, 8, 11
        v_lshl_add_u32 v29, v28, 1, v26
        v_lshl_add_u32 v30, v28, 1, v27
        ds_read_b128 v[36:39], v88 offset:48
        ds_read_u16_d16_hi v31, v29
        ds_read_u16_d16_hi v32, v30 offset:{YBASE}
        v_mul_u32_u24 v28, 1152, v28
        v_add_u32 v28, v28, v24
        v_xor_b32 v22, v35, v164
        s_waitcnt vmcnt(8)
        v_xor_b32 v128, v35, v128
        v_or_b32 v22, v22, v128
        """)
        for k in range(1, 9):
            a(f"""s_waitcnt vmcnt({8-k})
            v_xor_b32 v{128+4*k}, v35, v{128+4*k}
            v_pk_add_f32 v[130:131], v[130:131], {vr(130+4*k,2)}
            v_pk_add_f32 v[128:129], v[128:129], {vr(128+4*k,2)}""")
            if k % 2 == 0: a(f"v_bitop3_b32 v22, v22, v{124+4*k}, v{128+4*k} bitop3:0xfe")
        a(f"""
        s_waitcnt lgkmcnt(0)
        v_bitop3_b32 v36, v37, v38, v39 bitop3:0x7f
        v_and_b32 v36, {CFL & 0xf0}, v36
        v_or_b32 v22, v22, v36
        v_and_b32 v22, 0xff, v22
        v_cmp_ne_u32 vcc, 0, v22
        v_permlane32_swap_b32 v128, v130
        s_sub_u32 s61, s61, 1
        s_cselect_b64 vcc, 0, vcc
        s_cbranch_vccnz L_part_poll
        """)
        self.stamp(9)
        a(f"""
        v_permlane32_swap_b32 v129, v131
        v_add_f32 v128, v128, v130
        v_add_f32 v129, v129, v131
        v_and_b32 v31, 0xffff0000, v31
        v_and_b32 v32, 0xffff0000, v32
        v_permlane16_swap_b32 v128, v129
        v_add_f32 v128, v128, v129
        v_mul_f32 v31, {f2u(32.0)}, v31
        v_mul_f32 v32, {f2u(1/32)}, v32
        v_add_f32_dpp v128, v128, v128 row_ror:8 row_mask:0xf bank_mask:0xf
        v_fma_f32 v128, v128, v165, v31
        v_mul_f32 v33, {f2u(-LOG2E)}, v128
        v_exp_f32 v33, v33
        v_fma_f32 v34, v31, v167, v166
        v_add_f32 v33, 1.0, v33
        v_rcp_f32 v33, v33
        v_mul_f32 v128, v128, v32
        v_fmac_f32 v34, v128, v33
        v_cvt_pk_bf16_f32 v34, v34, v34
        {"" if self.o("pollafter", 0) else "s_barrier"}
        global_store_short v28, v34, s[32:33]
        """)
        self.stamp(10)
        a("L_mw_end:")
        self.dump()
        a("s_endpgm")

    def helper(self):
        a = self.a
        ST = 224
        a("L_helper:")
        st0 = f"""v_and_b32 v62, 255, v0
        v_lshlrev_b32 v4, 4, v62
        v_add_u32 v4, {STATS + 4096}, v4
        v_add_u32 v7, 8192, v4""".split("\n") + self.stat_ld
        pre0 = f"""v_and_b32 v5, 3, v0
        v_mul_u32_u24 v5, {UCH}, v5
        v_lshl_add_u32 v5, v12, 4, v5
        v_add_u32 v5, {UBASE+UPAD}, v5
        v_mov_b32 v56, s4
        v_mov_b32 v57, s5
        v_mov_b32 v58, s6
        v_mov_b32 v59, s7
        v_mov_b32 v63, 0x40004000
        v_and_b32 v88, 3, v0
        v_lshlrev_b32 v88, 2, v88
        v_add_u32 v88, {CFL}, v88
        s_movk_i32 s61, {SPIN}
        v_lshlrev_b32 v37, 2, v62
        v_add_u32 v64, {UBASE+UPAD}, v37
        v_add_u32 v65, {UBASE+UPAD+UCH}, v37
        v_add_u32 v66, {UBASE+UPAD+2*UCH}, v37
        v_add_u32 v67, {UBASE+UPAD+3*UCH}, v37
        v_add_u32 v37, {YBASE}, v37
        v_mul_u32_u24 v36, 2304, v62
        v_add_u32 v36, s54, v36
        v_mov_b32 v8, {f2u(-32*LOG2E)}
        v_mov_b32 v9, 0xffff0000
        v_mov_b32 v10, {f2u(32.0)}
        v_lshlrev_b32 v62, 6, v62
        v_xor_b32 v62, s{S_T16}, v62""".split("\n")
        ust = ["\n".join([f"v_xor_b32 v{40+4*k+r}, v{56+r}, v{40+4*k+r}" for r in range(4)] + [f"ds_write_b128 v5, {vr(40+4*k,4)} offset:{1024*k}"]) for k in range(4)]
        chk = ["v_bitop3_b32 v38, v40, v41, v42 bitop3:0xfe"] + [f"v_bitop3_b32 v38, v38, v{r}, v{r+1} bitop3:0xfe" for r in range(43, 55, 2)]
        chk += ["v_bitop3_b32 v38, v38, v55, v63 bitop3:0xa8", "v_cmp_ne_u32 vcc, 0, v38"]
        if self.o("ulate", 1):
            self.kg(st0 + pre0[:8], None, 1)
            self.copies(pre0[8:], 1)
            a("s_waitcnt vmcnt(4)")
            for t in ust + chk: a(t)
        else:
            self.kg(st0 + pre0[:8], [f"s_waitcnt vmcnt({7-k})\n" + t for k, t in enumerate(ust)], 1)
            self.copies(pre0[8:] + chk, 1)
        self.stamp(12)
        a(f"""s_cbranch_vccz L_tile_ok
L_tile_chk:
        {chr(10).join(self.tile_ld)}
        s_waitcnt vmcnt(0)""")
        for t in ust + chk: a(t)
        a("""s_sub_u32 s61, s61, 1
        s_cselect_b64 vcc, 0, vcc
        s_cbranch_vccnz L_tile_chk
L_tile_ok:""")
        self.stamp(6)
        a(f"s_mov_b32 s61, {SPIN*64}\ns_waitcnt vmcnt(0)\nL_h_poll:\nv_mov_b32 v41, 0")
        for k in range(8):
            a(f"v_xor_b32 v42, {(0x7ff ^ (512*(k>>1)) ^ (k&1)) << 5}, v{ST+1+2*k}\nv_bitop3_b32 v41, v41, v42, v62 bitop3:0xf6")
        a(f"""v_and_b32 v41, 0xffff, v41
        v_cmp_ne_u32 vcc, 0, v41
        s_cbranch_vccz L_h_ok
        {chr(10).join(self.stat_ld)}
        s_waitcnt vmcnt(0)
        s_sub_u32 s61, s61, 64
        s_cbranch_scc0 L_h_poll
L_h_ok:
        """)
        a(f"s_setprio 2\ns_waitcnt lgkmcnt(0)\ns_barrier")
        self.stamp(7)
        B = lambda s: 96 + 32 * s
        for sp in range(2):
            for c in range(4): a(f"ds_read2st64_b32 {vr(16+8*sp+2*c,2)}, v{64+c} offset0:{8*sp} offset1:{8*sp+4}")
        RU = lambda s, c: 16 + 8 * (s >> 1) + 2 * c + (s & 1)
        def pre(s, t):
            u, g, p = B(s) + 4 * t, B(s) + 8 + 4 * t, B(s) + 24 + 2 * t
            st = ST + 4 * s + 2 * t
            for c in range(4): a(f"v_lshlrev_b32 v{u+c}, 16, v{RU(s,c)}" if t == 0 else f"v_and_b32 v{u+c}, v9, v{RU(s,c)}")
            for c in range(4): a(f"v_mul_f32 v{g+c}, v8, v{u+c}")
            for c in range(4): a(f"v_exp_f32 v{g+c}, v{g+c}")
            a(f"v_and_b32 v{p+1}, v9, v{st}")
            for c in range(4): a(f"v_add_f32 v{g+c}, 1.0, v{g+c}")
            for c in range(4): a(f"v_rcp_f32 v{g+c}, v{g+c}")
            a(f"v_lshlrev_b32 v{p}, 16, v{st}\nv_mul_f32 v{p+1}, v10, v{p+1}")
        def waitflag(s):
            lab = f"L_w{s}"
            rdy = f"""ds_read2st64_b32 v[32:33], v37 offset0:{4*s} offset1:{16+4*s}
            ds_read2st64_b32 v[34:35], v37 offset0:{32+4*s} offset1:{48+4*s}"""
            a(f"""s_setprio 2
{lab}:
            ds_read_b32 v41, v88 offset:{16*s}
            {rdy if s == 3 else ""}
            s_waitcnt lgkmcnt(0)
            v_cmp_eq_u32 vcc, 0, v41
            s_cbranch_vccz {lab}_ok
            s_sleep {1 if s == 3 else 2}
            s_sub_u32 s61, s61, 1
            s_cbranch_scc0 {lab}
{lab}_ok:""")
            if s < 3: a(rdy + "\ns_setprio 0\ns_waitcnt lgkmcnt(0)")
        def fin(s, t):
            u, g, y, p = B(s) + 4 * t, B(s) + 8 + 4 * t, B(s) + 16 + 4 * t, B(s) + 24 + 2 * t
            for c in range(4): a(f"v_lshlrev_b32 v{y+c}, 16, v{32+c}" if t == 0 else f"v_and_b32 v{y+c}, v9, v{32+c}")
            for c in range(4): a(f"v_fma_f32 v{y+c}, v{y+c}, v{g+c}, v{p+1}")
            for c in range(4): a(f"v_fma_f32 v{u+c}, v{u+c}, v{y+c}, v{p}")
            a(f"v_cvt_pk_bf16_f32 v{g}, v{u}, v{u+1}\nv_cvt_pk_bf16_f32 v{g+1}, v{u+2}, v{u+3}")
        def st(s, t):
            a(f"global_store_dwordx2 v36, {vr(B(s)+8+4*t,2)}, s[32:33] offset:{1152*t}")
            if t == 1 and s < 3: a(f"v_add_u32 v36, {512*1152}, v36")
        a("s_waitcnt lgkmcnt(4)\ns_setprio 0")
        a(self.fs(10, "barstamp"))
        todo = [(s, t) for s in range(4) for t in range(2)]
        for _ in range(self.o("hpre", 3)): pre(*todo.pop(0))
        for s in range(4):
            if s < 3: a(self.fs(s + 1, "barstamp"))
            waitflag(s)
            fin(s, 0); st(s, 0); fin(s, 1)
            if todo: pre(*todo.pop(0))
            st(s, 1)
            if todo: pre(*todo.pop(0))
        self.stamp(8)
        a("s_waitcnt vmcnt(0)")
        self.stamp(9)
        a("s_barrier")
        self.dump()
        a("L_end:\ns_endpgm")

    def post(self, t):
        if self.o("cyc", 0): t = re.sub(r"s_memrealtime s\[(7[2-9]|8\d|9[0-5]):", r"s_memtime s[\1:", t)
        if self.o("nost", 0): t = "\n".join(l for l in t.split("\n") if "global_store_dwordx2" not in l)
        if self.o("forceslow", 0): t = t.replace("0x80010", "0x90010")
        return t
    def build(self):
        self.prologue(); self.spare_pre(); self.ffn_pre(); self.conv_pre(); self.ln(); self.ffn(); self.conv()
        return HEADER + f"""; @launch grid=(256,1,1) block=(512,1,1) lds={LDSZ}
.amdgcn_target "amdgcn-amd-amdhsa--gfx950"
""" + self.post(self.a.text(self.o("verbose", 0))) + """.section .rodata,"a"
.p2align 6
""" + descriptor(KN, 256, 102)

if __name__ == "__main__":
    opt = {}
    for s in sys.argv[2:]:
        k, v = s.split("="); opt[k] = int(v)
    open(sys.argv[1], "w").write(G(**opt).build())
```

```python
import re

TRANS = ("v_exp_f32", "v_log_f32", "v_rcp_f32", "v_rsq_f32", "v_sqrt_f32", "v_sin_f32", "v_cos_f32")

def _regs(tok):
    tok = tok.strip()
    tok = re.sub(r"^-|^\||\|$", "", tok)
    m = re.match(r"^abs\((.*)\)$", tok)
    if m: tok = m.group(1)
    m = re.match(r"^([vsa])(\d+)$", tok)
    if m: return {(m.group(1), int(m.group(2)))}
    m = re.match(r"^([vsa])\[(\d+):(\d+)\]$", tok)
    if m: return {(m.group(1), i) for i in range(int(m.group(2)), int(m.group(3)) + 1)}
    if tok in ("vcc", "vcc_lo", "vcc_hi"): return {("s", "vcc")}
    if tok in ("exec", "exec_lo", "exec_hi"): return {("s", "exec")}
    if tok == "m0": return {("s", "m0")}
    return set()

class Ins:
    def __init__(self, text):
        self.text = text
        t = text.split(";")[0].strip()
        self.label = None; self.op = None; self.dst = set(); self.src = set()
        self.directive = False
        if not t: self.directive = True; return
        if t.endswith(":"): self.label = t[:-1]; return
        if t.startswith("."): self.directive = True; return
        parts = t.split(None, 1)
        self.op = op = parts[0]
        rest = parts[1] if len(parts) > 1 else ""
        ops = []; depth = 0; cur = ""
        for ch in rest:
            if ch in "[(": depth += 1
            if ch in "])": depth -= 1
            if ch == "," and depth == 0: ops.append(cur); cur = ""
            else: cur += ch
        ops.append(cur)
        self.mods = ""
        if ops:
            last = ops[-1].strip().split(None, 1)
            if last:
                ops[-1] = last[0]
                self.mods = last[1] if len(last) > 1 else ""
        self.ops = [o.strip() for o in ops]
        R = [_regs(o) for o in self.ops]
        U = lambda l: set().union(*l) if l else set()
        self.valu = op.startswith("v_") and not op.startswith("v_mfma")
        self.mfma = op.startswith("v_mfma")
        self.salu = op.startswith("s_")
        self.ds = op.startswith("ds_")
        self.vmem = op.startswith("buffer_") or op.startswith("global_")
        self.dpp = "_dpp" in op or "row_" in self.mods or "wave_" in self.mods or "quad_perm" in self.mods
        self.trans = any(op.startswith(x) for x in TRANS)
        self.dot = op.startswith("v_dot")
        self.ldsdma = self.vmem and (" lds" in " " + self.mods or "load_lds" in op)
        self.wide_store = False
        if self.mfma:
            self.dst = R[0]; self.srcA = R[1]; self.srcB = R[2]; self.srcC = R[3]; self.src = U(R[1:])
            self.passes = 8 if "32x32" in op else 4
        elif self.valu:
            if op.startswith("v_cmp"):
                self.dst = R[0]; self.src = U(R[1:])
                if op.startswith("v_cmpx"): self.dst = self.dst | {("s", "exec")}
            elif op.startswith("v_permlane") and "swap" in op or op.startswith("v_swap"):
                self.dst = U(R[:2]); self.src = U(R[:2])
            elif re.match(r"v_(add|sub|subrev)_co_u32", op):
                self.dst = U(R[:2]); self.src = U(R[2:])
            elif re.match(r"v_(addc|subb)_co_u32", op):
                self.dst = U(R[:2]); self.src = U(R[2:])
            elif op == "v_nop":
                pass
            else:
                self.dst = R[0]; self.src = U(R[1:])
                if op.startswith(("v_fmac", "v_dot2c", "v_writelane")) or self.dpp or "sdwa" in op:
                    self.src = self.src | R[0]
        elif self.ds:
            if op.startswith(("ds_read", "ds_bpermute", "ds_permute", "ds_swizzle")) or "_rtn" in op:
                self.dst = R[0]; self.src = U(R[1:])
                if "d16" in op: self.src = self.src | R[0]
            else:
                self.src = U(R)
            if "addtid" in op: self.src = self.src | {("s", "m0")}
        elif self.vmem:
            if self.ldsdma:
                self.src = U(R) | {("s", "m0")}
            elif "load" in op:
                self.dst = R[0]; self.src = U(R[1:])
            else:
                self.src = U(R)
                if "dwordx3" in op or "dwordx4" in op:
                    self.wide_store = True
                    self.sdata = R[1] if op.startswith("global_") else R[0]
        elif self.salu:
            if op.startswith(("s_cmp", "s_cbranch", "s_branch", "s_waitcnt", "s_barrier", "s_nop", "s_endpgm", "s_sleep", "s_setprio", "s_bitcmp")):
                self.src = U(R)
            else:
                self.dst = R[0] if R else set(); self.src = U(R[1:])
                if "saveexec" in op: self.dst = self.dst | {("s", "exec")}
    def states(self):
        if self.op == "s_nop": return int(self.ops[0], 0) + 1
        return 1

def need(p, c):
    n = 0
    V = lambda s: {r for r in s if r[0] in "va"}
    S = lambda s: {r for r in s if r[0] == "s"}
    if p.valu:
        vd = V(p.dst); sd = S(p.dst)
        if c.dpp and vd & V(c.src): n = max(n, 2)
        if c.mfma and vd & c.src: n = max(n, 3 if p.dot else 2)
        if c.valu and c.op.startswith("v_permlane") and vd & c.src: n = max(n, 2)
        if c.valu and c.op.startswith(("v_readlane", "v_readfirstlane")) and vd & V(c.src): n = max(n, 1)
        if p.trans and c.valu and not c.trans and vd & c.src: n = max(n, 1)
        if p.trans and c.valu and c.trans and vd & c.src: n = max(n, 1)
        if p.dot and (vd & (c.src | c.dst)):
            same = c.valu and c.op == p.op
            if same:
                others = set().union(*[_regs(o) for o in c.ops[1:3]])
                if vd & others: n = max(n, 3)
            else: n = max(n, 3)
        if ("sdwa" in p.op or ("op_sel" in p.mods and not p.op.startswith("v_pk_"))) and c.valu and vd & (c.src | c.dst): n = max(n, 1)
        if sd:
            if c.valu and (sd - {("s", "exec")}) & S(c.src):
                n = max(n, 4 if c.op.startswith(("v_readlane", "v_writelane")) else 2)
            if c.vmem and sd & S(c.src): n = max(n, 5)
            if ("s", "exec") in sd:
                if c.dpp: n = max(n, 5)
                if c.mfma or (c.valu and c.op.startswith(("v_readlane", "v_readfirstlane", "v_writelane", "v_permlane"))): n = max(n, 4)
            if c.salu and sd & S(c.src) and not c.op.startswith("s_cbranch"): n = max(n, 1)
    if p.mfma:
        big = {4: 8, 8: 12}[p.passes]
        if c.mfma:
            if p.dst & (c.srcA | c.srcB): n = max(n, big)
            if p.dst & c.srcC and not (p.dst == c.srcC and p.passes == c.passes): n = max(n, {4: 6, 8: 10}[p.passes])
            elif p.dst & c.dst and not (p.dst == c.srcC): n = max(n, {4: 6, 8: 10}[p.passes])
        elif (c.valu or c.vmem or c.ds) and p.dst & (c.src | c.dst): n = max(n, big)
        if c.valu and p.srcC & c.dst: n = max(n, {4: 3, 8: 7}[p.passes])
    if p.salu and ("s", "m0") in p.dst and ("s", "m0") in c.src and (c.ds or c.vmem): n = max(n, 1)
    if p.wide_store and p.sdata & c.dst: n = max(n, 2 if c.valu else 1)
    return n

WINDOW = 14

def fix_hazards(lines, verbose=False):
    ins = [Ins(l) for l in lines]
    out = []
    def back(seq, c):
        dist = 0; extra = 0
        for p in reversed(seq):
            if p.op is None: continue
            extra = max(extra, need(p, c) - dist)
            dist += p.states()
            if dist > WINDOW: break
        return extra
    start = 0
    nins = 0
    for c in ins:
        if c.op is not None:
            e = back(out[start:][-3 * WINDOW:], c)
            if e > 0:
                out.append(Ins(f"    s_nop {e-1}")); nins += 1
                if verbose: print("nop", e, "before", c.text.strip())
        out.append(c)
        if c.op in ("s_branch", "s_endpgm", "s_setpc_b64"): start = len(out)
    lab = {c.label: i for i, c in enumerate(out) if c.label}
    for i, c in enumerate(out):
        if c.op and (c.op.startswith("s_cbranch") or c.op == "s_branch"):
            t = c.ops[0]
            if t not in lab: continue
            pre = [x for x in out[max(0, i - 3 * WINDOW):i + 1] if x.op]
            seq = list(pre); d = 0
            for x in out[lab[t]:]:
                if x.op is None: continue
                dist = 0
                for k, p in enumerate(reversed(seq)):
                    if k >= len(seq) - len(pre) and need(p, x) > dist:
                        raise RuntimeError(f"hazard across branch {c.text.strip()}: {p.text.strip()} -> {x.text.strip()}")
                    dist += p.states()
                    if dist > WINDOW: break
                seq.append(x); d += x.states()
                if d > WINDOW or x.op in ("s_branch", "s_endpgm"): break
    return [c.text for c in out], nins

def check_addr(lines):
    ins = [Ins(l) for l in lines]
    lab = {c.label: i for i, c in enumerate(ins) if c.label}
    pred = {i: [] for i in range(len(ins))}
    for i, c in enumerate(ins):
        if c.op and (c.op.startswith("s_cbranch") or c.op == "s_branch") and c.ops[0] in lab: pred[lab[c.ops[0]]].append(i)
        if i + 1 < len(ins) and c.op not in ("s_branch", "s_endpgm"): pred[i + 1].append(i)
    for i, c in enumerate(ins):
        if not (c.op and c.vmem) or c.op in ("buffer_wbl2", "buffer_inv"): continue
        ad = c.ops[0] if (c.ldsdma or "store" in c.op) else c.ops[1]
        for r in _regs(ad):
            if r[0] != "v": continue
            seen = set(); st = list(pred[i])
            while st:
                k = st.pop()
                if k in seen: continue
                seen.add(k); p = ins[k]
                if p.op is not None and r in p.dst:
                    if p.ds or p.vmem or p.mfma or p.op.startswith(("v_cvt", "v_pk_", "v_fma", "v_mul_f32", "v_add_f32", "v_perm", "v_exp", "v_rcp")):
                        raise RuntimeError(f"address register of '{c.text.strip()}' can come from '{p.text.strip()}'")
                    if not (r in p.src and not p.op.startswith(("v_and_b32", "v_bfe", "v_min"))): continue
                st += pred[k]

class Asm:
    def __init__(self): self.l = []
    def __call__(self, s):
        for line in s.split("\n"):
            t = line.strip()
            if not t: continue
            if t.split(";")[0].strip().endswith(":") or t.startswith("."): self.l.append(t)
            else: self.l.append("    " + t)
    def text(self, verbose=False):
        check_addr(self.l)
        o, n = fix_hazards(self.l, verbose)
        return "\n".join(o) + "\n"

def vr(a, n=1): return f"v{a}" if n == 1 else f"v[{a}:{a+n-1}]"
def sr(a, n=1): return f"s{a}" if n == 1 else f"s[{a}:{a+n-1}]"
```

```python
import sys, re
from parts import *
KN = "recurrent_scan__ssm_conv_s4__moe_arch_mod__prompt_kernel"

EPOCH = 0
STATS = 0x4000
PARTS = 0x10000
PSTR = 73 * 128
TILE = 0x200000
REC = 0x1000000
SPIN = 4096
LDSZ = 163840
LNROW = 1216; LNS = LDSZ - 8 * LNROW - 64; LNST = LNS + 8 * LNROW
SM = 147456
F_CT = SM
F_H = SM + 512; F_X = SM + 2560; XSTR = 1056; F_E = F_X + 9 * XSTR
ROW = 528; TCH = 64 * ROW
KS = 2240; KCH = 4 * KS + 320; K8 = 4 * KS
YBASE = 4 * KCH
UBASE = 4 * TCH; UPAD = 480; UCH = 4640
CFL = UBASE + 4 * UCH
assert CFL + 64 <= LNS and CFL & 0xf0
S_W, S_XCD, S_SLOT, S_T16, S_T8, S_TT = 39, 40, 41, 44, 45, 46

class G:
    def __init__(self, stamps=False, **opt):
        self.a = Asm(); self.stamps = stamps; self.opt = opt
        self.R1 = self.o("r1", 3); self.R0 = 32 * self.R1; self.P1 = self.o("p1", 5)
    def o(self, k, d): return self.opt.get(k, d)
    def stamp(self, k):
        if self.stamps: self.a(f"s_memrealtime s[{70+2*k}:{71+2*k}]")
    def fs(self, k, key="fine"):
        return f"s_memrealtime s[{70+2*k}:{71+2*k}]" if self.stamps and self.o(key, 0) else ""
    def dump(self):
        if not self.stamps: return
        a = self.a
        a("s_memtime s[100:101]\ns_memrealtime s[96:97]\ns_waitcnt lgkmcnt(0)\ns_mov_b64 exec, -1")
        for k in range(16): a(f"v_mov_b32 v{100+k}, s{70+2*k}")
        a(f"""s_lshl_b32 s42, s2, 3
        s_add_u32 s42, s42, s{S_W}
        s_lshl_b32 s42, s42, 6
        s_add_u32 s42, s42, {REC}
        v_mov_b32 v116, s42
        s_mov_b64 exec, 1""")
        for k in range(4): a(f"global_store_dwordx4 v116, {vr(100+4*k,4)}, s[36:37] offset:{16*k}")

    def prologue(self):
        a = self.a
        kernel_begin(a, KN)
        if self.stamps:
            for k in range(16): a(f"s_mov_b32 s{70+2*k}, 0")
        self.stamp(0)
        if self.stamps: a("s_memtime s[98:99]")
        a(f"""
        s_load_dwordx16 s[4:19], s[0:1], 0
        s_load_dwordx16 s[20:35], s[0:1], 64
        s_load_dwordx2 s[36:37], s[0:1], 128
        s_cmp_ge_u32 s2, 256
        s_cbranch_scc1 L_end
        s_lshr_b32 s{S_SLOT}, s2, 3
        s_getpc_b64 s[42:43]
L_pc:
        s_mul_i32 s47, s{S_SLOT}, 768
        s_add_u32 s42, s42, s47
        s_addc_u32 s43, s43, 0
        v_lshlrev_b32 v4, 7, v0
        v_mov_b32 v5, s43
        v_add_co_u32 v4, vcc, s42, v4
        v_lshrrev_b32 v1, 6, v0
        v_and_b32 v2, 63, v0
        v_addc_co_u32 v5, vcc, 0, v5, vcc
        s_sub_u32 s47, L_end - L_pc - 4, s47
        s_ashr_i32 s47, s47, 7
        s_min_i32 s47, s47, 5
        v_cmp_ge_i32 vcc, s47, v0
        s_and_saveexec_b64 s[48:49], vcc
        s_cbranch_execz L_nopf
        global_load_dword v255, v[4:5], off
L_nopf:
        s_mov_b64 exec, -1
        v_readfirstlane_b32 s{S_W}, v1
        s_and_b32 s{S_XCD}, s2, 7
        s_mul_i32 s42, s2, 9216
        v_lshlrev_b32 v3, 4, v2
        v_lshlrev_b32 v4, 1, v2
        v_mul_u32_u24 v5, 1152, v1
        v_add3_u32 v6, v5, v3, s42
        v_add3_u32 v7, v5, v4, s42
        s_waitcnt lgkmcnt(0)
        global_load_dwordx4 v[12:15], v6, s[4:5]
        global_load_ushort v16, v7, s[4:5] offset:1024
        s_load_dword s38, s[36:37], {EPOCH}
        global_load_dwordx4 v[20:23], v3, s[24:25]
        global_load_ushort v24, v4, s[24:25] offset:1024
        """)
        self.stamp(1)
        a(f"""
        s_and_b32 s51, s{S_W}, 3
        s_lshr_b32 s52, s{S_W}, 2
        s_cmp_lt_u32 s{S_SLOT}, 18
        s_cbranch_scc1 L_conv_pre
        s_cmp_lt_u32 s{S_SLOT}, 27
        s_cbranch_scc1 L_ffn_pre
        """)
    def touch_setup(self, d=76):
        NL = 9 * (576 - self.R0) - 1
        self.a(f"""
        s_mul_i32 s43, s{S_XCD}, 1152
        s_add_u32 s43, s43, {self.R0*9216}
        s_mul_i32 s59, s{S_XCD}, {576*1152}
        s_cmp_eq_u32 s58, 0
        s_cselect_b32 s56, s26, s28
        s_cselect_b32 s57, s27, s29
        s_cmp_eq_u32 s58, 2
        s_cselect_b32 s56, s30, s56
        s_cselect_b32 s57, s31, s57
        s_cselect_b32 s43, s59, s43
        s_movk_i32 s58, 128
        s_movk_i32 s59, 8064
        s_movk_i32 s60, {NL}
        s_cmov_b32 s58, 73728
        s_cmov_b32 s59, {-(9*73728-128)}
        s_cmovk_i32 s60, 5183
        v_add_u32 v{d}, s42, v2
        v_min_u32 v{d}, s60, v{d}
        v_mul_u32_u24 v63, 7282, v{d}
        v_lshrrev_b32 v63, 16, v63
        v_mul_u32_u24 v{d}, s58, v{d}
        v_mad_i32_i24 v{d}, v63, s59, v{d}
        v_add_u32 v{d}, s43, v{d}
        """)
    def spare_pre(self):
        a = self.a
        a(f"""
        s_sub_u32 s53, s{S_SLOT}, 27
        s_and_b32 s58, s{S_W}, 1
        s_lshr_b32 s43, s{S_W}, 1
        s_mul_i32 s42, s43, 320
        s_add_u32 s42, s42, {2272 if self.o('ft', 0) == 2 else 1152 if self.o('ord2', 1) else 2304}
        s_cmp_eq_u32 s43, 0
        s_cmovk_i32 s42, 1152
        s_cmp_eq_u32 s43, 1
        s_cselect_b32 s48, 1, 0
        s_mul_i32 s59, s58, 320
        s_cmp_eq_u32 s43, 3
        s_cselect_b32 s42, s59, s42
        s_cmovk_i32 s58, 2
        s_lshl_b32 s53, s53, 6
        s_add_u32 s42, s42, s53
        """)
        self.touch_setup()
        a(f"""
        s_barrier
        s_mov_b32 s47, 0
        s_cmp_ge_u32 s{S_W}, {self.o('sp1', 2)}
        s_cbranch_scc1 L_lnp
        global_load_dword v1, v76, s[56:57]
        s_mov_b32 s47, 1
        s_branch L_lnp
        """)
    def ffn_pre(self):
        a = self.a
        a(f"""
L_ffn_pre:
        s_sub_u32 s54, s{S_SLOT}, 18
        s_mul_i32 s50, s{S_XCD}, 9
        s_add_u32 s50, s50, s54            ; f
        v_bfe_u32 v76, v0, 3, 5            ; row 8*(w&3) + r
        v_bfe_u32 v61, v0, 4, 1
        v_bfe_u32 v62, v0, 6, 1
        v_lshl_add_u32 v61, v62, 1, v61
        v_lshlrev_b32 v61, 1, v61
        v_and_b32 v62, 7, v0
        v_xor_b32 v61, v61, v62
        v_mul_u32_u24 v76, 9216, v76
        v_lshlrev_b32 v61, 4, v61
        s_lshl_b32 s42, s50, 7
        v_add3_u32 v76, v76, v61, s42
        s_lshl_b32 s53, s51, 10
        s_cmp_eq_u32 s52, 0
        s_cselect_b32 s56, s26, s28
        s_cselect_b32 s57, s27, s29
        s_cselect_b32 s42, 0, 73728
        s_add_u32 s42, s53, s42
        s_barrier
        """)
        for i in range(self.R1):
            a(f"""s_add_u32 m0, s42, {4096*i}
            s_nop 0
            global_load_lds_dwordx4 v76, s[56:57]
            v_add_u32 v76, {32*9216}, v76""")
        a(f"""
        v_mov_b32 v62, 0
        v_mov_b32 v63, 0
        v_lshrrev_b32 v61, 1, v3
        v_add_u32 v61, {F_CT}, v61
        ds_write_b64 v61, v[62:63]
        s_mov_b32 s47, {self.R1}
        s_mov_b32 s48, 0
        s_branch L_lnp
        """)
    def conv_pre(self):
        a = self.a
        a(f"""
L_conv_pre:
        s_mul_i32 s50, s{S_XCD}, 18
        s_add_u32 s50, s50, s{S_SLOT}      ; group
        s_lshl_b32 s53, s50, 2
        s_add_u32 s53, s53, s51            ; channel
        s_lshl_b32 s42, s53, 8
        s_lshl_b32 s43, s52, 7
        s_add_u32 s42, s42, s43
        v_add_u32 v60, s42, v4
        s_lshl_b32 s54, s50, 3
        s_lshl_b32 s42, s53, 1
        v_mov_b32 v61, s42
        s_barrier
        global_load_ushort v70, v61, s[18:19]
        global_load_ushort v71, v61, s[20:21]
        global_load_ushort v64, v60, s[6:7]
        global_load_ushort v65, v60, s[8:9]
        global_load_ushort v66, v60, s[10:11]
        global_load_ushort v67, v60, s[12:13]
        global_load_ushort v68, v60, s[14:15]
        global_load_ushort v69, v60, s[16:17]
        s_lshr_b32 s42, s51, 1
        s_mul_i32 s42, s42, 1472
        s_and_b32 s58, s51, 1
        s_mul_i32 s43, s51, {-18*64}
        s_add_u32 s43, s43, {63*64}
        s_cmp_eq_u32 s52, 0
        s_cselect_b32 s42, s43, s42
        s_cmovk_i32 s58, 2
        s_lshl_b32 s43, s{S_SLOT}, 6
        s_add_u32 s42, s42, s43
        """)
        self.touch_setup()
        a(f"""
        s_mov_b32 s47, 8
        s_lshr_b32 s42, s{S_W}, 1
        s_cmp_eq_u32 s42, 3
        s_cselect_b32 s48, 1, 0
        s_cmp_lg_u32 s42, 2
        s_cbranch_scc1 L_cp2
        global_load_dword v1, v76, s[56:57]
        s_mov_b32 s47, 9
L_cp2:
        v_and_b32 v8, 15, v0
        v_bfe_u32 v9, v0, 4, 2
        ; table operand addresses: v78 (G0/base), v79 (F), v80 (G1)
        s_mul_i32 s55, s51, {TCH}
        v_mul_u32_u24 v78, {ROW}, v8
        v_and_b32 v79, 0x100, v3
        v_add3_u32 v78, v78, v79, s55
        v_and_b32 v79, 0x200, v3
        v_lshrrev_b32 v79, 2, v79
        v_add_u32 v78, v78, v79
        s_mul_i32 s42, s52, {16*ROW}
        v_add_u32 v79, s42, v78
        v_and_b32 v80, 3, v0
        v_add_u32 v80, -1, v80
        v_lshrrev_b32 v80, 16, v80
        v_and_b32 v80, {12*ROW}, v80
        v_sub_u32 v80, v78, v80
        s_mul_i32 s62, s51, {KCH}
        s_lshl_b32 s42, s52, 9
        s_sub_u32 s42, s62, s42
        s_add_u32 s42, s42, {2104 - 1024}
        v_lshlrev_b32 v81, 5, v8
        v_lshl_add_u32 v81, v9, 3, v81
        v_sub_u32 v81, s42, v81
        v_bfe_u32 v83, v0, 2, 1
        v_mul_u32_u24 v83, {2*KS - 4}, v83
        v_sub_u32 v82, v81, v83
        v_add_u32 v82, {2*KS - 4}, v82
        v_add_u32 v81, v81, v83
        ; zero pad of u (outside the tables) and the flag words
        v_min_u32 v83, 29, v2
        s_mul_i32 s63, s51, {UCH}
        s_add_u32 s63, s63, {UBASE}
        v_lshl_add_u32 v83, v83, 4, s63
        v_mov_b32 v84, 0
        v_mov_b32 v85, 0
        v_mov_b32 v86, 0
        v_mov_b32 v87, 0
        ds_write_b128 v83, v[84:87]
        v_and_b32 v88, 0x30, v3
        v_add_u32 v88, {CFL}, v88
        ds_write_b128 v88, v[84:87]
        """)
    def ln(self):
        a = self.a
        T64 = self.o("tile64", 1)
        a(f"""
L_lnp:
        s_mul_i32 s43, s{S_W}, {LNROW}
        s_add_u32 s43, s43, {LNS}
        v_add_u32 v52, s43, v3
        v_add_u32 v53, s43, v4
        s_lshl_b32 s43, s{S_W}, 3
        s_add_u32 s43, s43, {LNST}
        v_mov_b32 v54, s43
        v_bfe_u32 v55, v0, 2, 2
        v_mul_u32_u24 v55, {LNROW}, v55
        v_and_b32 v56, 3, v0
        v_lshl_add_u32 v55, v56, 3, v55
        v_lshrrev_b32 v56, 4, v0
        v_lshl_add_u32 v55, v56, 5, v55
        v_add_u32 v55, {LNS}, v55
        v_lshrrev_b32 v56, {2 if T64 else 3}, v0
        v_lshlrev_b32 v56, {14 if T64 else 15}, v56
        v_and_b32 v57, {0x30 if T64 else 0x70}, v3
        s_lshl_b32 s43, s2, {6 if T64 else 7}
        s_add_u32 s43, s43, {TILE}
        v_add3_u32 v56, v56, v57, s43
        v_mov_b32 v40, 0
        v_mov_b32 v41, 0
        v_mov_b32 v42, 0
        v_mov_b32 v43, 0
        v_mov_b32 v44, {f2u(1/576)}
        v_mov_b32 v38, 0xbfffbfff
        v_mov_b32 v37, 0xffff
        s_lshl_b32 s58, s2, 3
        s_add_u32 s58, s58, s{S_W}
        s_xor_b32 s58, s58, 0x7ff
        s_lshl_b32 s58, s58, 5
        s_waitcnt lgkmcnt(0)
        s_add_u32 s38, s38, 0x9e370001
        s_lshr_b32 s{S_T16}, s38, 16
        s_and_b32 s{S_T8}, s38, 0xff
        s_and_b32 s{S_TT}, s38, 0xfb
        s_bitcmp0_b32 s38, 0
        s_cselect_b32 s43, 4, 0
        s_or_b32 s{S_TT}, s{S_TT}, s43
        s_bitcmp1_b32 s{S_TT}, s{S_W}
        s_cselect_b32 s43, 0x40004000, 0
        v_mov_b32 v39, s43
        s_xor_b32 s58, s58, s{S_T16}
        v_mov_b32 v57, s58
        s_mov_b32 s42, 0x3f803f80
        """)
        for v in sorted({0, 1, self.R1, 8, 9}, reverse=True):
            a(f"s_waitcnt vmcnt({v})")
            if v != 0: a(f"s_cmp_eq_u32 s47, {v}\ns_cbranch_scc1 L_ln")
        a("L_ln:")
        self.stamp(2)
        if self.o("e1", 0): a("s_cmp_eq_u32 s48, 0\ns_cbranch_scc1 L_ln1\nglobal_load_dword v1, v76, s[56:57]\nL_ln1:")
        for i in range(5):
            a(f"""v_dot2c_f32_bf16 v40, s42, v{12+i}
            v_dot2c_f32_bf16 v41, v{12+i}, v{12+i}
            v_dot2c_f32_bf16 v42, v{12+i}, v{20+i}
            v_dot2c_f32_bf16 v43, s42, v{20+i}""")
        un = [f"v_lshlrev_b32 v{28+2*i}, 16, v{12+i}\nv_and_b32 v{29+2*i}, 0xffff0000, v{12+i}" for i in range(4)]
        a(f"""
        v_lshlrev_b32 v36, 16, v16
        {un[0]}
        v_permlane32_swap_b32 v40, v42
        v_permlane32_swap_b32 v41, v43
        v_add_f32 v40, v40, v42
        v_add_f32 v41, v41, v43
        {un[1]}
        v_permlane16_swap_b32 v40, v41
        v_add_f32 v40, v40, v41
        {un[2]}
        v_add_f32_dpp v40, v40, v40 row_ror:8 row_mask:0xf bank_mask:0xf
        {un[3]}
        v_add_f32_dpp v40, v40, v40 row_ror:4 row_mask:0xf bank_mask:0xf
        v_add_f32_dpp v40, v40, v40 row_ror:2 row_mask:0xf bank_mask:0xf
        v_add_f32_dpp v40, v40, v40 row_ror:1 row_mask:0xf bank_mask:0xf
        v_readlane_b32 s58, v40, 0
        v_readlane_b32 s59, v40, 16
        v_readlane_b32 s60, v40, 32
        v_readlane_b32 s61, v40, 48
        v_mul_f32 v40, s58, v44
        v_mul_f32 v41, s59, v44
        v_fma_f32 v41, -v40, v40, v41
        v_max_f32 v41, 0, v41
        v_cvt_pk_bf16_f32 v44, v41, v40
        v_lshlrev_b32 v41, 16, v44
        v_add_f32 v41, {f2u(1e-5)}, v41
        v_cvt_pk_bf16_f32 v41, v41, v41
        v_and_b32 v41, 0xffff0000, v41
        v_mul_f32 v41, {f2u(1024.0)}, v41
        v_sqrt_f32 v41, v41
        v_and_b32 v49, 0xffff0000, v44
        v_cvt_pk_bf16_f32 v50, v49, v41
        v_and_b32 v41, 0xffff0000, v50
        v_rcp_f32 v46, v41
        v_mul_f32 v42, s61, v49
        v_mul_f32 v47, v49, v46
        """)
        key = f"""v_sub_f32 v42, s60, v42
        v_mul_f32 v42, {f2u(32.0)}, v42
        v_mul_f32 v42, v42, v46
        v_cvt_pk_bf16_f32 v42, v42, v42
        v_ashrrev_i32 v43, 31, v42
        v_or_b32 v43, 0x80000000, v43
        v_xor_b32 v42, v42, v43
        v_bitop3_b32 v51, v37, v57, v42 bitop3:0xca
        s_mov_b64 exec, 1
        ds_write_b64 v54, v[50:51]
        s_mov_b64 exec, -1"""
        def norm():
            for i in range(9): a(f"v_fma_f32 v{28+i}, v{28+i}, v46, -v47")
            for i in range(4): a(f"v_cvt_pk_bf16_f32 v{28+i}, v{28+2*i}, v{29+2*i}")
            a("v_cvt_pk_bf16_f32 v32, v36, v36")
            for i in range(5): a(f"v_bitop3_b32 v{28+i}, v{28+i}, v38, v39 bitop3:0xea")
            a("ds_write_b128 v52, v[28:31]\nds_write_b16 v53, v32 offset:1024")
        stat = lambda mid, cnt: f"""v_and_b32 v41, 0x30, v3
        v_add_u32 v40, {LNST}, v41
        ds_read_b128 v[48:51], v40
        {mid}
        s_lshl_b32 s43, s2, 6
        s_add_u32 s43, s43, {STATS}
        v_add_u32 v41, s43, v41
        s_mov_b64 exec, 15
        s_waitcnt lgkmcnt({cnt})
        global_store_dwordx4 v41, v[48:51], s[36:37] sc1
        s_mov_b64 exec, -1"""
        tr = f"ds_read_b64_tr_b16 v[28:29], v55\nds_read_b64_tr_b16 v[30:31], v55 offset:{4*LNROW}"
        w0 = f"""s_cmp_eq_u32 s{S_W}, 0
        s_cbranch_scc0 L_ln_st
        ds_read_b64_tr_b16 v[32:33], v55 offset:1024
        ds_read_b64_tr_b16 v[34:35], v55 offset:{4*LNROW+1024}
        v_add_u32 v38, {64*32768}, v56
        s_waitcnt lgkmcnt(0)
        global_store_dwordx4 v38, v[32:35], s[36:37] sc1"""
        if self.o("early", 1):
            a(key)
            a(f"""s_waitcnt lgkmcnt(0)
            s_barrier
            s_cmp_eq_u32 s{S_W}, 1
            s_cbranch_scc0 L_ln_n
            {stat("", 0)}
L_ln_n:""")
            norm()
            a(f"s_waitcnt lgkmcnt(0)\ns_barrier\n{tr}\n{w0}")
        else:
            norm(); a(key)
            a(f"""s_waitcnt lgkmcnt(0)
            s_barrier
            s_cmp_eq_u32 s{S_W}, 1
            s_cbranch_scc1 L_ln_stat
            {tr}
            {w0}
            s_branch L_ln_st
L_ln_stat:
            {stat(tr, 2)}""")
        a("""L_ln_st:
        s_waitcnt lgkmcnt(0)
        global_store_dwordx4 v56, v[28:31], s[36:37] sc1""")
        self.stamp(3)
        a(f"""
        s_cmp_lt_u32 s{S_SLOT}, 18
        s_cbranch_scc1 L_conv
        s_barrier
        s_cmp_lt_u32 s{S_SLOT}, 27
        s_cbranch_scc1 L_ffn
        ; ---- spare
        s_cmp_lt_u32 s{S_W}, {4 if self.o('e1', 0) else 2}
        s_cbranch_scc1 L_sp2
        {"s_waitcnt vmcnt(0)" if self.o("spwait", 0) else ""}
        global_load_dword v1, v76, s[56:57]
L_sp2:
        """)
        if self.o("sp2", 1):
            a(f"""s_mul_i32 s42, s{S_W}, 320
            s_add_u32 s42, s42, s53
            s_add_u32 s42, s42, 640
            s_mov_b32 s58, 2""")
            self.touch_setup()
            a("s_barrier\nglobal_load_dword v1, v76, s[56:57]")
        a(f"""
        s_waitcnt vmcnt(0)
        """)
        self.stamp(4)
        if self.o("wb", 0) == 3: a(f"s_barrier\ns_lshl_b32 s42, s{S_SLOT}, 3\ns_add_u32 s42, s42, s{S_W}\ns_cmp_lg_u32 s42, {27*8}\ns_cbranch_scc1 L_nowb\ns_sleep {self.o('wbd', 1)}\nbuffer_wbl2 sc1\ns_waitcnt vmcnt(0)\nL_nowb:")
        self.dump()
        a("s_endpgm")

    def ffn(self):
        a = self.a
        KY, IV, SL = 28, 128, 112
        RAW, OP, EX, AC, EXR = 40, 112, 104, 176, 216
        spin = lambda lab, off, tgt, slp=0, msk=0xffff: f"""{lab}:
        ds_read_b32 v24, v26 offset:{off}
        s_waitcnt lgkmcnt(0)
        v_readfirstlane_b32 s61, v24
        s_and_b32 s60, s61, {msk}
        s_cmp_ge_u32 s60, {tgt}
        s_cbranch_scc1 {lab}_ok
        {"s_sleep %d" % slp if slp else ""}
        s_sub_u32 s55, s55, 1
        s_cbranch_scc0 {lab}
{lab}_ok:"""
        a(f"""
L_ffn:
        v_bfe_u32 v14, v0, 4, 2            ; kq
        v_and_b32 v11, 7, v0
        v_mov_b32 v26, {F_CT}
        v_mov_b32 v27, 4
        s_cmp_eq_u32 s52, 0
        s_cbranch_scc0 L_gu
        s_setprio 1
        v_lshlrev_b32 v8, 4, v0
        v_add_u32 v9, {STATS + 4096}, v8
        v_add_u32 v10, 8192, v9
        v_lshlrev_b32 v13, 6, v0
        """)
        for k in range(8): a(f"v_xor_b32 v{IV+k}, {(0x7ff ^ (512*(k>>1)) ^ (k&1)) << 5}, v13")
        a(f"""
        v_mov_b32 v36, s{S_T16}
        v_lshrrev_b32 v25, 5, v0
        v_lshl_add_u32 v25, v25, 2, v26
        ; ranking addresses: v15 mine, v16 others ; sel addresses v17 (lane>>3), v18 (lane&7)
        s_mul_i32 s62, s{S_W}, 80
        s_add_u32 s62, s62, {F_CT + 128}
        v_and_b32 v15, 0x3c, v0
        v_add_u32 v15, s62, v15
        v_and_b32 v16, 3, v0
        v_mul_u32_u24 v16, 80, v16
        v_add_u32 v16, {F_CT + 128}, v16
        v_lshrrev_b32 v12, 3, v2
        v_lshl_add_u32 v17, v12, 2, v26
        v_lshl_add_u32 v18, v11, 2, v26
        ; x dma lane offset v12
        v_and_b32 v12, 6, v12
        v_xor_b32 v12, v12, v11
        v_lshlrev_b32 v12, 4, v12
        v_lshl_add_u32 v12, v1, 7, v12
        v_add_u32 v12, {2047*1152}, v12
        s_lshl_b32 s63, s54, 7
        s_add_u32 s63, s63, {2047*1152}
        v_mov_b32 v37, s63
        s_movk_i32 s63, -1152
        s_mul_i32 s64, s{S_W}, {XSTR}
        s_mul_i32 s42, s50, 73728
        s_add_u32 s12, s30, s42
        s_addc_u32 s13, s31, 0
        s_add_u32 s14, s12, {16*1152}
        s_addc_u32 s15, s13, 0
        s_add_u32 s16, s12, {32*1152}
        s_addc_u32 s17, s13, 0
        s_add_u32 s18, s12, {48*1152}
        s_addc_u32 s19, s13, 0
        v_mul_u32_u24 v19, 4608, v14
        v_and_b32 v20, 0xf0, v3
        s_lshl_b32 s42, s51, 8
        v_add3_u32 v19, v19, v20, s42
        v_lshrrev_b32 v20, 1, v2
        v_mul_u32_u24 v20, 1152, v20
        v_and_b32 v21, 16, v3
        s_lshl_b32 s42, s51, 5
        v_add3_u32 v20, v20, v21, s42
        ; partial store offsets v4..v7 (r), v8 (last tile)
        v_bfe_i32 v232, v0, 3, 1
        v_mul_u32_u24 v4, {8*PSTR}, v14
        v_lshl_add_u32 v4, v11, 4, v4
        v_and_b32 v5, {4*PSTR}, v232
        s_lshl_b32 s43, s50, 7
        s_add_u32 s43, s43, {PARTS}
        s_mul_i32 s42, s51, {32*PSTR}
        s_add_u32 s42, s42, s43
        v_add3_u32 v4, v4, v5, s42
        v_add_u32 v5, {2*PSTR}, v4
        v_add_u32 v6, {PSTR}, v4
        v_add_u32 v7, {3*PSTR}, v4
        v_mul_u32_u24 v8, {PSTR}, v14
        v_lshl_add_u32 v8, v11, 4, v8
        s_mul_i32 s42, s51, {4*PSTR}
        s_add_u32 s42, s42, s43
        s_add_u32 s42, s42, {128*PSTR}
        v_add_u32 v8, s42, v8
        v_mov_b32 v233, s{S_T8}
        v_mov_b32 v234, 0xff
        v_and_b32 v235, 0x370, v3
        v_add_u32 v235, {F_H}, v235
        s_lshl_b32 s42, s51, 10
        s_add_u32 s42, s42, {F_E}
        v_add_u32 v236, s42, v3
        v_lshl_add_u32 v237, v2, 3, s42
        s_mov_b32 s66, 0x05040100
        s_mov_b32 s67, 0x07060302
        s_movk_i32 s55, {SPIN}
        s_waitcnt vmcnt(0)
        """)
        self.stamp(10)
        ld = "\n".join(f"global_load_dwordx4 {vr(SL+4*k,4)}, v{9+(k>>1)}, s[36:37] offset:{-4096 if k%2==0 else 0} sc1" for k in range(4))
        a("s_barrier")
        if self.o("polldelay", 0): a(f"s_sleep {self.o('polldelay', 0)}")
        if self.o("npoll", 0): a("s_memrealtime s[72:73]\ns_mov_b32 s74, 0")
        a(f"{ld}\nL_ffn_poll:")
        NP = "s_memrealtime s[68:69]\ns_waitcnt lgkmcnt(0)\ns_cmp_eq_u32 s74, 0\ns_cselect_b32 s74, s68, s74\ns_sub_u32 s94, 4097, s55\ns_mul_i32 s94, s94, 100\ns_add_u32 s94, s94, s70" if self.o("npoll", 0) else ""
        a("v_mov_b32 v24, 0")
        for k in range(8):
            if k % 2 == 0: a(f"s_waitcnt vmcnt({3-(k>>1)})")
            a(f"v_xor_b32 v{KY+k}, v36, v{SL+1+2*k}\nv_bitop3_b32 v24, v24, v{KY+k}, v{IV+k} bitop3:0xf6")
        a(f"""
        v_and_b32 v24, 0xffff, v24
        v_cmp_ne_u32 vcc, 0, v24
        v_max3_u32 v38, v28, v29, v30
        v_max3_u32 v39, v31, v32, v33
        {NP}
        s_cbranch_vccz L_ffn_go
        {ld}
        s_sub_u32 s55, s55, 1
        s_cbranch_scc0 L_ffn_poll
        s_waitcnt vmcnt(0)
L_ffn_go:
        {"s_barrier" if self.o("n2t", 4) else ""}
        """)
        self.stamp(4)
        T = IV
        a(f"""
        v_max3_u32 v38, v38, v34, v35
        v_max_u32 v38, v38, v39
        v_alignbit_b32 v24, 1, v38, 5
        v_sub_u32 v{T}, v28, v38
        v_sub_u32 v{T+1}, v29, v38
        v_max_u32_dpp v21, v24, v24 row_ror:1 row_mask:0xf bank_mask:0xf
        v_sub_u32 v{T+2}, v30, v38
        v_sub_u32 v{T+3}, v31, v38
        v_max_u32_dpp v21, v21, v21 row_ror:2 row_mask:0xf bank_mask:0xf
        v_sub_u32 v{T+4}, v32, v38
        v_sub_u32 v{T+5}, v33, v38
        v_max_u32_dpp v21, v21, v21 row_ror:4 row_mask:0xf bank_mask:0xf
        v_sub_u32 v{T+6}, v34, v38
        v_sub_u32 v{T+7}, v35, v38
        v_max_u32_dpp v21, v21, v21 row_ror:8 row_mask:0xf bank_mask:0xf
        v_max3_u32 v39, v{T}, v{T+1}, v{T+2}
        v_max3_u32 v22, v{T+3}, v{T+4}, v{T+5}
        v_max_u32_dpp v21, v21, v21 row_bcast:15 row_mask:0xa bank_mask:0xf
        s_mov_b32 exec_lo, 0x80000000
        s_mov_b32 exec_hi, 0x80000000
        ds_write_b32 v25, v21
        s_mov_b64 exec, -1
        s_mov_b32 s55, {SPIN*64}
        ds_read_b128 {vr(SL,4)}, v26
        ds_read_b128 {vr(SL+4,4)}, v26 offset:16
        v_max3_u32 v39, v39, v{T+6}, v{T+7}
        v_max_u32 v39, v39, v22
        v_add_u32 v39, v39, v38
        v_alignbit_b32 v23, 1, v39, 5
        {self.fs(1)}
L_s1:
        s_waitcnt lgkmcnt(0)
        v_min3_u32 v21, v{SL}, v{SL+1}, v{SL+2}
        v_min3_u32 v22, v{SL+3}, v{SL+4}, v{SL+5}
        v_min3_u32 v21, v21, v{SL+6}, v{SL+7}
        v_min_u32 v21, v21, v22
        v_cmp_eq_u32 vcc, 0, v21
        v_cmp_ge_u32 s[6:7], v24, v21
        v_cmp_ge_u32 s[8:9], v23, v21
        s_cbranch_vccz L_s1_ok
        ds_read_b128 {vr(SL,4)}, v26
        ds_read_b128 {vr(SL+4,4)}, v26 offset:16
        s_sub_u32 s55, s55, 1
        s_cbranch_scc0 L_s1
L_s1_ok:
        {self.fs(2)}
        s_bcnt1_i32_b64 s10, s[6:7]
        v_mbcnt_lo_u32_b32 v22, s6, 0
        v_mbcnt_lo_u32_b32 v13, s8, 0
        v_mbcnt_hi_u32_b32 v22, s7, v22
        v_mbcnt_hi_u32_b32 v13, s9, v13
        v_min_u32 v22, 16, v22
        v_add_u32 v13, s10, v13
        v_lshl_add_u32 v22, v22, 2, s62
        v_min_u32 v13, 16, v13
        s_mov_b64 exec, s[6:7]
        ds_write_b32 v22, v24
        v_lshl_add_u32 v13, v13, 2, s62
        s_mov_b64 exec, s[8:9]
        ds_write_b32 v13, v23
        s_mov_b64 exec, 1
        ds_add_u32 v26, v27 offset:32
        s_mov_b64 exec, -1
        ds_read_b32 v22, v26 offset:32
        ds_read_b32 v13, v15
        """)
        rd4 = "\n".join(f"ds_read_b128 {vr(SL+4*k,4)}, v16 offset:{16*k}" for k in range(4))
        a(rd4)
        if self.o("ctouch", 1):
            a(f"""
        v_and_b32 v24, 0x7ff, v24
        v_and_b32 v23, 0x7ff, v23
        v_mad_i32_i24 v24, v24, s63, v37
        v_mad_i32_i24 v23, v23, s63, v37
        s_mov_b64 exec, s[6:7]
        global_load_dword v239, v24, s[4:5]
        s_cmp_eq_u64 s[8:9], 0
        s_cbranch_scc1 L_no2
        s_mov_b64 exec, s[8:9]
        global_load_dword v239, v23, s[4:5]
L_no2:
        s_mov_b64 exec, -1""")
        a(f"""
        {self.fs(3)}
L_s2:
        s_waitcnt lgkmcnt(0)
        v_cmp_ne_u32 vcc, 16, v22
        v_mov_b32 v24, 0
        s_cbranch_vccz L_s2_ok
        ds_read_b32 v22, v26 offset:32
        ds_read_b32 v13, v15
        {rd4}
        s_sub_u32 s55, s55, 1
        s_cbranch_scc0 L_s2
L_s2_ok:
        {self.fs(11)}
        """)
        for k in range(16): a(f"v_sub_u32 v{SL+k}, v13, v{SL+k}\nv_alignbit_b32 v24, v24, v{SL+k}, 31")
        a(f"""
        v_bcnt_u32_b32 v24, v24, 0
        v_add_u32_dpp v24, v24, v24 quad_perm:[1,0,3,2] row_mask:0xf bank_mask:0xf
        v_add_u32_dpp v24, v24, v24 quad_perm:[2,3,0,1] row_mask:0xf bank_mask:0xf
        v_cmp_gt_u32 vcc, 8, v24
        v_lshl_add_u32 v24, v24, 2, v26
        s_mov_b64 exec, vcc
        ds_write_b32 v24, v13 offset:64
        s_mov_b64 exec, -1
        {self.fs(12)}
L_s3:
        ds_read_b32 v23, v17 offset:64
        ds_read_b32 v13, v18 offset:64
        s_add_u32 m0, s64, {F_X}
        s_waitcnt lgkmcnt(0)
        v_cmp_eq_u32 vcc, 0, v23
        v_and_b32 v23, 0x7ff, v23
        s_sub_u32 s55, s55, 1
        s_cselect_b64 vcc, 0, vcc
        s_cbranch_vccnz L_s3
        """)
        self.stamp(5)
        xdma = f"""
        v_mad_i32_i24 v23, v23, s63, v12
        global_load_lds_dwordx4 v23, s[4:5]
        s_add_u32 m0, s64, {F_X + 4*XSTR - 512}
        v_and_b32 v22, 0x7ff, v13
        global_load_lds_dwordx4 v23, s[4:5] offset:512
        v_sub_u32 v22, 2047, v22
        s_cmp_lg_u32 s{S_W}, 0
        s_cbranch_scc1 L_nox9@
        s_mov_b32 m0, {F_X + 8*XSTR - 1024}
        s_nop 0
        global_load_lds_dwordx4 v23, s[4:5] offset:1024
        s_branch L_x3@
L_nox9@:
        v_lshlrev_b32 v24, 3, v22
        v_add_u32 v24, {STATS}, v24
        global_load_dword v25, v24, s[36:37] sc1
L_x3@:
        """
        xflag = f"""
        s_cmp_lg_u32 s{S_W}, 1
        s_cbranch_scc1 L_nost@
        ds_write_b32 v18, v25 offset:448
L_nost@:
        s_mov_b64 exec, 1
        ds_add_u32 v26, v36 offset:36
        s_mov_b64 exec, -1
        """
        a(xdma.replace("@", ""))
        x4 = lambda s, e: f"global_load_dwordx4 {vr(RAW+32*s+4*e,4)}, v19, s[{12+4*s+2*(e>>2)}:{13+4*s+2*(e>>2)}] offset:{1152*(e&3)}"
        loads = [x4(0, e) for e in range(8)] + [f"global_load_dwordx4 {vr(EXR+4*s,4)}, v20, s[{12+4*s}:{13+4*s}] offset:1024" for s in range(2)] + [x4(1, e) for e in range(8)]
        NB = self.o("nb", 2); NB2 = self.o("nb2", 8)
        ver = ["v_readlane_b32 s10, v13, 7", "s_mov_b32 s11, 0", "s_lshl_b32 s10, s10, 5"]
        for k in range(8): ver += [f"v_cmp_le_u32 vcc, s10, v{KY+k}", "s_bcnt1_i32_b64 s56, vcc", "s_add_u32 s11, s11, s56"]
        ver += ["s_lshl_b32 s11, s11, 16", "s_or_b32 s11, s11, 4", "v_mov_b32 v36, s11"]
        a("s_barrier")
        for t in ver: a(t)
        a("s_barrier")
        for l in loads[:NB]: a(l)
        a(f"s_waitcnt vmcnt({NB})")
        a(xflag.replace("@", ""))
        a("s_setprio 0")
        self.stamp(6)
        for l in loads[NB:NB+NB2]: a(l)
        a(spin("L_s4", 36, 16, 0, 0xff))
        a(f"""
        s_lshr_b32 s61, s61, 16
        s_cmp_eq_u32 s61, {9 if self.o("forceslow", 0) else 8}
        s_cbranch_scc0 L_slow
L_dgo:
        """)
        def perms(s, d):
            if s == 1 and d == 0:
                for k in range(2):
                    a(f"""ds_write_b128 v236, {vr(EXR+4*k,4)}
                    ds_read_b64_tr_b16 {vr(EX+4*k,2)}, v237
                    ds_read_b64_tr_b16 {vr(EX+4*k+2,2)}, v237 offset:512""")
            for j in range(8):
                a(f"v_perm_b32 v{OP+32*s+4*j+d}, v{RAW+32*s+4*(2*d+1)+(j>>1)}, v{RAW+32*s+4*(2*d)+(j>>1)}, s{66+(j&1)}")
        LAG = self.o("lag", 8)
        todo = [(10 * s + 2 * d + 1, s, d) for s in range(2) for d in range(4)]
        for n in range(NB + NB2, 18):
            a(loads[n])
            if todo and todo[0][0] + LAG <= n:
                k, s, d = todo.pop(0); a(f"s_waitcnt vmcnt({n - k})"); perms(s, d)
        EH = self.o("eh", 2)
        while len(todo) > EH:
            k, s, d = todo.pop(0); a(f"s_waitcnt vmcnt({17 - k})"); perms(s, d)
        self.stamp(7)
        a(f"""
        s_barrier
        ds_read_b128 v[28:31], v235
        ds_read_b128 v[32:35], v235 offset:1024
        s_mov_b32 s58, 0x00ff00ff
        s_mov_b32 s59, 0x00ff00ff
        """)
        rest = []
        n0 = len(a.l)
        for k, s, d in todo:
            a(f"s_waitcnt vmcnt({17 - k})"); perms(s, d)
        rest = a.l[n0:]; del a.l[n0:]
        for _ in range(9):
            if rest: a(rest.pop(0))
        a("s_waitcnt lgkmcnt(0)")
        self.stamp(8)
        A = lambda j, s: vr(OP + 32 * s + 4 * j, 4) if j < 8 else vr(EX + 4 * s, 4)
        mfd = lambda j, s: a(f"v_mfma_f32_16x16x32_bf16 {vr(AC+4*j,4)}, {A(j,s)}, {'v[28:31]' if s == 0 else 'v[32:35]'}, {'0' if s == 0 else vr(AC+4*j,4)}")
        TM = 212
        def out(jh, r):
            t = TM + 8 * jh + 4 * r
            return [f"v_bitop3_b32 v{t+c}, v232, v{AC+16*jh+4*c+r+2}, v{AC+16*jh+4*c+r} bitop3:0xca" for c in range(4)] + \
                   [f"v_bitop3_b32 v{t}, v234, v233, v{t} bitop3:0xca", f"global_store_dwordx4 v{4+2*jh+r}, {vr(t,4)}, s[36:37] sc1"]
        ext = [f"v_bitop3_b32 v{AC+32}, v234, v233, v{AC+32} bitop3:0xca", f"s_mov_b64 exec, s[58:59]\nglobal_store_dwordx4 v8, {vr(AC+32,4)}, s[36:37] sc1\ns_mov_b64 exec, -1"]
        EO = EH and self.o("eho", 1)
        if EO:
            order = [(8, 0), (8, 1)] + [(j + 4 * h, s) for h in range(2) for s in range(2) for j in range(4)]
        elif EH:
            order = [(8, 0), (8, 1)] + [(j, 0) for j in range(8)] + [(j, 1) for j in range(8)]
        else:
            order = [(8, 0), (8, 1)] + [(j, s) for j in range(8) for s in range(2)]
        fill = []
        for n, (j, s) in enumerate(order):
            if s == 1 and j < 8:
                while rest: a(rest.pop(0))
            mfd(j, s)
            if rest: a(rest.pop(0))
            if rest and EO: a(rest.pop(0))
            if n == 7: fill += ext
            if (EO or not EH) and n == 12: fill += out(0, 0) + out(0, 1)
            for _ in range(2):
                if fill: a(fill.pop(0))
        if EH and not EO: fill += out(0, 0) + out(0, 1)
        for t in fill + out(1, 0) + out(1, 1): a(t)
        self.stamp(9)
        self.dump()
        a(f"""
        s_endpgm
L_slow:
        v_mov_b32 v21, 0
        v_mov_b32 v38, v26
        s_mov_b32 s10, 16
L_slow_r:
        """)
        for k in range(8): a(f"v_sub_u32 v{AC+k}, v{KY+k}, v21")
        a(f"""
        v_max3_u32 v24, v{AC}, v{AC+1}, v{AC+2}
        v_max3_u32 v24, v24, v{AC+3}, v{AC+4}
        v_max3_u32 v24, v24, v{AC+5}, v{AC+6}
        v_max_u32 v24, v24, v{AC+7}
        ds_max_u32 v38, v24 offset:96
        s_mov_b64 exec, 1
        ds_add_u32 v26, v27 offset:40
        s_mov_b64 exec, -1
L_slow_s:
        ds_read_b32 v24, v26 offset:40
        ds_read_b32 v39, v38 offset:96
        s_waitcnt lgkmcnt(0)
        v_readfirstlane_b32 s11, v24
        s_cmp_ge_u32 s11, s10
        s_cbranch_scc1 L_slow_ok
        s_sub_u32 s55, s55, 1
        s_cbranch_scc0 L_slow_s
L_slow_ok:
        v_add_u32 v21, v21, v39
        v_alignbit_b32 v24, 1, v21, 5
        ds_write_b32 v38, v24 offset:64
        v_add_u32 v38, 4, v38
        s_add_u32 s10, s10, 16
        s_cmp_le_u32 s10, 128
        s_cbranch_scc1 L_slow_r
        ds_read_b32 v23, v17 offset:64
        ds_read_b32 v13, v18 offset:64
        s_add_u32 m0, s64, {F_X}
        s_waitcnt lgkmcnt(0)
        v_and_b32 v23, 0x7ff, v23
        """)
        a(xdma.replace("@", "b"))
        a("v_mov_b32 v36, 4\ns_waitcnt vmcnt(0)")
        a(xflag.replace("@", "b"))
        a("s_branch L_dgo")
        XS, GO, UO = 40, 112, 184
        N1 = self.o("n1", 9); THR = self.o("thr", 0)
        def dma(lab, n, thr):
            a(f"""s_movk_i32 s55, {n}
{lab}:
            s_mov_b32 m0, s53
            s_add_u32 s42, s53, 73728
            global_load_lds_dwordx4 v1, s[26:27]
            s_mov_b32 m0, s42
            s_add_u32 s53, s53, 4096
            global_load_lds_dwordx4 v1, s[28:29]
            v_add_u32 v1, {32*9216}, v1
            {"s_waitcnt vmcnt(%d)" % (thr & 63) if thr else ""}
            s_sub_u32 s55, s55, 1
            s_cmp_lg_u32 s55, 0
            s_cbranch_scc1 {lab}""")
        a(f"L_gu:\ns_add_u32 s53, s53, {4096*self.R1}\nv_mov_b32 v1, v76")
        dma("L_dma1", self.P1 + self.o("px", 2), 0)
        a(f"""
        v_lshrrev_b32 v12, 1, v2
        v_min_u32 v12, 8, v12
        v_mul_u32_u24 v12, {XSTR}, v12
        v_and_b32 v13, 16, v3
        v_add_u32 v12, v12, v13
        v_add_u32 v12, {F_X + 1024}, v12
        v_mov_b32 v20, 0x3f803f80
        v_mov_b32 v21, v20
        v_mov_b32 v22, v20
        v_mov_b32 v23, v20
        ds_write_b128 v12, v[20:23]
        ; tr-read addresses v4..v7
        v_bfe_u32 v15, v0, 2, 2
        v_and_b32 v16, 3, v0
        v_lshl_add_u32 v17, v14, 3, v15
        v_bfe_u32 v18, v0, 3, 2
        v_xor_b32 v18, s51, v18
        v_lshlrev_b32 v18, 5, v18
        v_lshl_add_u32 v18, v16, 3, v18
        v_lshl_add_u32 v4, v17, 7, v18
        v_add_u32 v5, 36864, v4
        v_add_u32 v6, 73728, v4
        v_add_u32 v7, {73728+36864}, v4
        """)
        addr = f"""v_and_b32 v19, 6, v11
        v_xor_b32 v19, v19, v14
        v_lshlrev_b32 v19, 4, v19
        v_lshl_add_u32 v19, v11, 7, v19
        v_xor_b32 v20, 64, v19
        v_bfe_i32 v21, v0, 3, 1
        v_lshlrev_b32 v22, 2, v0
        v_xor_b32 v22, v22, v0
        v_and_b32 v22, 16, v22
        v_or_b32 v22, 1024, v22
        v_bfi_b32 v19, v21, v22, v19
        v_xor_b32 v22, 16, v22
        v_bfi_b32 v20, v21, v22, v20
        v_add_u32 v19, {F_X}, v19
        v_add_u32 v20, {F_X}, v20
        v_lshl_add_u32 v18, v11, 2, v26
        s_lshr_b32 s42, s51, 1
        s_lshl_b32 s42, s42, 10
        s_and_b32 s43, s51, 1
        s_lshl_b32 s43, s43, 3
        s_add_u32 s42, s42, s43
        s_add_u32 s42, s42, {F_H}
        v_add_u32 v27, s42, v3
        v_and_b32 v8, {PSTR}, v21
        v_lshl_add_u32 v8, v11, 4, v8
        s_mul_i32 s42, s50, {2*PSTR}
        s_add_u32 s42, s42, {PARTS + 72*128}
        v_add_u32 v8, s42, v8""".split("\n")
        for t in addr: a(t)
        def trs(lo, hi):
            for s in range(lo, hi):
                for m, base in ((0, GO), (1, UO)):
                    for e in range(2):
                        a(f"ds_read_b64_tr_b16 {vr(base+4*s+2*e,2)}, v{4+2*m+s//9} offset:{4096*(s%9)+512*e}")
        S1 = self.R1 + self.P1
        if self.o("ft", 0) == 1:
            a(f"""s_lshr_b32 s42, s51, 1
            s_mul_i32 s42, s42, 9
            s_add_u32 s42, s42, s54
            s_lshl_b32 s42, s42, 6
            s_add_u32 s42, s42, {9*(576 - self.R0) - 1152}
            s_and_b32 s58, s51, 1""")
            self.touch_setup(77)
        PX, N2T = self.o("px", 2), self.o("n2t", 4)
        S2 = S1 + PX + N2T
        tr2 = lambda m, s: [f"ds_read_b64_tr_b16 {vr((GO, UO)[m]+4*s+2*e,2)}, v{4+2*m+s//9} offset:{4096*(s%9)+512*e}" for e in range(2)]
        a(f"s_waitcnt vmcnt({2*PX})")
        self.stamp(10)
        a("s_barrier")
        trs(0, S1)
        if N2T:
            a("s_barrier"); dma("L_dma4", N2T, self.o("thr2", 2))
        a(f"s_mov_b32 s55, {SPIN*64}\nv_mov_b32 v23, 0x100\ns_waitcnt vmcnt(0)")
        self.stamp(12)
        a("s_barrier\ns_setprio 2")
        mid = [t for s in range(S1, S2) for m in (0, 1) for t in tr2(m, s)]
        per = -(-len(mid) // max(1, 2 * (18 - S2)))
        for i in range(18 - S2):
            for m in (0, 1):
                a(f"s_add_u32 m0, s53, {4096*i + 73728*m}\ns_nop 0\nglobal_load_lds_dwordx4 v1, s[{26+2*m}:{27+2*m}]")
                for _ in range(per):
                    if mid: a(mid.pop(0))
            a(f"v_add_u32 v1, {32*9216}, v1")
        a("s_barrier")
        for t in mid: a(t)
        self.stamp(4)
        a("""s_waitcnt vmcnt(0)
        s_mov_b64 exec, 1
        ds_add_u32 v26, v23 offset:36
        s_mov_b64 exec, -1""")
        self.stamp(5)
        a(f"""L_s6:
        ds_read_b32 v24, v26 offset:36
        s_waitcnt lgkmcnt(0)
        v_readfirstlane_b32 s61, v24
        s_cmp_eq_u32 s61, 0x80410
        s_cbranch_scc1 L_s6_ok
        s_and_b32 s60, s61, 0xffff
        s_cmp_eq_u32 s60, 0x420
        s_cbranch_scc1 L_s6_ok
        s_sub_u32 s55, s55, 1
        s_cbranch_scc0 L_s6
L_s6_ok:""")
        self.stamp(11)
        fill1 = ["v_and_b32 v7, 0xffff0000, v25", "v_rcp_f32 v16, v7", "v_lshlrev_b32 v6, 16, v25", "v_xor_b32 v25, 0x80000000, v6"]
        fill2 = []
        for r in range(28, 32): fill2.append(f"v_fmac_f32_dpp v{r}, v{r}, v25 row_newbcast:8 row_mask:0xf bank_mask:0xf")
        for r in range(4): fill2.append(f"v_mul_f32 v{36+r}, v9, v{28+r}")
        for r in range(4): fill2.append(f"v_exp_f32 v{36+r}, v{36+r}")
        for r in range(28, 32): fill2.append(f"v_mul_f32 v{r}, v{r}, v10")
        for r in range(4): fill2.append(f"v_add_f32 v{36+r}, 1.0, v{36+r}")
        for r in range(4): fill2.append(f"v_rcp_f32 v{36+r}, v{36+r}")
        for r in range(4): fill2.append(f"v_mul_f32 v{28+r}, v{28+r}, v{36+r}")
        fill1 += [f"v_mul_f32 v16, {f2u(32.0)}, v16", f"v_mul_f32 v9, {f2u(-LOG2E)}, v16", "v_mul_f32 v10, v16, v16"]
        rdx = lambda s: a(f"ds_read_b128 {vr(XS+4*s,4)}, v{19+(s&1)} offset:{XSTR*(s>>1)}")
        mf = lambda m, s: a(f"v_mfma_f32_16x16x32_bf16 {('v[28:31]', 'v[32:35]')[m]}, {vr((GO, UO)[m]+4*s,4)}, {vr(XS+4*s,4)}, {'0' if s==0 else ('v[28:31]', 'v[32:35]')[m]}")
        I = self.o("gi", 5)
        order = [(m, s) for s in range(I) for m in (0, 1)] + [(0, s) for s in range(I, 18)] + [(1, s) for s in range(I, 18)]
        rds = []
        for n, (m, s) in enumerate(order):
            if m == 0: rds.append((f"ds_read_b128 {vr(XS+4*s,4)}, v{19+(s&1)} offset:{XSTR*(s>>1)}", n))
            if s >= S2: rds += [(t, n) for t in tr2(m, s)]
            if n == 14: rds += [("ds_read_b32 v25, v18 offset:448", n), ("ds_read_b32 v13, v18 offset:64", n)]
        fill1 = [t.replace("v7", "v15").replace("v6", "v12") for t in fill1]
        q = []; lastg = max(n for n, o in enumerate(order) if o[0] == 0)
        for _ in range(6): t = rds.pop(0); a(t[0]); q.append(t[1])
        for n, (m, s) in enumerate(order):
            if q and q[0] <= n:
                k = sum(1 for z in q if z <= n + (2 if n else 0)); q = q[k:]
                a(f"s_waitcnt lgkmcnt({len(q)})")
            assert not rds or rds[0][1] > n
            mf(m, s)
            c = 0
            while rds and len(q) < 14 and (c < 1 or (c < 2 and rds[0][1] <= n + 9)):
                t = rds.pop(0); a(t[0]); q.append(t[1]); c += 1
            while c < 2 and n > 14 and fill1: a(fill1.pop(0)); c += 1
            while c < 2 and n >= lastg + 4 and not fill1 and fill2: a(fill2.pop(0)); c += 1
        assert not fill1 and not rds
        self.stamp(7)
        while fill2: a(fill2.pop(0))
        for r in range(32, 36): a(f"v_fmac_f32_dpp v{r}, v{r}, v25 row_newbcast:8 row_mask:0xf bank_mask:0xf")
        for r in range(4): a(f"v_mul_f32 v{28+r}, v{28+r}, v{32+r}")
        a(f"""
        v_cvt_pk_bf16_f32 v28, v28, v29
        v_cvt_pk_bf16_f32 v29, v30, v31
        ds_write_b64 v27, v[28:29]
        s_waitcnt lgkmcnt(0)
        """)
        self.stamp(8)
        a(f"""
        s_barrier
        s_cmp_lg_u32 s{S_W}, 4
        s_cbranch_scc1 L_gu_end
        v_lshlrev_b32 v36, 5, v13
        v_not_b32 v37, v36
        v_ashrrev_i32 v38, 31, v37
        v_or_b32 v38, 0x80000000, v38
        v_xor_b32 v36, v36, v38
        v_and_b32 v36, 0xffff0000, v36
        v_mul_f32 v36, {f2u(-LOG2E)}, v36
        v_exp_f32 v36, v36
        v_bfe_u32 v4, v37, 5, 11
        v_mov_b32 v6, v12
        v_mov_b32 v7, v15
        v_add_f32 v36, 1.0, v36
        v_rcp_f32 v5, v36
        v_lshl_or_b32 v4, v4, 8, s{S_T8}
        s_mov_b64 exec, 0xffff
        global_store_dwordx4 v8, v[4:7], s[36:37] sc1
        s_cmp_lg_u32 s50, 0
        s_cbranch_scc1 L_gu_end
        v_mov_b32 v9, {EPOCH}
        v_mov_b32 v10, s38
        s_mov_b64 exec, 1
        global_store_dword v9, v10, s[36:37]
L_gu_end:
        """)
        self.dump()
        a("s_endpgm")

    def conv(self):
        a = self.a
        BAND, ST = 40, 224
        T64 = self.o("tile64", 1)
        a(f"""
L_conv:
        s_cmp_eq_u32 s52, 0
        s_cbranch_scc1 L_cprio
        s_setprio {self.o("pt", 1)}
L_cprio:
        s_lshl_b32 s42, s52, 8
        s_add_u32 m0, s55, s42
        s_waitcnt vmcnt(2)
        s_lshr_b32 s43, s{S_W}, 1
        {"s_cmp_lg_u32 s43, 1" if self.o("e1", 0) else "s_cmp_lt_u32 s51, 2"}
        s_cbranch_scc1 L_cw
        s_waitcnt vmcnt(1)
L_cw:
        {self.fs(1, "cf")}
        v_lshlrev_b32 v70, 16, v70
        v_mul_f32 v70, {f2u(LOG2E)}, v70
        v_exp_f32 v70, v70
        """)
        for r in range(64, 70): a(f"v_lshlrev_b32 v{r}, 16, v{r}")
        a(f"""
        v_cvt_pk_bf16_f32 v70, v70, v70
        v_and_b32 v70, 0xffff0000, v70
        v_mul_f32 v64, v70, v64
        v_mul_f32 v65, v70, v65
        v_mul_f32 v70, {f2u(1024.0)}, v70
        v_mul_f32 v64, {f2u(LOG2E)}, v64
        v_mul_f32 v65, {f2u(INV2PI)}, v65
        v_mul_f32 v66, v70, v66
        v_mul_f32 v67, v70, v67
        """)
        def touch(cond, lab):
            return f"""{cond}
            s_cbranch_scc0 {lab}
            global_load_dword v1, v76, s[56:57]
{lab}:"""
        T2 = f"s_cmp_eq_u32 s47, 9\ns_cbranch_scc0 L_ct2\nv_add_u32 v76, {352*9216}, v76\nglobal_load_dword v1, v76, s[56:57]\nL_ct2:"
        if not self.o("e1", 0): a(touch("s_cmp_eq_u32 s48, 1", "L_ct1"))
        T3 = touch(f"s_cmp_lt_u32 s{S_W}, {self.o('n3', 2)}", "L_ct3"); self.T3 = T3
        t2at, t3at, TA = self.o("t2at", 8), self.o("t3at", 32), self.o("tile_at", 28)
        if t2at == 0: a(T2)
        E = ((22, 1.0, True), (24, 16.0, False), (26, 512.0, True))
        for k, (d, e, cj) in enumerate(E):
            if k: a(f"v_mul_f32 v{12+k}, {f2u(e)}, v64\nv_mul_f32 v{16+k}, {f2u(e)}, v65")
        for k, (d, e, cj) in enumerate(E): a(f"v_exp_f32 v{12+k}, v{12+k if k else 64}\nv_fract_f32 v{16+k}, v{16+k if k else 65}")
        a("""v_pk_mul_f32 v[20:21], v[68:69], v[66:67] op_sel:[0,0] op_sel_hi:[0,1] neg_hi:[0,1]
        v_pk_fma_f32 v[90:91], v[68:69], v[66:67], v[20:21] op_sel:[1,1,0] op_sel_hi:[1,0,1] neg_lo:[0,1,0] neg_hi:[0,1,0]""")
        for k, (d, e, cj) in enumerate(E): a(f"v_cos_f32 v{d}, v{16+k}\nv_sin_f32 v{d+1}, v{16+k}")
        a("v_mov_b32 v34, 0x3f80\nds_write_addtid_b32 v34")
        for k, (d, e, cj) in enumerate(E):
            a(f"v_mul_f32 v{d}, v{12+k}, v{d}\nv_mul_f32 v{d+1}, {'-' if cj else ''}v{12+k}, v{d+1}")
        H = lambda e: 90 + 2 * e
        gops = []
        for e in range(1, 17): gops.append((H(e), H(e - 1), 22, [32 + e]))
        for k, e in enumerate((0, 4, 8, 12, 16)):
            gops.append((H(e), H(e), 26, ([49 + 4 * k] if k < 4 else []) + ([46 + 4 * k] if k > 0 else [])))
        for k, e in enumerate((8, 16)): gops.append((H(e), H(e), 26, [51 + 4 * k]))
        for k, e in enumerate((8, 16)): gops.append((H(e), H(e), 26, [59 + 4 * k]))
        a(f"""v_cvt_pk_bf16_f32 v35, v90, v91
        ds_write_addtid_b32 v35 offset:{32*ROW}
        v_cvt_pk_bf16_f32 v36, v24, v25
        ds_write_addtid_b32 v36 offset:{ROW}""")
        self.tile_ld = [f"global_load_dwordx4 {vr(40+4*k,4)}, v6, s[{12+2*k}:{13+2*k}] sc1" for k in range(4)]
        self.stat_ld = [f"global_load_dwordx4 {vr(ST+4*k,4)}, v{(4, 7)[k>>1]}, s[36:37] offset:{-4096 if k%2==0 else 0} sc1" for k in range(4)]
        def hp_only(n, txt):
            return f"s_cmp_eq_u32 s52, 0\ns_cbranch_scc1 L_hp{n}\n{txt}\nL_hp{n}:"
        ins = {TA: hp_only(0, f"""v_bfe_u32 v12, v0, 2, 6
                v_and_b32 v6, 0x30, v3
                v_lshl_add_u32 v6, v12, {6 if T64 else 7}, v6
                {self.tile_ld[0]}
                {self.tile_ld[1]}"""),
               TA + 3: hp_only(1, self.tile_ld[2] + "\n" + self.tile_ld[3])}
        salu = []
        for k in range(4):
            salu += [f"s_bfe_u32 s43, s{S_TT}, {(2<<16) | (2*k)}", "s_mul_i32 s43, s43, 0x20004000", f"s_and_b32 s{4+k}, s43, 0x40004000"]
        salu += ["s_sub_u32 s8, s52, 1", "s_lshl_b32 s9, s52, 2", "s_and_b32 s10, s8, 2056", "s_add_u32 s10, s10, 54", "s_add_u32 s10, s10, s62",
                 "s_lshl_b32 s11, s52, 6", "s_sub_u32 s11, s62, s11", f"s_add_u32 s11, s11, {K8 + 254}",
                 ] + (["s_lshl_b32 s42, s50, 14"] if T64 else ["s_lshr_b32 s42, s50, 1", "s_lshl_b32 s42, s42, 15", "s_and_b32 s43, s50, 1", "s_lshl_b32 s43, s43, 6", "s_add_u32 s42, s42, s43"]) + [f"s_add_u32 s42, s42, {TILE}",
                 "s_add_u32 s12, s36, s42\ns_addc_u32 s13, s37, 0"]
        for k in range(1, 4): salu.append(f"s_add_u32 s{12+2*k}, s12, {(4096 if T64 else 8192)*k}\ns_addc_u32 s{13+2*k}, s13, 0")
        dup = []
        a(self.fs(10, "cf"))
        for i in range(2, 32):
            t = 34 + (i & 1) * 2
            cmul(a, 28, 24 if i == 2 else 28, 24, 30)
            a(f"v_cvt_pk_bf16_f32 v{t}, v28, v29")
            if salu: a(salu.pop(0))
            a(f"ds_write_addtid_b32 v{t} offset:{i*ROW}")
            if i - 2 < len(gops):
                d, s, z, rows = gops[i - 2]
                cmul(a, d, s, z, 32)
                tg = t + 1 if len(rows) == 1 else 12 + 1 + len(dup)
                a(f"v_cvt_pk_bf16_f32 v{tg}, v{d}, v{d+1}")
                if salu: a(salu.pop(0))
                a(f"ds_write_addtid_b32 v{tg} offset:{rows[0]*ROW}")
                if len(rows) > 1: dup.append(f"ds_write_addtid_b32 v{tg} offset:{rows[1]*ROW}")
            if i == 31:
                for t in dup: a(t)
            if i in ins:
                assert not salu
                a(ins[i])
            if i == 16: a(self.fs(9, "cf"))
            if i == t2at: a(T2)
            if i == t3at: a(T3)
        self.stamp(4)
        band = f"""v_lshlrev_b32 v5, 3, v9
        v_mov_b32 v6, {0x7f << 5}
        v_lshlrev_b32 v6, v8, v6
        v_bfe_u32 v6, v6, v5, 8
        v_lshl_or_b32 v6, v6, 15, v6""".split("\n")
        for j in range(4): band += [f"v_and_b32 v{BAND+j}, {0x10001 << (2*j)}, v6", f"v_mul_u32_u24 v{BAND+j}, {0x3f80 >> (2*j)}, v{BAND+j}"]
        band += [f"v_mov_b32 v6, {0x1ff << 4}", "v_lshlrev_b32 v6, v8, v6", "v_bfe_u32 v6, v6, v5, 8", "v_lshl_or_b32 v6, v6, 15, v6"]
        for j in range(4): band += [f"v_and_b32 v{BAND+4+j}, {0x10001 << (2*j)}, v6", f"v_mul_u32_u24 v{BAND+4+j}, {0x3f80 >> (2*j)}, v{BAND+4+j}"]
        self.band = band
        a("s_waitcnt lgkmcnt(0)\ns_barrier")
        self.stamp(11)
        fill = f"""v_add_u32 v14, 1, v9
        v_and_b32 v14, 6, v14
        v_add_u32 v14, v14, v14
        v_sub_u32 v14, 2112, v14
        v_and_b32 v14, s8, v14
        v_lshl_add_u32 v17, v8, 2, s62
        v_mul_u32_u24 v18, {KS}, v9
        v_add3_u32 v14, v14, v18, v17
        v_min_u32 v15, s9, v8
        v_sub_u32 v15, v15, v9
        v_lshl_add_u32 v15, v15, 1, v18
        v_add_u32 v15, s10, v15
        v_and_b32 v18, 32, v0
        v_add_u32 v18, v18, v8
        v_bfe_i32 v19, v0, 4, 1
        v_add_u32 v18, v18, v18
        v_sub_u32 v18, v19, v18
        v_lshl_add_u32 v18, v18, 1, s11""".split("\n")
        self.kfill = fill
        a("s_cmp_eq_u32 s52, 0\ns_cbranch_scc0 L_helper")
        self.mfma_waves()
        self.helper()

    def kg(self, extra, tail, h):
        a = self.a
        fill = extra + self.kfill if h else self.kfill + extra
        per = (len(fill) - 8 + 3) // 4 if tail else (len(fill) - 8 + 6) // 7
        def F(n):
            for _ in range(n):
                if fill: a(fill.pop(0))
        for s in range(8):
            a(f"""ds_read_b128 {vr(128+4*s,4)}, v79 offset:{16*s}
            ds_read_b128 {vr(160+4*s,4)}, v78 offset:{32*ROW+16*s}
            ds_read_b128 {vr(192+4*s,4)}, v80 offset:{48*ROW+16*s}""")
            if s == 3: F(8)
            if s >= 4: self.kg_mfma(s - 4, 12); F(per)
        n = 0
        for s in range(4, 8):
            if tail:
                a(tail[s - 4]); n += 1
            self.kg_mfma(s, 3 * (7 - s) + n)
            if s < 7: F(per)
        assert not fill
        a("s_barrier")
        self.stamp(5)
        a(f"""
        ds_write_b32 v14, v84
        ds_write_b32 v17, v84 offset:{K8+256}
        """)
        if h:
            a("""v_readlane_b32 s42, v26, 63
            v_bitop3_b32 v19, v19, v26, v25 bitop3:0xca
            v_cvt_pk_bf16_f32 v28, v24, v22
            v_cvt_pk_bf16_f32 v29, v20, v20""")
        else:
            a("""v_add_f32 v20, v20, v71
            v_bitop3_b32 v19, v19, v26, v25 bitop3:0xca
            v_readlane_b32 s42, v20, 0
            v_cvt_pk_bf16_f32 v28, v23, v22
            v_cvt_pk_bf16_f32 v29, v21, v20""")

    def copies(self, extra, h):
        a = self.a
        pend = [f"v_cvt_pk_bf16_f32 v30, v24, v{24 if h else 23}", f"v_cvt_pk_bf16_f32 v31, v22, v{20 if h else 21}", "v_cvt_pk_bf16_f32 v32, v26, v19", "v_cvt_pk_bf16_f32 v33, v25, v25",
                "v_cvt_pk_bf16_f32 v34, v26, v26", "v_cvt_pk_bf16_f32 v35, v19, v25", "v_cvt_pk_bf16_f32 v27, v27, s42"] + extra
        n = 0
        for t in range(2):
            for par in range(2):
                for ad in (81, 82):
                    for k in range(2):
                        a(f"ds_write_b32 v{ad}, v{28+4*t+2*par+k} offset:{1024*(1-t) + par*(KS-4) + 4*k}")
                        n += 1
                        for _ in range(1 if n <= 7 else 3):
                            if pend: a(pend.pop(0))
        a("ds_write_b16_d16_hi v15, v27\nds_write_b16 v18, v27")
        while pend: a(pend.pop(0))

    def kg_mfma(self, s, cnt):
        a = self.a
        a(f"s_waitcnt lgkmcnt({cnt})")
        a(f"v_mfma_f32_16x16x32_bf16 v[20:23], {vr(160+4*s,4)}, {vr(128+4*s,4)}, {'0' if s==0 else 'v[20:23]'}")
        a(f"v_mfma_f32_16x16x32_bf16 v[24:27], {vr(192+4*s,4)}, {vr(128+4*s,4)}, {'0' if s==0 else 'v[24:27]'}")

    def mfma_waves(self):
        a = self.a
        KR = lambda i, j: 128 + 32 * i + 4 * j
        K32, TT, BAND, VP = 12, 16, 40, 92
        ACC = lambda g: (80, 84, 32, 36, 48, 52, 56, 60)[g]
        URING = [64, 68, 72, 76, 108, 112, 116, 120, 124]
        VFT = lambda tau: (80, 32)[tau & 1]
        addr = f"""v_and_b32 v10, 3, v8
        v_mul_u32_u24 v10, {KS - 2}, v10
        v_lshl_add_u32 v11, v8, 1, v9
        v_mul_u32_u24 v4, 17, v9
        v_sub_u32 v4, v4, v11
        s_add_u32 s43, s62, {24 + 3*KS}
        v_sub_u32 v10, v4, v10
        v_add_u32 v10, s43, v10
        v_lshl_add_u32 v11, v11, 4, s63
        v_lshlrev_b32 v7, 5, v8
        v_lshl_add_u32 v7, v9, 3, v7
        s_lshl_b32 s43, s51, 12
        s_add_u32 s43, s43, {YBASE}
        v_add_u32 v7, s43, v7
        v_lshlrev_b32 v4, 2, v9
        v_sub_u32 v4, v4, v8
        s_add_u32 s43, s62, {K8 + 60}
        v_lshl_add_u32 v4, v4, 2, s43
        s_lshl_b32 s43, s51, 2
        s_add_u32 s43, s43, {CFL}
        v_mov_b32 v88, s43""".split("\n")
        ds = f"""v_add_u32 v72, -1, v2
        v_lshlrev_b32 v71, 16, v71
        v_and_b32 v71, v71, v72
        v_mul_f32 v71, {f2u(1024.0)}, v71""".split("\n")
        self.kg(ds + ([self.T3] if self.o("t3at", 32) == 32 else []) + addr, None, 0)
        self.copies(self.band, 0)
        self.stamp(12)
        if self.o("t3at", 32) == 33: a(self.T3)
        a(f"s_waitcnt lgkmcnt(0)\ns_barrier\ns_setprio {self.o('pm', 1)}")
        self.stamp(7)
        ops = []; first = set()
        def mm(accreg, A, B, fresh=False):
            c0 = fresh or accreg not in first; first.add(accreg)
            ops.append(("m", accreg, A, B, c0))
        U = lambda nu, ph: ("U", nu, ph)
        def cls(g0, j):
            n = 0
            for ip in range(max(0, g0 - 3), g0 + 2):
                for g in (g0, g0 + 1):
                    i = g - ip
                    if 0 <= i <= 3:
                        mm(ACC(g), ("K", i, j), U(8 * ip - j, g0)); n += 1
                        if j == 0 and g0 > 0 and n in (3, 4): ops.append(("y", g0 - 2 + (n == 4)))
            if j == 0 and g0 > 0: ops.append(("flag",))
        def vgen(tau):
            mm(VFT(tau), U(8 * tau, 9), ("R", BAND), True); mm(ACC(4 + tau), ("K32",), U(8 * tau, 9))
            mm(VFT(tau) + 4, ("US", 8 * tau), ("R", BAND + 4), True)
        def win(g, tau): mm(ACC(g), ("R", VP + 4 * tau), ("T", g - tau))
        for j in range(8): cls(0, j)
        for j in range(8): cls(2, j)
        cls(4, 0); cls(4, 1); vgen(0); vgen(1)
        cls(4, 2); ops.append(("cvtV", 0))
        cls(4, 3); ops.append(("cvtV", 1))
        cls(4, 4); win(4, 0); win(5, 1); win(5, 0)
        for j in range(5, 8): cls(4, j)
        cls(6, 0); vgen(2); vgen(3)
        cls(6, 1); ops.append(("cvtV", 2)); win(6, 1); win(7, 1)
        cls(6, 2); ops.append(("cvtV", 3)); win(6, 0); win(7, 0)
        cls(6, 3); win(6, 2); win(7, 3); win(7, 2)
        for j in range(4, 8): cls(6, j)
        ops.append(("y", 6)); ops.append(("y", 7)); ops.append(("flag",))
        assert sum(o[0] == "m" for o in ops) == 230
        need = []; seen = set(); last = {}
        for k, o in enumerate(ops):
            if o[0] == "m":
                for x in (o[2], o[3]):
                    last[x] = k
                    if x[0] != "R" and x not in seen:
                        seen.add(x)
                        if x[0] in ("U", "US"): need.append((x, k, 1))
                        else: need += [(x, k, 0), (x, k, 1)]
        reg = {}; free = list(URING); q = []
        def issue(x, hf):
            if x[0] in ("U", "US"):
                r = free.pop(0)
                off = 16 * (28 + 4 * x[1]) - (16 if x[0] == "US" else 0)
                a(f"ds_read_b128 {vr(r,4)}, v11 offset:{off}")
            elif x[0] in ("K", "K32"):
                r = KR(x[1], x[2]) if x[0] == "K" else K32
                mu = x[2] + 8 * x[1] if x[0] == "K" else 32
                a(f"ds_read_b64 {vr(r+2*hf,2)}, v10 offset:{64*(32-mu)+8*hf}")
            else:
                r = TT + 4 * (x[1] - 4); o = 16 * (7 - x[1]) + 2 * hf
                a(f"ds_read2_b32 {vr(r+2*hf,2)}, v4 offset0:{o} offset1:{o+1}")
            if hf: reg[x] = r
            q.append(x if hf else None)
        def wait_for(keys):
            nonlocal q
            pos = max([k for k, o in enumerate(q) if o in keys], default=-1)
            if pos >= 0:
                a(f"s_waitcnt lgkmcnt({min(15, len(q)-1-pos)})"); q = q[pos + 1:]
        AHEAD = self.o("ahead", 14); WG = self.o("wgrp", 4); URG = self.o("urg", 9)
        nfl = 0; side = []
        for k, o in enumerate(ops):
            if o[0] == "y":
                r = ACC(o[1])
                side += [f"v_cvt_pk_bf16_f32 v{r}, v{r}, v{r+1}", f"v_cvt_pk_bf16_f32 v{r+1}, v{r+2}, v{r+3}", f"ds_write_b64 v7, {vr(r,2)} offset:{512*o[1]}"]
                continue
            if o[0] == "flag":
                nfl += 1
                side += [f"ds_write_b32 v88, v88 offset:{16*(nfl-1)}\n" + (self.fs(nfl, "barstamp") if nfl <= 3 else "")]
                continue
            if o[0] == "cvtV":
                side += [f"v_cvt_pk_bf16_f32 v{VP+4*o[1]+r}, v{VFT(o[1])+4+r}, v{VFT(o[1])+r}" for r in range(4)]
                continue
            if o[2][0] == "R" or o[3][0] == "R":
                if o[2][0] == "R" and any(f"v{o[2][1]}," in t or f"v{o[2][1]+3}," in t for t in side) or o[3][0] == "R" and side:
                    for t in side:
                        a(t)
                        if "ds_" in t: q.append(None)
                    side = []
            n = 0
            ok = lambda: need and (free or need[0][0][0] not in ("U", "US")) and len(q) < 15
            while ok() and need[0][1] <= k + AHEAD and (k == 0 and n < 14 or n < 1 or (need[0][1] <= k + URG and n < 2) or need[0][1] <= k):
                x = need.pop(0); issue(x[0], x[2]); n += 1
            assert all(x[0] == "R" or x in reg for x in (o[2], o[3])), (k, o)
            if any(x in q for x in (o[2], o[3])):
                keys = []
                for oo in ops[k:k + (WG if k > 0 else 1)]:
                    if oo[0] == "m": keys += [oo[2], oo[3]]
                wait_for(keys); n += 1
            if side: n = min(n, 1)
            while side and n < 2:
                t = side.pop(0); a(t); n += 1
                if "ds_" in t: q.append(None)
            R = lambda x: vr(x[1] if x[0] == "R" else reg[x], 4)
            a(f"v_mfma_f32_16x16x32_bf16 {vr(o[1],4)}, {R(o[2])}, {R(o[3])}, {'0' if o[4] else vr(o[1],4)}")
            for x in (o[2], o[3]):
                if x[0] in ("U", "US") and last[x] == k: free.append(reg[x])
        for t in side: a(t)
        self.stamp(8)
        a(f"""
        s_cmp_lg_u32 s{S_W}, 0
        s_cbranch_scc1 L_mw_end
        s_mul_i32 s42, s50, {PSTR}
        s_add_u32 s42, s42, {PARTS + 4096}
        v_add_u32 v18, s42, v3
        v_add_u32 v20, 4096, v18
        v_and_b32 v21, 0x70, v3
        s_add_u32 s42, s42, {72*128 - 4096}
        v_add_u32 v21, s42, v21
        s_movk_i32 s61, {SPIN}
        v_lshl_add_u32 v24, v9, 1, s54
        v_mov_b32 v35, s{S_T8}
        {"s_barrier" if self.o("pollafter", 0) else ""}
L_part_poll:
        global_load_dwordx4 v[164:167], v21, s[36:37] sc1
        """)
        for k in range(9):
            a(f"global_load_dwordx4 {vr(128+4*k,4)}, v{18 if k < 8 else 20}, s[36:37] offset:{1024*k-4096 if k < 8 else 0} sc1")
        a(f"""v_mul_u32_u24 v26, {UCH}, v9
        v_add_u32 v26, {UBASE+UPAD}, v26
        v_lshlrev_b32 v27, 12, v9
        s_waitcnt vmcnt(9)
        v_bfe_u32 v28, v164, 8, 11
        v_lshl_add_u32 v29, v28, 1, v26
        v_lshl_add_u32 v30, v28, 1, v27
        ds_read_b128 v[36:39], v88 offset:48
        ds_read_u16_d16_hi v31, v29
        ds_read_u16_d16_hi v32, v30 offset:{YBASE}
        v_mul_u32_u24 v28, 1152, v28
        v_add_u32 v28, v28, v24
        v_xor_b32 v22, v35, v164
        s_waitcnt vmcnt(8)
        v_xor_b32 v128, v35, v128
        v_or_b32 v22, v22, v128
        """)
        for k in range(1, 9):
            a(f"""s_waitcnt vmcnt({8-k})
            v_xor_b32 v{128+4*k}, v35, v{128+4*k}
            v_pk_add_f32 v[130:131], v[130:131], {vr(130+4*k,2)}
            v_pk_add_f32 v[128:129], v[128:129], {vr(128+4*k,2)}""")
            if k % 2 == 0: a(f"v_bitop3_b32 v22, v22, v{124+4*k}, v{128+4*k} bitop3:0xfe")
        a(f"""
        s_waitcnt lgkmcnt(0)
        v_bitop3_b32 v36, v37, v38, v39 bitop3:0x7f
        v_and_b32 v36, {CFL & 0xf0}, v36
        v_or_b32 v22, v22, v36
        v_and_b32 v22, 0xff, v22
        v_cmp_ne_u32 vcc, 0, v22
        v_permlane32_swap_b32 v128, v130
        s_sub_u32 s61, s61, 1
        s_cselect_b64 vcc, 0, vcc
        s_cbranch_vccnz L_part_poll
        """)
        if not self.o("cf", 0): self.stamp(9)
        a(f"""
        v_permlane32_swap_b32 v129, v131
        v_add_f32 v128, v128, v130
        v_add_f32 v129, v129, v131
        v_and_b32 v31, 0xffff0000, v31
        v_and_b32 v32, 0xffff0000, v32
        v_permlane16_swap_b32 v128, v129
        v_add_f32 v128, v128, v129
        v_mul_f32 v31, {f2u(32.0)}, v31
        v_mul_f32 v32, {f2u(1/32)}, v32
        v_add_f32_dpp v128, v128, v128 row_ror:8 row_mask:0xf bank_mask:0xf
        v_fma_f32 v128, v128, v165, v31
        v_mul_f32 v33, {f2u(-LOG2E)}, v128
        v_exp_f32 v33, v33
        v_fma_f32 v34, v31, v167, v166
        v_add_f32 v33, 1.0, v33
        v_rcp_f32 v33, v33
        v_mul_f32 v128, v128, v32
        v_fmac_f32 v34, v128, v33
        v_cvt_pk_bf16_f32 v34, v34, v34
        {"" if self.o("pollafter", 0) else "s_barrier"}
        global_store_short v28, v34, s[32:33]
        """)
        if not self.o("cf", 0): self.stamp(10)
        a("L_mw_end:")
        self.dump()
        a("s_endpgm")

    def helper(self):
        a = self.a
        ST = 224
        a("L_helper:")
        st0 = f"""v_and_b32 v62, 255, v0
        v_lshlrev_b32 v4, 4, v62
        v_add_u32 v4, {STATS + 4096}, v4
        v_add_u32 v7, 8192, v4""".split("\n") + self.stat_ld
        pre0 = f"""v_and_b32 v5, 3, v0
        v_mul_u32_u24 v5, {UCH}, v5
        v_lshl_add_u32 v5, v12, 4, v5
        v_add_u32 v5, {UBASE+UPAD}, v5
        v_mov_b32 v56, s4
        v_mov_b32 v57, s5
        v_mov_b32 v58, s6
        v_mov_b32 v59, s7
        v_mov_b32 v63, 0x40004000
        v_and_b32 v88, 3, v0
        v_lshlrev_b32 v88, 2, v88
        v_add_u32 v88, {CFL}, v88
        s_movk_i32 s61, {SPIN}
        v_lshlrev_b32 v37, 2, v62
        v_add_u32 v64, {UBASE+UPAD}, v37
        v_add_u32 v65, {UBASE+UPAD+UCH}, v37
        v_add_u32 v66, {UBASE+UPAD+2*UCH}, v37
        v_add_u32 v67, {UBASE+UPAD+3*UCH}, v37
        v_add_u32 v37, {YBASE}, v37
        v_mul_u32_u24 v36, 2304, v62
        v_add_u32 v36, s54, v36
        v_mov_b32 v8, {f2u(-32*LOG2E)}
        v_mov_b32 v9, 0xffff0000
        v_mov_b32 v10, {f2u(32.0)}
        v_lshlrev_b32 v62, 6, v62
        v_xor_b32 v62, s{S_T16}, v62""".split("\n")
        ust = ["\n".join([f"v_xor_b32 v{40+4*k+r}, v{56+r}, v{40+4*k+r}" for r in range(4)] + [f"ds_write_b128 v5, {vr(40+4*k,4)} offset:{1024*k}"]) for k in range(4)]
        chk = ["v_bitop3_b32 v38, v40, v41, v42 bitop3:0xfe"] + [f"v_bitop3_b32 v38, v38, v{r}, v{r+1} bitop3:0xfe" for r in range(43, 55, 2)]
        chk += ["v_bitop3_b32 v38, v38, v55, v63 bitop3:0xa8", "v_cmp_ne_u32 vcc, 0, v38"]
        if self.o("ulate", 1):
            self.kg(st0 + pre0[:8], None, 1)
            self.copies(pre0[8:], 1)
            a("s_waitcnt vmcnt(4)")
            for t in ust + chk: a(t)
        else:
            self.kg(st0 + pre0[:8], [f"s_waitcnt vmcnt({7-k})\n" + t for k, t in enumerate(ust)], 1)
            self.copies(pre0[8:] + chk, 1)
        self.stamp(12)
        a(f"""s_cbranch_vccz L_tile_ok
L_tile_chk:
        {chr(10).join(self.tile_ld)}
        s_waitcnt vmcnt(0)""")
        for t in ust + chk: a(t)
        a("""s_sub_u32 s61, s61, 1
        s_cselect_b64 vcc, 0, vcc
        s_cbranch_vccnz L_tile_chk
L_tile_ok:""")
        self.stamp(6)
        a(f"s_mov_b32 s61, {SPIN*64}\ns_waitcnt vmcnt(0)\nL_h_poll:\nv_mov_b32 v41, 0")
        for k in range(8):
            a(f"v_xor_b32 v42, {(0x7ff ^ (512*(k>>1)) ^ (k&1)) << 5}, v{ST+1+2*k}\nv_bitop3_b32 v41, v41, v42, v62 bitop3:0xf6")
        a(f"""v_and_b32 v41, 0xffff, v41
        v_cmp_ne_u32 vcc, 0, v41
        s_cbranch_vccz L_h_ok
        {chr(10).join(self.stat_ld)}
        s_waitcnt vmcnt(0)
        s_sub_u32 s61, s61, 64
        s_cbranch_scc0 L_h_poll
L_h_ok:
        """)
        a(f"s_setprio 2\ns_waitcnt lgkmcnt(0)\ns_barrier")
        self.stamp(7)
        B = lambda s: 96 + 32 * s
        for sp in range(2):
            for c in range(4): a(f"ds_read2st64_b32 {vr(16+8*sp+2*c,2)}, v{64+c} offset0:{8*sp} offset1:{8*sp+4}")
        RU = lambda s, c: 16 + 8 * (s >> 1) + 2 * c + (s & 1)
        def pre(s, t):
            u, g, p = B(s) + 4 * t, B(s) + 8 + 4 * t, B(s) + 24 + 2 * t
            st = ST + 4 * s + 2 * t
            for c in range(4): a(f"v_lshlrev_b32 v{u+c}, 16, v{RU(s,c)}" if t == 0 else f"v_and_b32 v{u+c}, v9, v{RU(s,c)}")
            for c in range(4): a(f"v_mul_f32 v{g+c}, v8, v{u+c}")
            for c in range(4): a(f"v_exp_f32 v{g+c}, v{g+c}")
            a(f"v_and_b32 v{p+1}, v9, v{st}")
            for c in range(4): a(f"v_add_f32 v{g+c}, 1.0, v{g+c}")
            for c in range(4): a(f"v_rcp_f32 v{g+c}, v{g+c}")
            a(f"v_lshlrev_b32 v{p}, 16, v{st}\nv_mul_f32 v{p+1}, v10, v{p+1}")
        def waitflag(s):
            lab = f"L_w{s}"
            rdy = f"""ds_read2st64_b32 v[32:33], v37 offset0:{4*s} offset1:{16+4*s}
            ds_read2st64_b32 v[34:35], v37 offset0:{32+4*s} offset1:{48+4*s}"""
            a(f"""s_setprio 2
{lab}:
            ds_read_b32 v41, v88 offset:{16*s}
            {rdy if s == 3 else ""}
            s_waitcnt lgkmcnt(0)
            v_cmp_eq_u32 vcc, 0, v41
            s_cbranch_vccz {lab}_ok
            s_sleep {1 if s == 3 else 2}
            s_sub_u32 s61, s61, 1
            s_cbranch_scc0 {lab}
{lab}_ok:""")
            if s < 3: a(rdy + "\ns_setprio 0\ns_waitcnt lgkmcnt(0)")
        def fin(s, t):
            u, g, y, p = B(s) + 4 * t, B(s) + 8 + 4 * t, B(s) + 16 + 4 * t, B(s) + 24 + 2 * t
            for c in range(4): a(f"v_lshlrev_b32 v{y+c}, 16, v{32+c}" if t == 0 else f"v_and_b32 v{y+c}, v9, v{32+c}")
            for c in range(4): a(f"v_fma_f32 v{y+c}, v{y+c}, v{g+c}, v{p+1}")
            for c in range(4): a(f"v_fma_f32 v{u+c}, v{u+c}, v{y+c}, v{p}")
            a(f"v_cvt_pk_bf16_f32 v{g}, v{u}, v{u+1}\nv_cvt_pk_bf16_f32 v{g+1}, v{u+2}, v{u+3}")
        def st(s, t):
            a(f"global_store_dwordx2 v36, {vr(B(s)+8+4*t,2)}, s[32:33] offset:{1152*t}")
            if t == 1 and s < 3: a(f"v_add_u32 v36, {512*1152}, v36")
        a("s_waitcnt lgkmcnt(4)\ns_setprio 0")
        a(self.fs(10, "barstamp"))
        todo = [(s, t) for s in range(4) for t in range(2)]
        for _ in range(self.o("hpre", 3)): pre(*todo.pop(0))
        for s in range(4):
            if s < 3: a(self.fs(s + 1, "barstamp"))
            waitflag(s)
            fin(s, 0); st(s, 0); fin(s, 1)
            if todo: pre(*todo.pop(0))
            st(s, 1)
            if todo: pre(*todo.pop(0))
        self.stamp(8)
        a("s_waitcnt vmcnt(0)")
        if not self.o("cf", 0): self.stamp(9)
        a("s_barrier")
        self.dump()
        a("L_end:\ns_endpgm")

    def post(self, t):
        if self.o("cyc", 0): t = re.sub(r"s_memrealtime s\[(7[2-9]|8\d|9[0-5]):", r"s_memtime s[\1:", t)
        if self.o("nost", 0): t = "\n".join(l for l in t.split("\n") if "global_store_dwordx2" not in l)
        if self.o("forceslow", 0): t = t.replace("0x80410", "0x90410")
        return t
    def build(self):
        self.prologue(); self.spare_pre(); self.ffn_pre(); self.conv_pre(); self.ln(); self.ffn(); self.conv()
        return HEADER + f"""; @launch grid=(256,1,1) block=(512,1,1) lds={LDSZ}
.amdgcn_target "amdgcn-amd-amdhsa--gfx950"
""" + self.post(self.a.text(self.o("verbose", 0))) + """.section .rodata,"a"
.p2align 6
""" + descriptor(KN, 256, 102)

if __name__ == "__main__":
    opt = {}
    for s in sys.argv[2:]:
        k, v = s.split("="); opt[k] = int(v)
    open(sys.argv[1], "w").write(G(**opt).build())
```

```python
import sys, re
from parts import *
import gen_v6 as V
from gen_v6 import *

KS = 1216; K8 = 4 * KS; K4 = K8 + 320
BND = LNS
YT = 1280
YOFF = 9472

class G8(V.G):
    def conv_pre(self):
        a = self.a
        E0 = "s_cmp_lg_u32 s47, 2\ns_cbranch_scc1 L_cp2\nglobal_load_dword v1, v76, s[56:57]\nL_cp2:"
        a(f"""
L_conv_pre:
        s_mul_i32 s50, s{S_XCD}, 18
        s_add_u32 s50, s50, s{S_SLOT}      ; group
        s_lshl_b32 s53, s50, 2
        s_add_u32 s53, s53, s51            ; channel
        s_lshl_b32 s42, s53, 8
        s_lshl_b32 s43, s52, 7
        s_add_u32 s42, s42, s43
        v_add_u32 v60, s42, v4
        s_lshl_b32 s54, s50, 3
        s_lshl_b32 s42, s53, 1
        v_mov_b32 v61, s42
        v_mov_b64 v[64:65], 0
        v_mov_b64 v[66:67], 0
        v_mov_b64 v[68:69], 0
        v_mov_b64 v[70:71], 0
        s_barrier
        global_load_short_d16_hi v70, v61, s[18:19]
        global_load_short_d16_hi v64, v60, s[6:7]
        global_load_short_d16_hi v65, v60, s[8:9]
        global_load_short_d16_hi v66, v60, s[10:11]
        global_load_short_d16_hi v67, v60, s[12:13]
        global_load_short_d16_hi v68, v60, s[14:15]
        global_load_short_d16_hi v69, v60, s[16:17]
        global_load_short_d16_hi v71, v61, s[20:21]
        s_lshr_b32 s42, s51, 1
        s_mul_i32 s42, s42, {3168 if self.o('ft', 0) == 2 else 2112 if self.o('ord2', 1) else 1472}
        s_and_b32 s58, s51, 1
        s_mul_i32 s43, s51, {18*64}
        s_add_u32 s43, s43, {9*64}
        s_cmp_eq_u32 s52, 0
        {"s_cselect_b32 s42, s43, s42" if self.o("ft", 0) else "s_cmovk_i32 s42, 3168"}
        {"s_cmovk_i32 s58, 2" if self.o("ft", 0) else ""}
        s_lshl_b32 s43, s{S_SLOT}, 6
        s_add_u32 s42, s42, s43
        """)
        self.touch_setup()
        a(f"""
        s_lshr_b32 s47, s{S_W}, 1
        {"" if self.o("late0", 1) else E0}
        s_mul_i32 s55, s51, {TCH}
        s_lshl_b32 s42, s52, 8
        s_add_u32 m0, s55, s42
        s_mul_i32 s63, s51, {UCH}
        s_add_u32 s63, s63, {UBASE}
        v_mov_b64 v[84:85], 0
        v_mov_b64 v[86:87], 0
        s_cmp_eq_u32 s52, 0
        s_cbranch_scc1 L_cp_m
        ; helpers: zero pad of u and the flag words
        s_setprio {self.o("pt", 1)}
        v_min_u32 v83, 29, v2
        v_lshl_add_u32 v83, v83, 4, s63
        ds_write_b128 v83, v[84:87]
        v_and_b32 v88, 0x70, v3
        v_add_u32 v88, {CFL}, v88
        ds_write_b128 v88, v[84:87]
        s_branch L_cp_e
L_cp_m:
        v_and_b32 v8, 15, v0
        v_bfe_u32 v9, v0, 4, 2
        v_and_b32 v10, 31, v0
        v_and_b32 v11, 32, v0
        v_mul_u32_u24 v78, {ROW}, v10
        v_lshl_add_u32 v78, v11, 3, v78
        v_add_u32 v78, s55, v78
        v_lshrrev_b32 v11, 1, v11
        v_lshl_add_u32 v10, v10, 5, v11
        s_add_u32 s42, s55, 1072
        v_sub_u32 v81, s42, v10
        v_lshrrev_b32 v77, 2, v10
        s_add_u32 s42, s55, {K4 + 380}
        v_sub_u32 v77, s42, v77
        v_bfe_i32 v79, v0, 4, 1
        v_sub_u32 v80, 495, v10
        v_ashrrev_i32 v80, 31, v80
        v_sub_u32 v82, 1007, v10
        v_ashrrev_i32 v82, 31, v82
        v_bfe_u32 v10, v0, 3, 2            ; copy s
        v_and_b32 v11, 7, v0               ; k
        v_mul_u32_u24 v73, {KS}, v10
        v_and_b32 v83, 4, v0
        v_lshl_add_u32 v83, v83, 4, v11
        v_lshl_add_u32 v83, v83, 4, v73
        v_lshlrev_b32 v72, 4, v10
        v_add_u32 v72, {K8 + 256}, v72
        v_sub_u32 v74, 5, v11
        v_ashrrev_i32 v74, 31, v74
        v_bfi_b32 v83, v74, v72, v83
        v_and_b32 v72, 8, v0
        v_mad_u32_u24 v72, v72, 3, v11
        v_lshlrev_b32 v72, 4, v72
        v_add_u32 v72, {K4}, v72
        v_bfe_i32 v74, v0, 5, 1
        v_bfi_b32 v83, v74, v72, v83
        v_add_u32 v83, s55, v83
        v_sub_u32 v74, 4, v11
        v_ashrrev_i32 v74, 31, v74
        v_add_u32 v72, 507, v11
        v_min_u32 v75, 2, v11
        v_bfi_b32 v74, v74, v72, v75
        v_sub_u32 v74, v74, v10
        v_lshl_add_u32 v73, v74, 1, v73
        v_min_u32 v74, 1, v10
        v_lshl_add_u32 v73, v74, 3, v73
        s_add_u32 s42, s55, 58
        v_add_u32 v73, s42, v73
        v_max_u32 v72, 4, v11
        v_mul_u32_u24 v72, 0x202, v72
        v_add_u32 v72, {0x0504 + 0x0808 - 4*0x202}, v72
        v_and_b32 v72, 0x707, v72
L_cp_e:
        """)

    def spare_pre(self):
        n0 = len(self.a.l); V.G.spare_pre(self)
        if self.o("late0", 1):
            k = self.a.l.index("    s_barrier", n0)
            del self.a.l[k:]; self.a("s_mov_b32 s49, 0\ns_branch L_lnp")
    def ffn_pre(self):
        n0 = len(self.a.l); V.G.ffn_pre(self)
        if self.o("late0", 1):
            k = self.a.l.index("    s_barrier", n0)
            del self.a.l[k:k + 1 + 4 * self.R1]
            self.a.l.insert(k, "    s_mov_b32 s49, s42")

    def setup(self):
        a = self.a
        a(f"""
        v_mul_f32 v70, {f2u(LOG2E)}, v70
        v_exp_f32 v70, v70
        v_mov_b32 v34, 0x3f80
        ds_write_addtid_b32 v34
        v_cvt_pk_bf16_f32 v70, v70, v70
        v_and_b32 v70, 0xffff0000, v70
        v_mul_f32 v64, v70, v64
        v_mul_f32 v65, v70, v65
        v_mul_f32 v70, {f2u(1024.0)}, v70
        v_mul_f32 v64, {f2u(LOG2E)}, v64
        v_mul_f32 v65, {f2u(INV2PI)}, v65
        v_mul_f32 v66, v70, v66
        v_mul_f32 v67, v70, v67
        """)
        E = ((22, 1.0, True), (24, 16.0, False), (26, 512.0, True))
        for k, (d, e, cj) in enumerate(E):
            if k: a(f"v_mul_f32 v{12+k}, {f2u(e)}, v64\nv_mul_f32 v{16+k}, {f2u(e)}, v65")
        for k, (d, e, cj) in enumerate(E): a(f"v_exp_f32 v{12+k}, v{12+k if k else 64}\nv_fract_f32 v{16+k}, v{16+k if k else 65}")
        a("""v_pk_mul_f32 v[20:21], v[68:69], v[66:67] op_sel:[0,0] op_sel_hi:[0,1] neg_hi:[0,1]
        v_pk_fma_f32 v[90:91], v[68:69], v[66:67], v[20:21] op_sel:[1,1,0] op_sel_hi:[1,0,1] neg_lo:[0,1,0] neg_hi:[0,1,0]""")
        for k, (d, e, cj) in enumerate(E): a(f"v_cos_f32 v{d}, v{16+k}\nv_sin_f32 v{d+1}, v{16+k}")
        a(f"v_cvt_pk_bf16_f32 v35, v90, v91\nds_write_addtid_b32 v35 offset:{32*ROW}")
        for k, (d, e, cj) in enumerate(E):
            a(f"v_mul_f32 v{d}, v{12+k}, v{d}\nv_mul_f32 v{d+1}, {'-' if cj else ''}v{12+k}, v{d+1}")
        a(f"v_cvt_pk_bf16_f32 v36, v24, v25\nds_write_addtid_b32 v36 offset:{ROW}")

    def ln_copy(self, conv):
        n0 = len(self.a.l)
        V.G.ln(self)
        blk = self.a.l[n0:]; del self.a.l[n0:]
        txt = "\n".join(blk)
        cut = txt.index(f"    s_cmp_lt_u32 s{S_SLOT}, 18\n    s_cbranch_scc1 L_conv")
        head, tail = txt[:cut], txt[cut:]
        if not conv:
            head = re.sub(r"    s_waitcnt vmcnt\((8|9)\)\n    s_cmp_eq_u32 s47, \d\n    s_cbranch_scc1 L_ln\n", "", head)
            tail = tail.split("\n", 2)[2]
            if self.o("late0", 1):
                i0 = head.index(f"    s_waitcnt vmcnt({self.R1})"); i1 = head.index("L_ln:")
                r1 = "".join(f"s_add_u32 m0, s49, {4096*i}\ns_nop 0\nglobal_load_lds_dwordx4 v76, s[56:57]\nv_add_u32 v76, {32*9216}, v76\n" for i in range(self.R1))
                head = head[:i0] + ("s_waitcnt vmcnt(0)\n" if self.o("late0", 1) >= 2 else "") + f"""s_cmp_lt_u32 s{S_SLOT}, 27
                s_cbranch_scc1 L_lw2
                s_cmp_lt_u32 s{S_W}, 2
                s_cbranch_scc0 L_lw1
                global_load_dword v1, v76, s[56:57]
                s_waitcnt vmcnt(1)
                s_branch L_ln
L_lw1:
                s_waitcnt vmcnt(0)
                s_branch L_ln
L_lw2:
                {r1}
                s_waitcnt vmcnt({self.R1})
""" + head[i1:]
            self.a(head + tail)
            return
        head = re.sub(r"L_ln", "L_cln", head)
        i0 = head.index("    s_waitcnt vmcnt(9)"); i1 = head.index("L_cln:")
        if self.o("late0", 1) == 2:
            head = head[:i0] + "    s_waitcnt vmcnt(8)\n    s_cmp_eq_u32 s47, 2\n    s_cbranch_scc0 L_cln\n    global_load_dword v1, v76, s[56:57]\n" + head[i1:]
        elif self.o("late0", 1) == 3:
            head = head[:i0] + "    s_waitcnt vmcnt(8)\n" + head[i1:]
        elif self.o("late0", 1):
            head = head[:i0] + "    s_cmp_eq_u32 s47, 2\n    s_cbranch_scc0 L_clw\n    global_load_dword v1, v76, s[56:57]\n    s_waitcnt vmcnt(9)\n    s_branch L_cln\nL_clw:\n    s_waitcnt vmcnt(8)\n" + head[i1:]
        else: head = head[:i0] + "    s_waitcnt vmcnt(9)\n    s_cmp_eq_u32 s47, 2\n    s_cbranch_scc1 L_cln\n    s_waitcnt vmcnt(8)\n" + head[i1:]
        j = head.rindex("    s_waitcnt lgkmcnt(0)\n    s_barrier")
        if not self.o("esetup", 0):
            self.a(head)
            return
        self.a(head[:j])
        self.a("s_cmp_eq_u32 s52, 0\ns_cbranch_scc0 L_cs1\ns_waitcnt vmcnt(1)" if self.o("early", 0) else "s_cmp_eq_u32 s52, 0\ns_cbranch_scc0 L_cs1\ns_waitcnt vmcnt(0)")
        self.setup()
        self.a("L_cs1:")
        self.a(head[j:].replace("L_cln_st:\n    s_waitcnt lgkmcnt(0)", "L_cln_st:\n    s_waitcnt vmcnt(1) lgkmcnt(0)"))

    def conv(self):
        a = self.a
        ST = 224
        T64 = self.o("tile64", 1)
        def touch(cond, lab, pre=""):
            return f"{cond}\ns_cbranch_scc0 {lab}\n{pre}\nglobal_load_dword v1, v76, s[56:57]\n{lab}:"
        T2 = touch("s_cmp_eq_u32 s47, 2", "L_ct2", "")
        T1 = touch("s_cmp_eq_u32 s47, 3", "L_ct1")
        self.T3 = touch(f"s_cmp_lt_u32 s{S_W}, {self.o('n3', 2)}", "L_ct3")
        self.T1, self.T2 = T1, T2
        t1at, t2at, t3at, TA = self.o("t1at", 40), self.o("t2at", 41), self.o("t3at", 32), self.o("tile_at", 32)
        if self.o("esetup", 0): a("s_cmp_eq_u32 s52, 0\ns_cbranch_scc1 L_cs2")
        else: a("s_waitcnt vmcnt(2)")
        if t1at == 0: a(T1)
        self.setup()
        self.tile_ld = [f"global_load_dwordx4 {vr(40+4*k,4)}, v6, s[{12+2*k}:{13+2*k}] sc1" for k in range(4)]
        self.stat_ld = [f"global_load_dwordx4 {vr(ST+4*k,4)}, v{(4, 7)[k>>1]}, s[36:37] offset:{-4096 if k%2==0 else 0} sc1" for k in range(4)]
        tadr = (["s_lshl_b32 s42, s50, 14"] if T64 else ["s_lshr_b32 s42, s50, 1", "s_lshl_b32 s42, s42, 15", "s_and_b32 s43, s50, 1", "s_lshl_b32 s43, s43, 6", "s_add_u32 s42, s42, s43"])
        tadr += [f"s_add_u32 s42, s42, {TILE}", "s_add_u32 s12, s36, s42", "s_addc_u32 s13, s37, 0"]
        for k in range(1, 4): tadr += [f"s_add_u32 s{12+2*k}, s12, {(4096 if T64 else 8192)*k}", f"s_addc_u32 s{13+2*k}, s13, 0"]
        tadr += ["v_bfe_u32 v63, v0, 2, 6", "v_and_b32 v6, 0x30, v3", f"v_lshl_add_u32 v6, v63, {6 if T64 else 7}, v6"]
        self.tile_first = "\n".join(tadr + self.tile_ld)
        a("L_cs2:")
        a(self.fs(10, "cf"))
        H = lambda e: 90 + 2 * e
        pos = {**{e: [e] for e in range(4)}, **{e: [e + 4] for e in range(4, 8)}, 8: [4, 16], 9: [5, 17], 10: [6, 18], 11: [7],
               **{e: [e] for e in range(12, 16)}, 16: [20], 17: [21], 18: [22]}
        gops = [(H(e), H(e - 1), 22, pos[e]) for e in range(1, 19)]
        gops += [(H(e), H(e), 26, r) for e, r in zip((4, 8, 12, 16), ([24], [25], [28], [29]))]
        gops += [(H(8), H(8), 26, [26]), (H(16), H(16), 26, [27]), (H(8), H(8), 26, [30]), (H(16), H(16), 26, [31])]
        dup = []
        for i in range(2, 32):
            t = 34 + (i & 1) * 2
            cmul(a, 28, 24 if i == 2 else 28, 24, 30)
            a(f"v_cvt_pk_bf16_f32 v{t}, v28, v29\nds_write_addtid_b32 v{t} offset:{i*ROW}")
            if i - 2 < len(gops):
                d, s, z, rows = gops[i - 2]
                cmul(a, d, s, z, 32)
                tg = t + 1 if len(rows) == 1 else 12 + len(dup)
                a(f"v_cvt_pk_bf16_f32 v{tg}, v{d}, v{d+1}\nds_write_addtid_b32 v{tg} offset:{(32+rows[0])*ROW}")
                if len(rows) > 1: dup.append(f"ds_write_addtid_b32 v{tg} offset:{(32+rows[1])*ROW}")
            if i == 31:
                for t in dup: a(t)
            if i == TA: a(f"s_cmp_eq_u32 s52, 0\ns_cbranch_scc1 L_hp0\n{self.tile_first}\nL_hp0:")
            if i == 16: a(self.fs(9, "cf"))
            if i == self.o("pdrop", 99): a("s_setprio 0")
            if i == t1at: a(T1)
            if i == t2at: a(T2)
            if i == t3at: a(self.T3)
        self.stamp(4)
        a("s_cmp_eq_u32 s52, 0\ns_cbranch_scc0 L_helper\ns_setprio 2\ns_waitcnt lgkmcnt(0)\ns_barrier")
        self.stamp(11)
        self.mfma_waves()
        self.helper()

    def mfma_waves(self):
        a = self.a
        KR = lambda i, j: 192 + 32 * i + 4 * j
        K16, M32, B1, B2, P1, P2, P3 = 12, 16, 20, 24, 28, 32, 36
        T3 = {4: 40, 5: M32, 6: B1, 7: B2}
        T2 = lambda d, b: 168 + 8 * (d - 2) + 4 * b
        V3 = lambda tau: 92 + 4 * tau
        V2 = lambda tau, b: 136 + 8 * (tau & 3) + 4 * b
        ACC = lambda g: 44 + 4 * (g % 6)
        VF = 108
        URING = [68, 72, 76, 80, 84, 132]
        D = 48
        fill = f"""v_add_u32 v74, -1, v2
        s_waitcnt vmcnt({0 if self.o("t3at", 32) >= 32 else 1})
        v_and_b32 v71, v71, v74
        v_mul_f32 v71, {f2u(1024.0)}, v71
        v_and_b32 v10, 3, v8
        v_add_u32 v5, 1, v10
        v_mul_u32_u24 v10, {KS - 2}, v10
        v_lshl_add_u32 v11, v8, 1, v9
        v_mul_u32_u24 v4, 17, v9
        v_sub_u32 v4, v4, v11
        v_and_b32 v5, 4, v5
        s_add_u32 s43, s55, {32 + 3*KS}
        v_lshl_add_u32 v10, v5, 1, v10
        v_sub_u32 v10, v4, v10
        v_add_u32 v10, s43, v10
        v_lshl_add_u32 v11, v11, 4, s63
        s_add_u32 s43, s55, {K8 + 252}
        v_lshrrev_b32 v75, 2, v3
        v_sub_u32 v75, s43, v75
        v_lshl_add_u32 v7, v9, 6, v3
        v_add_u32 v7, s55, v7
        v_lshlrev_b32 v4, 2, v9
        v_sub_u32 v4, v4, v8
        s_add_u32 s43, s55, {K4 + 120}
        v_lshl_add_u32 v89, v4, 3, s43
        s_add_u32 s43, s55, {K8 + 60}
        v_lshl_add_u32 v4, v4, 2, s43
        s_lshl_b32 s43, s51, 2
        s_add_u32 s43, s43, {CFL}
        v_mov_b32 v88, s43
        v_add_u32 v5, {BND}, v3""".split("\n")
        if self.o("t3at", 32) == 32: fill.insert(12, self.T3)
        late = []
        for j in range(4): late += [f"v_lshrrev_b32 v{M32+j}, 7, v{M32+j}", f"v_and_b32 v{M32+j}, 0x10001, v{M32+j}", f"v_mul_u32_u24 v{M32+j}, s59, v{M32+j}"]
        def F(n):
            for _ in range(n):
                if fill: a(fill.pop(0))
        rd = lambda s: a(f"ds_read_b128 {vr(128+8*s,4)}, v78 offset:{32*ROW+16*s}\nds_read_b128 {vr(132+8*s,4)}, v78 offset:{16*s}")
        PRE = 6
        for s in range(PRE): rd(s)
        F(6)
        for s in range(16):
            a(f"s_waitcnt lgkmcnt({2*(min(16, s+PRE) - s - 1)})")
            a(f"v_mfma_f32_32x32x16_bf16 {vr(D,16)}, {vr(128+8*s,4)}, {vr(132+8*s,4)}, {'0' if s == 0 else vr(D,16)}")
            if s + PRE < 16: rd(s + PRE); F(1)
            else: F(1)
        self.stamp(5)
        a("ds_write_b128 v83, v[84:87]")
        F(99)
        x = lambda k: D + k
        W = lambda dl: 128 + 4 * dl
        cv = lambda d, lo, hi: a(f"v_cvt_pk_bf16_f32 v{d}, v{lo}, v{hi}")
        sel = [f"v_add_f32 v{x(0)}, v{x(0)}, v71", f"v_bitop3_b32 v{x(1)}, v79, v{x(0)}, v{x(1)} bitop3:0xca", f"v_bitop3_b32 v{x(3)}, v79, v{x(4)}, v{x(3)} bitop3:0xca",
               f"v_bitop3_b32 v{x(5)}, v79, v{x(4)}, v{x(5)} bitop3:0xca", f"v_bitop3_b32 v{x(7)}, v79, v{x(8)}, v{x(7)} bitop3:0xca",
               f"v_bitop3_b32 v{x(9)}, v80, v{x(8)}, v{x(9)} bitop3:0xca", f"v_bitop3_b32 v{x(10)}, v82, v{x(8)}, v{x(10)} bitop3:0xca"]
        for t in sel[:5]: a(t)
        for dl in range(4):
            for k in range(4): cv(W(dl) + k, x(7 + dl - 2 * k), x(6 + dl - 2 * k))
            a(f"ds_write_b128 v81, {vr(W(dl),4)} offset:{((4-dl)%4)*KS}")
            if dl == 0: a(sel[5] + "\n" + sel[6])
            if dl == 1: a(f"v_readlane_b32 s42, v{W(0)+2}, 0\nv_readlane_b32 s43, v{W(0)+3}, 0\nv_readlane_b32 s58, v{W(0)}, 63")
            if dl == 2: a("s_pack_lh_b32_b16 s42, s58, s42\nv_mov_b32 v71, s42\nv_perm_b32 v71, v71, s43, v72")
        a(f"""ds_write_b16 v73, v71
        v_cvt_pk_bf16_f32 v72, v{D+13}, v{D+12}
        v_cvt_pk_bf16_f32 v74, v{D+15}, v{D+14}
        ds_write_b32 v77, v72
        v_readlane_b32 s59, v72, 63
        ds_write_b32 v75, v74
        s_and_b32 s59, s59, 0xffff""")
        self.stamp(12)
        if self.o("t3at", 32) == 33: a(self.T3)
        ops = []; first = set()
        def mm(g, A, B):
            if isinstance(g, tuple): ops.append(("m", g[0], A, B, True)); return
            c0 = g not in first; first.add(g)
            ops.append(("m", ACC(g), A, B, c0))
        R = lambda r: ("R", r)
        for ip in range(8):
            mains = [(R(V2(ip - d, b)), ("T2", d, b)) for d in (4, 3, 2) if ip - d >= 0 for b in (0, 1)]
            mains = [(R(V3(ip - d)), ("T3", d)) for d in range(4, 8) if ip - d >= 0] + mains
            for j in range(7, -1, -1):
                u = ("U", 8 * ip - j)
                mm(ip, ("K", 0, j), u)
                if ip < 7: mm(ip + 1, ("K", 1, j), u)
                if j > 0:
                    for _ in range(-(-len(mains) // j)): mm(ip, *mains.pop(0))
                if j == 6 and 1 <= ip <= 6: ops.append(("cvt", ip - 1))
                if j == 5 and ip == 7: ops += [("y", 6), ("flag", 6)]
            u = ("U", 8 * ip); us = ("US", 8 * ip)
            if ip <= 5:
                mm((VF,), u, R(P1)); mm((VF + 4,), u, R(P2)); mm(ip + 2, ("K16",), u)
                mm((VF + 8,), u, R(P3))
                ops.append(("y", ip))
                if ip <= 3: mm((VF + 16,), u, R(B1)); mm(ip + 4, R(M32), u)
                ops.append(("flag", ip))
                mm((VF + 12,), us, R(P2))
                if ip <= 3: mm((VF + 20,), us, R(B2))
        ops += [("y", 7), ("flag", 7)]
        assert sum(o[0] == "m" for o in ops) == 202
        need = []; seen = set(); last = {}
        for k, o in enumerate(ops):
            if o[0] == "m":
                for xx in (o[2], o[3]):
                    last[xx] = k
                    if xx[0] != "R" and xx not in seen:
                        seen.add(xx)
                        if xx[0] in ("U", "US"): need.append((xx, k, 1))
                        else: need += [(xx, k, 0), (xx, k, 1)]
        reg = {}; free = list(URING); q = [None] * 3
        def issue(x, hf):
            if x[0] in ("U", "US"):
                r = free.pop(0)
                off = 16 * (28 + 4 * x[1]) - (16 if x[0] == "US" else 0)
                a(f"ds_read_b128 {vr(r,4)}, v11 offset:{off}")
            elif x[0] in ("K", "K16"):
                r = KR(x[1], x[2]) if x[0] == "K" else K16
                mu = x[2] + 8 * x[1] if x[0] == "K" else 16
                a(f"ds_read_b64 {vr(r+2*hf,2)}, v10 offset:{64*(16-mu)+8*hf}")
            elif x[0] == "B":
                r = x[1]
                a(f"ds_read_b128 {vr(r,4)}, v5 offset:{1024*x[2]}")
            elif x[0] == "T2":
                r = T2(x[1], x[2])
                a(f"ds_read_b64 {vr(r+2*hf,2)}, v89 offset:{128*(4-x[1])+16*x[2]+8*hf}")
            else:
                r = T3[x[1]]; o = 16 * (7 - x[1]) + 2 * hf
                a(f"ds_read2_b32 {vr(r+2*hf,2)}, v4 offset0:{o} offset1:{o+1}")
            if hf: reg[x] = r
            q.append(x if hf else None)
        pre = [n for n in need if n[0][0] == "K"][:self.o("kpre", 32)]
        for n in pre: issue(n[0], n[2]); need.remove(n)
        bl = [(("B", r, i), 6, 1) for i, r in enumerate((M32,))] + [(("B", r, i + 1), 15, 1) for i, r in enumerate((P1, P2, P3, B1, B2))]
        for b in bl:
            p = min(i for i, n in enumerate(need) if n[1] > b[1]); need.insert(p, b)
        if len(q) > 8:
            q = q[-6:]; a("s_waitcnt lgkmcnt(6)")
        a(f"s_barrier\ns_setprio {self.o('pm', 1)}")
        self.stamp(7)
        def wait_for(keys):
            nonlocal q
            pos = max([k for k, o in enumerate(q) if o in keys], default=-1)
            if pos >= 0:
                a(f"s_waitcnt lgkmcnt({min(15, len(q)-1-pos)})"); q = q[pos + 1:]
        AHEAD = self.o("ahead", 16); WG = self.o("wgrp", 4); URG = self.o("urg", 9)
        side = []
        from asmlib import Ins
        def emit(t):
            a(t)
            if "ds_" in t: q.append(None)
        for k, o in enumerate(ops):
            if o[0] == "y":
                r = ACC(o[1])
                side = [f"ds_write_b128 v7, {vr(r,4)} offset:{YOFF+YT*o[1]}"] + side
                continue
            if o[0] == "flag":
                t = f"ds_write_b32 v88, v88 offset:{16*o[1]}\n" + (self.fs((o[1]+1)//2, "barstamp") if o[1] in (1, 3, 5) else "")
                p = max([i for i, z in enumerate(side) if "ds_write_b128" in z], default=-1)
                side.insert(p + 1, t)
                continue
            if o[0] == "cvt":
                tau = o[1]
                for r in range(4):
                    side += [f"v_cvt_pk_bf16_f32 v{V2(tau,0)+2*r}, v{VF+12+r}, v{VF+8+r}", f"v_cvt_pk_bf16_f32 v{V2(tau,0)+2*r+1}, v{VF+4+r}, v{VF+r}"]
                if tau <= 3: side += [f"v_cvt_pk_bf16_f32 v{V3(tau)+r}, v{VF+20+r}, v{VF+16+r}" for r in range(4)]
                continue
            if k == 8:
                wait_for([bl[0][0]]); side += late
            if k == 16:
                assert all(b[0] in reg for b in bl); wait_for([b[0] for b in bl])
            regs = {("v", o[1] + i) for i in range(4)} | {("v", z[1] + i) for z in (o[2], o[3]) if z[0] == "R" for i in range(4)}
            hit = max([i for i, t in enumerate(side) if (lambda I: (I.dst | I.src) & regs)(Ins(t.split(chr(10))[0]))], default=-1)
            for t in side[:hit + 1]: emit(t)
            side = side[hit + 1:]
            n = 0
            def ok():
                if not need or len(q) >= 15: return False
                z = need[0][0]
                if z[0] in ("U", "US"): return bool(free)
                if z[0] == "T3": return last.get(("R", T3[z[1]]), -1) < k
                return True
            while ok() and need[0][1] <= k + AHEAD and (k == 0 and n < 9 or n < 1 or (need[0][1] <= k + URG and n < 2) or need[0][1] <= k):
                xx = need.pop(0); issue(xx[0], xx[2]); n += 1
            assert all(z[0] == "R" or z in reg for z in (o[2], o[3])), (k, o)
            if any(z in q for z in (o[2], o[3])):
                keys = []
                for oo in ops[k:k + (WG if k > 0 else 1)]:
                    if oo[0] == "m": keys += [oo[2], oo[3]]
                wait_for(keys); n += 1
            if side and n < 2: emit(side.pop(0))
            RR = lambda z: vr(z[1] if z[0] == "R" else reg[z], 4)
            a(f"v_mfma_f32_16x16x32_bf16 {vr(o[1],4)}, {RR(o[2])}, {RR(o[3])}, {'0' if o[4] else vr(o[1],4)}")
            for z in (o[2], o[3]):
                if z[0] in ("U", "US") and last[z] == k: free.append(reg[z])
        for t in side: a(t)
        self.stamp(8)
        self.fixup()

    def fixup(self):
        a = self.a
        PF = ("sc1", "sc0 sc1", "sc1 nt", "sc0 sc1 nt")[self.o("pf", 0)]
        WB = f"s_lshl_b32 s42, s{S_SLOT}, 3\ns_add_u32 s42, s42, s{S_W}\ns_cmp_lg_u32 s42, 1\ns_cbranch_scc1 L_nowb\nbuffer_wbl2 sc1\ns_waitcnt vmcnt(0)\nL_nowb:" if self.o("wb", 0) == 1 else ""
        a(f"""
        {WB}
        s_cmp_lg_u32 s{S_W}, 0
        s_cbranch_scc1 L_mw_end
        s_mul_i32 s42, s50, {PSTR}
        s_add_u32 s42, s42, {PARTS + 4096}
        v_add_u32 v18, s42, v3
        v_add_u32 v20, 4096, v18
        v_and_b32 v21, 0x70, v3
        s_add_u32 s42, s42, {72*128 - 4096}
        v_add_u32 v21, s42, v21
        s_movk_i32 s61, {SPIN}
        v_lshl_add_u32 v24, v9, 1, s54
        v_mov_b32 v35, s{S_T8}
        {"s_barrier" if self.o("pollafter", 1) else ""}
        {"s_sleep %d" % self.o("pdelay", 0) if self.o("pdelay", 0) else ""}
L_part_poll:
        global_load_dwordx4 v[164:167], v21, s[36:37] {PF}
        """)
        for k in range(9):
            a(f"global_load_dwordx4 {vr(128+4*k,4)}, v{18 if k < 8 else 20}, s[36:37] offset:{1024*k-4096 if k < 8 else 0} {PF}")
        a(f"""v_mul_u32_u24 v26, {UCH}, v9
        v_add_u32 v26, {UBASE+UPAD}, v26
        v_mul_u32_u24 v27, {TCH}, v9
        v_mov_b32 v25, {YT}
        s_waitcnt vmcnt(9)
        v_bfe_u32 v28, v164, 8, 11
        v_lshl_add_u32 v29, v28, 1, v26
        v_lshrrev_b32 v30, 8, v28
        v_mad_u32_u24 v27, v30, v25, v27
        v_bfe_u32 v30, v28, 2, 2
        v_mul_u32_u24 v30, 320, v30
        v_and_b32 v33, 0xf0, v28
        v_add3_u32 v27, v27, v30, v33
        v_and_b32 v33, 3, v28
        v_lshl_add_u32 v30, v33, 2, v27
        ds_read_b128 v[36:39], v88 offset:112
        ds_read_u16_d16_hi v31, v29
        ds_read_b32 v32, v30 offset:{YOFF}
        v_mul_u32_u24 v28, 1152, v28
        v_add_u32 v28, v28, v24
        v_xor_b32 v22, v35, v164
        s_waitcnt vmcnt(8)
        v_xor_b32 v128, v35, v128
        v_or_b32 v22, v22, v128
        """)
        for k in range(1, 9):
            a(f"""s_waitcnt vmcnt({8-k})
            v_xor_b32 v{128+4*k}, v35, v{128+4*k}
            v_pk_add_f32 v[130:131], v[130:131], {vr(130+4*k,2)}
            v_pk_add_f32 v[128:129], v[128:129], {vr(128+4*k,2)}""")
            if k % 2 == 0: a(f"v_bitop3_b32 v22, v22, v{124+4*k}, v{128+4*k} bitop3:0xfe")
        a(f"""
        s_waitcnt lgkmcnt(0)
        v_bitop3_b32 v36, v37, v38, v39 bitop3:0x7f
        v_and_b32 v36, {CFL & 0xf0}, v36
        v_or_b32 v22, v22, v36
        v_and_b32 v22, 0xff, v22
        v_cmp_ne_u32 vcc, 0, v22
        v_permlane32_swap_b32 v128, v130
        s_sub_u32 s61, s61, 1
        s_cselect_b64 vcc, 0, vcc
        s_cbranch_vccnz L_part_poll
        """)
        if not self.o("cf", 0): self.stamp(9)
        a(f"""
        v_permlane32_swap_b32 v129, v131
        v_add_f32 v128, v128, v130
        v_add_f32 v129, v129, v131
        v_and_b32 v31, 0xffff0000, v31
        v_fma_f32 v34, v31, v167, v166
        v_permlane16_swap_b32 v128, v129
        v_add_f32 v128, v128, v129
        v_mul_f32 v31, {f2u(32.0)}, v31
        v_mul_f32 v32, {f2u(1/32)}, v32
        v_add_f32_dpp v128, v128, v128 row_ror:8 row_mask:0xf bank_mask:0xf
        v_fma_f32 v128, v128, v165, v31
        v_mul_f32 v33, {f2u(-LOG2E)}, v128
        v_exp_f32 v33, v33
        v_mul_f32 v128, v128, v32
        v_add_f32 v33, 1.0, v33
        v_rcp_f32 v33, v33
        v_fmac_f32 v34, v128, v33
        v_cvt_pk_bf16_f32 v34, v34, v34
        {"" if self.o("pollafter", 1) else "s_barrier"}
        global_store_short v28, v34, s[32:33]
        """)
        if not self.o("cf", 0): self.stamp(10)
        a("L_mw_end:")
        self.dump()
        a("s_endpgm")

    def helper(self):
        a = self.a
        ST = 224
        a("L_helper:\ns_waitcnt lgkmcnt(0)\ns_barrier")
        self.stamp(11)
        a("s_setprio 0")
        if self.o("tdelay", 0): a(f"s_sleep {self.o('tdelay', 0)}")
        if self.o("tile_at", 32) == 32: a(self.tile_first)
        a(f"""v_and_b32 v62, 255, v0
        v_lshlrev_b32 v4, 4, v62
        v_add_u32 v4, {STATS + 4096}, v4
        v_add_u32 v7, 8192, v4""")
        SL_ = self.o("statlate", 1)
        t1at, t2at = self.o("t1at", 40), self.o("t2at", 41)
        if not SL_:
            for t in self.stat_ld: a(t)
        if t1at == 40: a(self.T1)
        if True:
            a(f"v_mov_b32 v38, v63\ns_mul_i32 s42, s51, {18*64}\ns_lshl_b32 s43, s{S_SLOT}, 6\ns_add_u32 s42, s42, s43\ns_add_u32 s42, s42, {45*64}\ns_mov_b32 s58, 2")
            self.touch_setup()
            a("v_mov_b32 v63, v38")
        if t2at == 40: a(self.T2)
        for k in range(4):
            a(f"s_bfe_u32 s43, s{S_TT}, {(2<<16) | (2*k)}\ns_mul_i32 s43, s43, 0x20004000\ns_and_b32 s43, s43, 0x40004000\nv_mov_b32 v{56+k}, s43")
        a(f"""v_and_b32 v88, 3, v0
        v_mul_u32_u24 v5, {UCH}, v88
        v_lshl_add_u32 v5, v63, 4, v5
        v_add_u32 v5, {UBASE+UPAD}, v5
        v_mov_b32 v63, 0x40004000
        s_lshr_b32 s43, s51, 1
        s_lshl_b32 s43, s43, 4
        s_add_u32 s43, s43, {CFL}
        v_lshl_add_u32 v88, v88, 2, s43
        s_movk_i32 s61, {SPIN}
        v_lshlrev_b32 v37, 2, v62
        v_add_u32 v64, {UBASE+UPAD}, v37
        v_add_u32 v65, {UBASE+UPAD+UCH}, v37
        v_add_u32 v66, {UBASE+UPAD+2*UCH}, v37
        v_add_u32 v67, {UBASE+UPAD+3*UCH}, v37
        v_bfe_u32 v37, v0, 1, 2
        v_mul_u32_u24 v37, 320, v37
        v_and_b32 v39, 0x78, v0
        v_lshl_add_u32 v37, v39, 1, v37
        v_and_b32 v39, 1, v0
        v_lshl_add_u32 v37, v39, 3, v37
        s_lshr_b32 s43, s51, 1
        s_mul_i32 s43, s43, {YT}
        s_add_u32 s43, s43, {YOFF}
        v_add_u32 v37, s43, v37
        v_add_u32 v39, {2*TCH}, v37
        v_mul_u32_u24 v36, 2304, v62
        v_add_u32 v36, s54, v36
        v_mov_b32 v8, {f2u(-32*LOG2E)}
        v_mov_b32 v9, 0xffff0000
        v_lshlrev_b32 v62, 6, v62
        v_xor_b32 v62, s{S_T16}, v62
        v_and_b32 v10, 15, v0
        v_lshrrev_b32 v11, 1, v0
        v_and_b32 v11, 24, v11
        s_lshl_b32 s42, s51, 4
        s_mov_b32 s58, {(3 << 12) | ((7 << 11) << 16)}
        s_mov_b32 s59, {(0x1f << 6) | ((7 << 3) << 16)}
        s_lshr_b64 s[58:59], s[58:59], s42
        s_and_b32 s58, s58, 0xffff
        s_lshr_b32 s59, {(0x7f << 5) | ((0x1ff << 4) << 16)}, s42
        s_and_b32 s59, s59, 0xffff
        s_lshl_b32 s42, s51, 10
        s_add_u32 s42, s42, {BND}
        v_add_u32 v12, s42, v3
        """)
        for h in range(2):
            a(f"v_lshlrev_b32 v13, v10, s{58+h}\nv_bfe_u32 v13, v13, v11, 8\nv_lshl_or_b32 v13, v13, 15, v13")
            for j in range(4): a(f"v_and_b32 v{16+4*h+j}, {0x10001 << (2*j)}, v13\nv_mul_u32_u24 v{16+4*h+j}, {0x3f80 >> (2*j)}, v{16+4*h+j}")
            a(f"ds_write_b128 v12, {vr(16+4*h,4)} offset:{4096*h}")
        nb = 0 if SL_ else 4
        if t1at == 40 and t2at == 40: a(f"s_waitcnt vmcnt({nb+1})")
        elif t1at == 40: a(f"s_waitcnt vmcnt({nb+1})\ns_cmp_eq_u32 s47, 3\ns_cbranch_scc1 L_tw\ns_waitcnt vmcnt({nb})\nL_tw:")
        else: a(f"s_waitcnt vmcnt({nb})")
        self.stamp(12)
        a("s_setprio 3\nL_tile_chk:")
        for k in range(4):
            for r in range(4): a(f"v_xor_b32 v{40+4*k+r}, v{56+r}, v{40+4*k+r}")
            a(f"ds_write_b128 v5, {vr(40+4*k,4)} offset:{1024*k}")
        a("v_bitop3_b32 v38, v40, v41, v42 bitop3:0xfe")
        for r in range(43, 55, 2): a(f"v_bitop3_b32 v38, v38, v{r}, v{r+1} bitop3:0xfe")
        a(f"""v_bitop3_b32 v38, v38, v55, v63 bitop3:0xa8
        v_cmp_ne_u32 vcc, 0, v38
        s_cbranch_vccz L_tile_ok
        {chr(10).join(self.tile_ld)}
        s_waitcnt vmcnt(0)
        s_sub_u32 s61, s61, 1
        s_cbranch_scc0 L_tile_chk
L_tile_ok:""")
        self.stamp(6)
        def statchk():
            a("s_waitcnt vmcnt(0)\nL_h_poll:\nv_mov_b32 v38, 0")
            for k in range(8):
                a(f"v_xor_b32 v13, {(0x7ff ^ (512*(k>>1)) ^ (k&1)) << 5}, v{ST+1+2*k}\nv_bitop3_b32 v38, v38, v13, v62 bitop3:0xf6")
            a(f"""v_and_b32 v38, 0xffff, v38
            v_cmp_ne_u32 vcc, 0, v38
            s_cbranch_vccz L_h_ok
            {chr(10).join(self.stat_ld)}
            s_waitcnt vmcnt(0)
            s_sub_u32 s61, s61, 64
            s_cbranch_scc0 L_h_poll
L_h_ok:""")
        a(f"s_mov_b32 s61, {SPIN*64}")
        if SL_:
            for t in self.stat_ld: a(t)
        else:
            if t1at == 40: a("s_waitcnt vmcnt(1)\ns_cmp_eq_u32 s47, 3\ns_cbranch_scc1 L_h_poll")
            statchk()
        a("s_waitcnt lgkmcnt(0)\ns_barrier")
        self.stamp(7)
        B = lambda s: 96 + 32 * s
        for sp in range(2):
            for c in range(4): a(f"ds_read2st64_b32 {vr(16+8*sp+2*c,2)}, v{64+c} offset0:{8*sp} offset1:{8*sp+4}")
        RU = lambda s, c: 16 + 8 * (s >> 1) + 2 * c + (s & 1)
        a("s_setprio 0")
        if t2at == 41: a(self.T2.replace("L_ct2:", "s_waitcnt vmcnt(1)\ns_branch L_h_poll\nL_ct2:") if SL_ else self.T2)
        if SL_: statchk()
        a("s_waitcnt lgkmcnt(4)")
        def pre(s, t):
            u, g, p = B(s) + 4 * t, B(s) + 8 + 4 * t, B(s) + 24 + 2 * t
            st = ST + 4 * s + 2 * t
            for c in range(4): a(f"v_lshlrev_b32 v{u+c}, 16, v{RU(s,c)}" if t == 0 else f"v_and_b32 v{u+c}, v9, v{RU(s,c)}")
            for c in range(4): a(f"v_mul_f32 v{g+c}, v8, v{u+c}")
            for c in range(4): a(f"v_exp_f32 v{g+c}, v{g+c}")
            a(f"v_and_b32 v{p+1}, v9, v{st}")
            for c in range(4): a(f"v_add_f32 v{g+c}, 1.0, v{g+c}")
            for c in range(4): a(f"v_rcp_f32 v{g+c}, v{g+c}")
            a(f"v_lshlrev_b32 v{p}, 16, v{st}")
        def waitflag(s):
            lab = f"L_w{s}"
            rdy = "\n".join(f"ds_read_b64 {vr(44+2*c,2)}, v{(37, 39)[c>>1]} offset:{(c&1)*TCH + 2*YT*s}" for c in range(4))
            a(f"""s_setprio 2
{lab}:
            ds_read_b32 v41, v88 offset:{32*s}
            {rdy if s == 3 else ""}
            s_waitcnt lgkmcnt(0)
            v_cmp_eq_u32 vcc, 0, v41
            s_cbranch_vccz {lab}_ok
            s_sleep {1 if s == 3 else 2}
            s_sub_u32 s61, s61, 1
            s_cbranch_scc0 {lab}
{lab}_ok:""")
            if s < 3: a(rdy + "\ns_setprio 0\ns_waitcnt lgkmcnt(0)")
        def fin(s, t):
            u, g, y, p = B(s) + 4 * t, B(s) + 8 + 4 * t, B(s) + 16 + 4 * t, B(s) + 24 + 2 * t
            for c in range(4): a(f"v_fma_f32 v{y+c}, v{44+2*c+t}, v{g+c}, v{p+1}")
            for c in range(4): a(f"v_fma_f32 v{u+c}, v{u+c}, v{y+c}, v{p}")
            a(f"v_cvt_pk_bf16_f32 v{g}, v{u}, v{u+1}\nv_cvt_pk_bf16_f32 v{g+1}, v{u+2}, v{u+3}")
        def st(s, t):
            a(f"global_store_dwordx2 v36, {vr(B(s)+8+4*t,2)}, s[32:33] offset:{1152*t} {('', 'nt', 'sc0', 'sc0 nt')[self.o('stf', 0)]}")
            if t == 1 and s < 3: a(f"v_add_u32 v36, {512*1152}, v36")
        todo = [(s, t) for s in range(4) for t in range(2)]
        for _ in range(self.o("hpre", 2)): pre(*todo.pop(0))
        for s in range(4):
            if s < 3: a(self.fs(s + 1, "barstamp"))
            waitflag(s)
            fin(s, 0); st(s, 0); fin(s, 1)
            if todo: pre(*todo.pop(0))
            st(s, 1)
            if todo: pre(*todo.pop(0))
        self.stamp(8)
        a("s_waitcnt vmcnt(0)")
        if not self.o("cf", 0): self.stamp(9)
        a("s_barrier")
        if self.o("wb", 0) == 2: a(f"s_lshl_b32 s42, s{S_SLOT}, 3\ns_add_u32 s42, s42, s{S_W}\ns_cmp_lg_u32 s42, 4\ns_cbranch_scc1 L_nowb\nbuffer_wbl2 sc1\ns_waitcnt vmcnt(0)\nL_nowb:")
        self.dump()
        a("s_endpgm")

    def build(self):
        for k, v in dict(early=0, n2t=6, thr2=4, t1at=0, t3at=33, tile64=0, statlate=0).items(): self.opt.setdefault(k, v)
        self.prologue(); self.spare_pre(); self.ffn_pre(); self.conv_pre()
        self.ln_copy(True); self.conv()
        self.ln_copy(False); self.ffn()
        self.a("L_end:\ns_endpgm")
        return HEADER + f"""; @launch grid=(256,1,1) block=(512,1,1) lds={LDSZ}
.amdgcn_target "amdgcn-amd-amdhsa--gfx950"
""" + self.post(self.a.text(self.o("verbose", 0))) + """.section .rodata,"a"
.p2align 6
""" + descriptor(KN, 256, 102)

if __name__ == "__main__":
    opt = {}
    for s in sys.argv[2:]:
        k, v = s.split("="); opt[k] = int(v)
    open(sys.argv[1], "w").write(G8(**opt).build())
GEN = G8
```

```python
import sys, re
from parts import *
KN = "recurrent_scan__ssm_conv_s4__moe_arch_mod__prompt_kernel"

EPOCH = 0
STATS = 0x4000
PARTS = 0x10000
PSTR = 73 * 128
TILE = 0x201000
REC = 0x1000000
SPIN = 131072
LDSZ = 163840
LNROW = 1216; LNS = LDSZ - 8 * LNROW - 64; LNST = LNS + 8 * LNROW
SM = 147456
F_CT = SM
F_H = SM + 512; F_X = SM + 2560; XSTR = 1056; F_E = F_X + 9 * XSTR
ROW = 528; TCH = 64 * ROW
KS = 2240; KCH = 4 * KS + 320; K8 = 4 * KS
YBASE = 4 * KCH
UBASE = 4 * TCH; UPAD = 480; UCH = 4640
CFL = UBASE + 4 * UCH
assert CFL + 64 <= LNS and CFL & 0xf0
S_W, S_XCD, S_SLOT, S_T16, S_T8, S_TT = 39, 40, 41, 44, 45, 46

class G:
    def __init__(self, stamps=False, **opt):
        self.a = Asm(); self.stamps = stamps; self.opt = opt
        self.R1 = self.o("r1", 3); self.R0 = 32 * self.R1; self.P1 = self.o("p1", 5)
    @property
    def wd0(self): return (4 * self.o("sf", 0) + 4 * self.o("ss", 0)) * 9 // 64
    @property
    def wd(self):
        if self.o("xo", 0): return ({"t2": 0, "mf": 36, "sp": 51 - 10}, {"t2": 0, "sp": 36 - 10, "mf": 63})[self.o("wdo", 0) & 1]
        n = {"mf": 18 * (self.o("n3", 2) - (0 if self.o("t4", 0) else 2)), "sp": 5 * self.o("sp2n", 8), "t2": 18 * self.o("n2", 2)}
        b = 10 + self.wd0; r = {}
        for k in (("sp", "mf", "t2"), ("mf", "sp", "t2"), ("mf", "t2", "sp"))[self.o("wdo", 0)]:
            r[k] = min(b, 81 - n[k]); b = r[k] + n[k]
        return r
    def o(self, k, d): return self.opt.get(k, d)
    def stamp(self, k):
        if self.stamps and (self.o("only", 0xffff) >> k) & 1: self.a(f"s_memrealtime s[{70+2*k}:{71+2*k}]")
    def fs(self, k, key="fine"):
        return f"s_memrealtime s[{70+2*k}:{71+2*k}]" if self.stamps and self.o(key, 0) else ""
    def dump(self):
        if not self.stamps or self.o("nodump", 0):
            self.ndump = getattr(self, "ndump", 0) + 1
            if (self.o("padend", 0) >> (self.ndump - 1)) & 1: self.a("s_endpgm\n" + "s_nop 0\n" * 40)
            return
        a = self.a
        a("s_memtime s[100:101]\ns_memrealtime s[96:97]\ns_waitcnt lgkmcnt(0)\ns_mov_b64 exec, -1")
        for k in range(16): a(f"v_mov_b32 v{100+k}, s{70+2*k}")
        a(f"""s_lshl_b32 s42, s2, 3
        s_add_u32 s42, s42, s{S_W}
        s_lshl_b32 s42, s42, 6
        s_add_u32 s42, s42, {REC}
        v_mov_b32 v116, s42
        s_mov_b64 exec, 1""")
        for k in range(4): a(f"global_store_dwordx4 v116, {vr(100+4*k,4)}, s[36:37] offset:{16*k}")

    def prologue(self):
        a = self.a
        kernel_begin(a, KN)
        if self.stamps:
            pass
        self.stamp(0)
        if self.stamps and not self.o("nomt", 0): a("s_memtime s[98:99]")
        a(f"""
        s_load_dwordx16 s[4:19], s[0:1], 0
        s_load_dwordx16 s[20:35], s[0:1], 64
        s_load_dwordx2 s[36:37], s[0:1], 128
        s_cmp_ge_u32 s2, 256
        s_cbranch_scc1 L_end
        s_lshr_b32 s{S_SLOT}, s2, 3
        s_getpc_b64 s[42:43]
L_pc:
        s_mul_i32 s47, s{S_SLOT}, 768
        s_add_u32 s42, s42, s47
        s_addc_u32 s43, s43, 0
        v_lshlrev_b32 v4, 7, v0
        v_mov_b32 v5, s43
        v_add_co_u32 v4, vcc, s42, v4
        v_lshrrev_b32 v1, 6, v0
        v_and_b32 v2, 63, v0
        v_addc_co_u32 v5, vcc, 0, v5, vcc
        s_sub_u32 s47, L_last - L_pc - 4, s47
        s_ashr_i32 s47, s47, 7
        s_min_i32 s47, s47, 5
        v_cmp_ge_i32 vcc, s47, v0
        s_and_saveexec_b64 s[48:49], vcc
        s_cbranch_execz L_nopf
        global_load_dword v255, v[4:5], off
L_nopf:
        s_mov_b64 exec, -1
        v_readfirstlane_b32 s{S_W}, v1
        s_and_b32 s{S_XCD}, s2, 7
        s_mul_i32 s42, s2, 9216
        v_lshlrev_b32 v3, 4, v2
        v_lshlrev_b32 v4, 1, v2
        v_mul_u32_u24 v5, 1152, v1
        v_add3_u32 v6, v5, v3, s42
        v_add3_u32 v7, v5, v4, s42
        s_waitcnt lgkmcnt(0)
        global_load_dwordx4 v[12:15], v6, s[4:5]
        global_load_ushort v16, v7, s[4:5] offset:1024
        s_load_dword s38, s[36:37], {EPOCH}
        global_load_dwordx4 v[20:23], v3, s[24:25]
        global_load_ushort v24, v4, s[24:25] offset:1024
        """)
        if self.o("tlb", 0):
            a(f"""s_cmp_lg_u32 s{S_W}, 0
            s_cbranch_scc1 L_notlb
            v_lshlrev_b32 v5, 21, v2
            v_add_u32 v5, 0x{0x800:x}, v5
            v_min_u32 v8, {2359296-4096}, v5
            v_mul_u32_u24 v9, 0x21000, v2
            v_and_b32 v9, 0x42000, v9
            v_add_u32 v5, v5, v9
            s_mov_b64 exec, 7
            global_load_dword v254, v5, s[36:37]
            {"s_mov_b64 exec, 3" if self.o("tlb", 0) > 1 else ""}
            {"global_load_dword v253, v8, s[32:33]" if self.o("tlb", 0) > 1 else ""}
            s_mov_b64 exec, -1
L_notlb:""")
        if self.o("pln", 0): a(f"s_cmp_lt_u32 s{S_W}, 4\ns_cbranch_scc1 L_nopr\ns_setprio 1\nL_nopr:")
        if self.stamps and not self.o("nomov", 0):
            for k in range(1, 13): a(f"s_mov_b32 s{70+2*k}, 0")
        self.stamp(1)
        a(f"""
        s_and_b32 s51, s{S_W}, 3
        s_lshr_b32 s52, s{S_W}, 2
        s_cmp_lt_u32 s{S_SLOT}, 18
        s_cbranch_scc1 L_conv_pre
        s_cmp_lt_u32 s{S_SLOT}, 27
        s_cbranch_scc1 L_ffn_pre
        """)
    def touch_setup(self, d=76):
        NL = 9 * (576 - self.R0) - 1
        self.a(f"""
        s_mul_i32 s43, s{S_XCD}, 1152
        s_add_u32 s43, s43, {self.R0*9216}
        s_mul_i32 s59, s{S_XCD}, {576*1152}
        s_cmp_eq_u32 s58, 0
        s_cselect_b32 s56, s26, s28
        s_cselect_b32 s57, s27, s29
        s_cmp_eq_u32 s58, 2
        s_cselect_b32 s56, s30, s56
        s_cselect_b32 s57, s31, s57
        s_cselect_b32 s43, s59, s43
        s_movk_i32 s58, 128
        s_movk_i32 s59, 8064
        s_movk_i32 s60, {NL}
        s_cmov_b32 s58, 73728
        s_cmov_b32 s59, {-(9*73728-128)}
        s_cmovk_i32 s60, 5183
        v_add_u32 v{d}, s42, v2
        v_min_u32 v{d}, s60, v{d}
        v_mul_u32_u24 v63, 7282, v{d}
        v_lshrrev_b32 v63, 16, v63
        v_mul_u32_u24 v{d}, s58, v{d}
        v_mad_i32_i24 v{d}, v63, s59, v{d}
        v_add_u32 v{d}, s43, v{d}
        """)
    def spare_pre(self):
        a = self.a
        a(f"""
        s_sub_u32 s53, s{S_SLOT}, 27
        s_and_b32 s58, s{S_W}, 1
        s_lshr_b32 s43, s{S_W}, 1
        s_mul_i32 s42, s43, 320
        s_add_u32 s42, s42, {2272 if self.o('ft', 0) == 2 else 1152 if self.o('ord2', 1) else 2304}
        s_cmp_eq_u32 s43, 0
        s_cmovk_i32 s42, 1152
        s_cmp_eq_u32 s43, 1
        s_cselect_b32 s48, 1, 0
        s_mul_i32 s59, s58, 320
        s_add_u32 s59, s59, {64*self.wd0}
        s_cmp_eq_u32 s43, 3
        {"s_cmovk_i32 s42, 3840" if self.o("xo", 0) else "s_cselect_b32 s42, s59, s42"}
        {"" if self.o("xo", 0) else "s_cmovk_i32 s58, 2"}
        s_lshl_b32 s53, s53, 6
        s_add_u32 s42, s42, s53
        """)
        self.touch_setup()
        a(f"""
        s_barrier
        s_mov_b32 s47, 0
        s_cmp_ge_u32 s{S_W}, {self.o('sp1', 2)}
        s_cbranch_scc1 L_lnp
        global_load_dword v1, v76, s[56:57]
        s_mov_b32 s47, 1
        s_branch L_lnp
        """)
    def ffn_pre(self):
        a = self.a
        a(f"""
L_ffn_pre:
        s_sub_u32 s54, s{S_SLOT}, 18
        s_mul_i32 s50, s{S_XCD}, 9
        s_add_u32 s50, s50, s54            ; f
        v_bfe_u32 v76, v0, 3, 5            ; row 8*(w&3) + r
        v_bfe_u32 v61, v0, 4, 1
        v_bfe_u32 v62, v0, 6, 1
        v_lshl_add_u32 v61, v62, 1, v61
        v_lshlrev_b32 v61, 1, v61
        v_and_b32 v62, 7, v0
        v_xor_b32 v61, v61, v62
        v_mul_u32_u24 v76, 9216, v76
        v_lshlrev_b32 v61, 4, v61
        s_lshl_b32 s42, s50, 7
        v_add3_u32 v76, v76, v61, s42
        s_lshl_b32 s53, s51, 10
        s_cmp_eq_u32 s52, 0
        s_cselect_b32 s56, s26, s28
        s_cselect_b32 s57, s27, s29
        s_cselect_b32 s42, 0, 73728
        s_add_u32 s42, s53, s42
        s_barrier
        """)
        for i in range(self.R1):
            a(f"""s_add_u32 m0, s42, {4096*i}
            s_nop 0
            global_load_lds_dwordx4 v76, s[56:57]
            v_add_u32 v76, {32*9216}, v76""")
        a(f"""
        v_mov_b32 v62, 0
        v_mov_b32 v63, 0
        v_lshrrev_b32 v61, 1, v3
        v_add_u32 v61, {F_CT}, v61
        ds_write_b64 v61, v[62:63]
        s_mov_b32 s47, {self.R1}
        s_mov_b32 s48, 0
        s_branch L_lnp
        """)
    def conv_pre(self):
        a = self.a
        a(f"""
L_conv_pre:
        s_mul_i32 s50, s{S_XCD}, 18
        s_add_u32 s50, s50, s{S_SLOT}      ; group
        s_lshl_b32 s53, s50, 2
        s_add_u32 s53, s53, s51            ; channel
        s_lshl_b32 s42, s53, 8
        s_lshl_b32 s43, s52, 7
        s_add_u32 s42, s42, s43
        v_add_u32 v60, s42, v4
        s_lshl_b32 s54, s50, 3
        s_lshl_b32 s42, s53, 1
        v_mov_b32 v61, s42
        s_barrier
        global_load_ushort v70, v61, s[18:19]
        global_load_ushort v71, v61, s[20:21]
        global_load_ushort v64, v60, s[6:7]
        global_load_ushort v65, v60, s[8:9]
        global_load_ushort v66, v60, s[10:11]
        global_load_ushort v67, v60, s[12:13]
        global_load_ushort v68, v60, s[14:15]
        global_load_ushort v69, v60, s[16:17]
        ; weight prefetch id: helpers k<2: slot, k>=2: 23+slot (gate/up by k&1) ; matrix waves: w_down 9+slot+18k
        s_lshr_b32 s42, s51, 1
        s_mul_i32 s42, s42, 1472
        s_and_b32 s58, s51, 1
        s_mul_i32 s43, s51, {-18*64}
        s_add_u32 s43, s43, {63*64}
        s_cmp_eq_u32 s52, 0
        s_cselect_b32 s42, s43, s42
        s_cmovk_i32 s58, 2
        s_lshl_b32 s43, s{S_SLOT}, 6
        s_add_u32 s42, s42, s43
        """)
        self.touch_setup()
        a(f"""
        s_mov_b32 s47, 8
        s_lshr_b32 s42, s{S_W}, 1
        s_cmp_eq_u32 s42, 3
        s_cselect_b32 s48, 1, 0
        s_cmp_lg_u32 s42, 2
        s_cbranch_scc1 L_cp2
        global_load_dword v1, v76, s[56:57]
        s_mov_b32 s47, 9
L_cp2:
        v_and_b32 v8, 15, v0
        v_bfe_u32 v9, v0, 4, 2
        ; table operand addresses: v78 (G0/base), v79 (F), v80 (G1)
        s_mul_i32 s55, s51, {TCH}
        v_mul_u32_u24 v78, {ROW}, v8
        v_and_b32 v79, 0x100, v3
        v_add3_u32 v78, v78, v79, s55
        v_and_b32 v79, 0x200, v3
        v_lshrrev_b32 v79, 2, v79
        v_add_u32 v78, v78, v79
        s_mul_i32 s42, s52, {16*ROW}
        v_add_u32 v79, s42, v78
        v_and_b32 v80, 3, v0
        v_add_u32 v80, -1, v80
        v_lshrrev_b32 v80, 16, v80
        v_and_b32 v80, {12*ROW}, v80
        v_sub_u32 v80, v78, v80
        s_mul_i32 s62, s51, {KCH}
        s_lshl_b32 s42, s52, 9
        s_sub_u32 s42, s62, s42
        s_add_u32 s42, s42, {2104 - 1024}
        v_lshlrev_b32 v81, 5, v8
        v_lshl_add_u32 v81, v9, 3, v81
        v_sub_u32 v81, s42, v81
        v_bfe_u32 v83, v0, 2, 1
        v_mul_u32_u24 v83, {2*KS - 4}, v83
        v_sub_u32 v82, v81, v83
        v_add_u32 v82, {2*KS - 4}, v82
        v_add_u32 v81, v81, v83
        ; zero pad of u (outside the tables) and the flag words
        v_min_u32 v83, 29, v2
        s_mul_i32 s63, s51, {UCH}
        s_add_u32 s63, s63, {UBASE}
        v_lshl_add_u32 v83, v83, 4, s63
        v_mov_b32 v84, 0
        v_mov_b32 v85, 0
        v_mov_b32 v86, 0
        v_mov_b32 v87, 0
        ds_write_b128 v83, v[84:87]
        v_and_b32 v88, 0x30, v3
        v_add_u32 v88, {CFL}, v88
        ds_write_b128 v88, v[84:87]
        """)
    def ln(self):
        a = self.a
        T64 = self.o("tile64", 1)
        a(f"""
L_lnp:
        s_mul_i32 s43, s{S_W}, {LNROW}
        s_add_u32 s43, s43, {LNS}
        v_add_u32 v52, s43, v3
        v_add_u32 v53, s43, v4
        s_lshl_b32 s43, s{S_W}, 3
        s_add_u32 s43, s43, {LNST}
        v_mov_b32 v54, s43
        v_bfe_u32 v55, v0, 2, 2
        v_mul_u32_u24 v55, {LNROW}, v55
        v_and_b32 v56, 3, v0
        v_lshl_add_u32 v55, v56, 3, v55
        v_lshrrev_b32 v56, 4, v0
        v_lshl_add_u32 v55, v56, 5, v55
        v_add_u32 v55, {LNS}, v55
        v_lshrrev_b32 v56, {2 if T64 else 3}, v0
        v_lshlrev_b32 v56, {14 if T64 else 15}, v56
        v_and_b32 v57, {0x30 if T64 else 0x70}, v3
        s_lshl_b32 s43, s2, {6 if T64 else 7}
        s_add_u32 s43, s43, {TILE}
        v_add3_u32 v56, v56, v57, s43
        v_mov_b32 v40, 0
        v_mov_b32 v41, 0
        v_mov_b32 v42, 0
        v_mov_b32 v43, 0
        v_mov_b32 v44, {f2u(1/576)}
        v_mov_b32 v38, 0xbfffbfff
        v_mov_b32 v37, 0xffff
        s_lshl_b32 s58, s2, 3
        s_add_u32 s58, s58, s{S_W}
        s_xor_b32 s58, s58, 0x7ff
        s_lshl_b32 s58, s58, 5
        s_waitcnt lgkmcnt(0)
        s_add_u32 s38, s38, 0x9e370001
        s_lshr_b32 s{S_T16}, s38, 16
        s_and_b32 s{S_T8}, s38, 0xff
        s_and_b32 s{S_TT}, s38, 0xfb
        s_bitcmp0_b32 s38, 0
        s_cselect_b32 s43, 4, 0
        s_or_b32 s{S_TT}, s{S_TT}, s43
        s_bitcmp1_b32 s{S_TT}, s{S_W}
        s_cselect_b32 s43, 0x40004000, 0
        v_mov_b32 v39, s43
        s_xor_b32 s58, s58, s{S_T16}
        v_mov_b32 v57, s58
        s_mov_b32 s42, 0x3f803f80
        """)
        for v in sorted({0, 1, self.R1, 8, 9}, reverse=True):
            a(f"s_waitcnt vmcnt({v})")
            if v != 0: a(f"s_cmp_eq_u32 s47, {v}\ns_cbranch_scc1 L_ln")
        a("L_ln:")
        self.stamp(2)
        if self.o("e1", 0): a("s_cmp_eq_u32 s48, 0\ns_cbranch_scc1 L_ln1\nglobal_load_dword v1, v76, s[56:57]\nL_ln1:")
        for i in range(5):
            a(f"""v_dot2c_f32_bf16 v40, s42, v{12+i}
            v_dot2c_f32_bf16 v41, v{12+i}, v{12+i}
            v_dot2c_f32_bf16 v42, v{12+i}, v{20+i}
            v_dot2c_f32_bf16 v43, s42, v{20+i}""")
        un = [f"v_lshlrev_b32 v{28+2*i}, 16, v{12+i}\nv_and_b32 v{29+2*i}, 0xffff0000, v{12+i}" for i in range(4)]
        a(f"""
        v_lshlrev_b32 v36, 16, v16
        {un[0]}
        v_permlane32_swap_b32 v40, v42
        v_permlane32_swap_b32 v41, v43
        v_add_f32 v40, v40, v42
        v_add_f32 v41, v41, v43
        {un[1]}
        v_permlane16_swap_b32 v40, v41
        v_add_f32 v40, v40, v41
        {un[2]}
        v_add_f32_dpp v40, v40, v40 row_ror:8 row_mask:0xf bank_mask:0xf
        {un[3]}
        v_add_f32_dpp v40, v40, v40 row_ror:4 row_mask:0xf bank_mask:0xf
        v_add_f32_dpp v40, v40, v40 row_ror:2 row_mask:0xf bank_mask:0xf
        v_add_f32_dpp v40, v40, v40 row_ror:1 row_mask:0xf bank_mask:0xf
        v_readlane_b32 s58, v40, 0
        v_readlane_b32 s59, v40, 16
        v_readlane_b32 s60, v40, 32
        v_readlane_b32 s61, v40, 48
        v_mul_f32 v40, s58, v44
        v_mul_f32 v41, s59, v44
        v_fma_f32 v41, -v40, v40, v41
        v_max_f32 v41, 0, v41
        v_cvt_pk_bf16_f32 v44, v41, v40
        v_lshlrev_b32 v41, 16, v44
        v_add_f32 v41, {f2u(1e-5)}, v41
        v_cvt_pk_bf16_f32 v41, v41, v41
        v_and_b32 v41, 0xffff0000, v41
        v_mul_f32 v41, {f2u(1024.0)}, v41
        v_sqrt_f32 v41, v41
        v_and_b32 v49, 0xffff0000, v44
        v_cvt_pk_bf16_f32 v50, v49, v41
        v_and_b32 v41, 0xffff0000, v50
        v_rcp_f32 v46, v41
        v_mul_f32 v42, s61, v49
        v_mul_f32 v47, v49, v46
        """)
        key = f"""v_sub_f32 v42, s60, v42
        v_mul_f32 v42, {f2u(32.0)}, v42
        v_mul_f32 v42, v42, v46
        v_cvt_pk_bf16_f32 v42, v42, v42
        v_ashrrev_i32 v43, 31, v42
        v_or_b32 v43, 0x80000000, v43
        v_xor_b32 v42, v42, v43
        v_bitop3_b32 v51, v37, v57, v42 bitop3:0xca
        s_mov_b64 exec, 1
        ds_write_b64 v54, v[50:51]
        s_mov_b64 exec, -1"""
        def norm():
            for i in range(9): a(f"v_fma_f32 v{28+i}, v{28+i}, v46, -v47")
            for i in range(4): a(f"v_cvt_pk_bf16_f32 v{28+i}, v{28+2*i}, v{29+2*i}")
            a("v_cvt_pk_bf16_f32 v32, v36, v36")
            for i in range(5): a(f"v_bitop3_b32 v{28+i}, v{28+i}, v38, v39 bitop3:0xea")
            a("ds_write_b128 v52, v[28:31]\nds_write_b16 v53, v32 offset:1024")
        stat = lambda mid, cnt: f"""v_and_b32 v41, 0x30, v3
        v_add_u32 v40, {LNST}, v41
        ds_read_b128 v[48:51], v40
        {mid}
        s_lshl_b32 s43, s2, 6
        s_add_u32 s43, s43, {STATS}
        v_add_u32 v41, s43, v41
        s_mov_b64 exec, 15
        s_waitcnt lgkmcnt({cnt})
        global_store_dwordx4 v41, v[48:51], s[36:37] sc1
        s_mov_b64 exec, -1"""
        tr = f"ds_read_b64_tr_b16 v[28:29], v55\nds_read_b64_tr_b16 v[30:31], v55 offset:{4*LNROW}"
        w0 = f"""s_cmp_eq_u32 s{S_W}, 0
        s_cbranch_scc0 L_ln_st
        ds_read_b64_tr_b16 v[32:33], v55 offset:1024
        ds_read_b64_tr_b16 v[34:35], v55 offset:{4*LNROW+1024}
        v_add_u32 v38, {64*32768}, v56
        s_waitcnt lgkmcnt(0)
        global_store_dwordx4 v38, v[32:35], s[36:37] sc1"""
        if self.o("early", 1):
            a(key)
            a(f"""s_waitcnt lgkmcnt(0)
            s_barrier
            s_cmp_eq_u32 s{S_W}, 1
            s_cbranch_scc0 L_ln_n
            {stat("", 0)}
L_ln_n:""")
            norm()
            a(f"s_waitcnt lgkmcnt(0)\ns_barrier\n{tr}\n{w0}")
        else:
            norm(); a(key)
            a(f"""s_waitcnt lgkmcnt(0)
            s_barrier
            s_cmp_eq_u32 s{S_W}, 1
            s_cbranch_scc1 L_ln_stat
            {tr}
            {w0}
            s_branch L_ln_st
L_ln_stat:
            {stat(tr, 2)}""")
        a("""L_ln_st:
        s_waitcnt lgkmcnt(0)
        global_store_dwordx4 v56, v[28:31], s[36:37] sc1""")
        self.stamp(3)
        a(f"""
        s_cmp_lt_u32 s{S_SLOT}, 18
        s_cbranch_scc1 L_conv
        s_barrier
        s_cmp_lt_u32 s{S_SLOT}, 27
        s_cbranch_scc1 L_ffn
        ; ---- spare
        s_cmp_lt_u32 s{S_W}, {4 if self.o('e1', 0) else 2}
        s_cbranch_scc1 L_sp2
        {"s_waitcnt vmcnt(0)" if self.o("spwait", 0) else ""}
        global_load_dword v1, v76, s[56:57]
L_sp2:
        """)
        if self.o("sp2", 1):
            a(f"""s_mul_i32 s42, s{S_W}, 320
            s_add_u32 s42, s42, s53
            s_add_u32 s42, s42, {64*self.wd['sp']}
            s_mov_b32 s58, 2""")
            if self.o("xo", 0): a(f"s_add_u32 s43, s53, 4000\ns_cmp_lt_u32 s{S_W}, 2\ns_cselect_b32 s42, s43, s42\ns_cselect_b32 s58, s{S_W}, s58")
            self.touch_setup()
            SS = self.o("ss", 0)
            if SS:
                a(f"""s_lshr_b32 s42, s53, 3
                s_add_u32 s42, s42, s{S_W}
                s_min_u32 s42, s42, 35
                s_lshr_b32 s43, s42, 2
                s_and_b32 s42, s42, 3
                s_mul_i32 s43, s43, 73728
                s_mul_i32 s42, s42, {128*SS}
                s_add_u32 s42, s42, s43
                s_mul_i32 s43, s{S_XCD}, {576*1152}
                s_add_u32 s42, s42, s43
                s_add_u32 s42, s42, {128*4*self.o("sf", 0)}
                s_add_u32 s62, s30, s42
                s_addc_u32 s63, s31, 0""")
            S1_ = "\n".join(f"s_load_dword s{4+i%16}, s[62:63], {128*i}" for i in range(SS // 2))
            a(f"s_barrier\n{S1_}\ns_cmp_ge_u32 s{S_W}, {self.o('sp2n', 8)}\ns_cbranch_scc1 L_sp3\nglobal_load_dword v1, v76, s[56:57]\nL_sp3:")
            for i in range(SS // 2, SS): a(f"s_load_dword s{4+i%16}, s[62:63], {128*i}")
        if self.o("ot", 0) in (1, 2, 3):
            NLN = self.o("otn", 1)
            a(f"""s_sub_u32 s42, s2, 216
            s_cmp_ge_u32 s42, 32
            s_cbranch_scc1 L_sp4
            s_cmp_ge_u32 s{S_W}, {NLN}
            s_cbranch_scc1 L_sp4
            s_lshl_b32 s42, s42, 6
            v_add_u32 v76, s42, v2
            v_mul_u32_u24 v76, 1152, v76
            s_lshl_b32 s42, s{S_W}, 7
            v_subrev_u32 v76, s42, v76
            v_add_u32 v76, {1024 if NLN == 1 else 896}, v76
            global_load_dword v1, v76, s[32:33] {("", "", "sc1", "nt")[self.o("ot", 0)]}
L_sp4:""")
        a(f"""
        s_waitcnt vmcnt(0) lgkmcnt(0)
        """)
        self.stamp(4)
        if self.o("wb", 0) == 3: a(f"s_barrier\ns_lshl_b32 s42, s{S_SLOT}, 3\ns_add_u32 s42, s42, s{S_W}\ns_cmp_lg_u32 s42, {27*8}\ns_cbranch_scc1 L_nowb\ns_sleep {self.o('wbd', 1)}\nbuffer_wbl2 sc1\ns_waitcnt vmcnt(0)\nL_nowb:")
        self.dump()
        a("s_endpgm")

    def ffn(self):
        a = self.a
        KY, IV, SL = 28, 128, 112
        RAW, OP, EX, AC, EXR = 40, 112, 104, 176, 216
        spin = lambda lab, off, tgt, slp=0, msk=0xffff: f"""{lab}:
        ds_read_b32 v24, v26 offset:{off}
        s_waitcnt lgkmcnt(0)
        v_readfirstlane_b32 s61, v24
        s_and_b32 s60, s61, {msk}
        s_cmp_ge_u32 s60, {tgt}
        s_cbranch_scc1 {lab}_ok
        {"s_sleep %d" % slp if slp else ""}
        s_sub_u32 s55, s55, 1
        s_cbranch_scc0 {lab}
{lab}_ok:"""
        a(f"""
L_ffn:
        v_bfe_u32 v14, v0, 4, 2            ; kq
        v_and_b32 v11, 7, v0
        v_mov_b32 v26, {F_CT}
        v_mov_b32 v27, 4
        s_cmp_eq_u32 s52, 0
        s_cbranch_scc0 L_gu
        s_setprio 1
        v_lshlrev_b32 v8, 4, v0
        v_add_u32 v9, {STATS + 4096}, v8
        v_add_u32 v10, 8192, v9
        v_lshlrev_b32 v13, 6, v0
        """)
        for k in range(8): a(f"v_xor_b32 v{IV+k}, {(0x7ff ^ (512*(k>>1)) ^ (k&1)) << 5}, v13")
        a(f"""
        v_mov_b32 v36, s{S_T16}
        v_lshrrev_b32 v25, 5, v0
        v_lshl_add_u32 v25, v25, 2, v26
        ; ranking addresses: v15 mine, v16 others ; sel addresses v17 (lane>>3), v18 (lane&7)
        s_mul_i32 s62, s{S_W}, 80
        s_add_u32 s62, s62, {F_CT + 128}
        v_and_b32 v15, 0x3c, v0
        v_add_u32 v15, s62, v15
        v_and_b32 v16, 3, v0
        v_mul_u32_u24 v16, 80, v16
        v_add_u32 v16, {F_CT + 128}, v16
        v_lshrrev_b32 v12, 3, v2
        v_lshl_add_u32 v17, v12, 2, v26
        v_lshl_add_u32 v18, v11, 2, v26
        ; x dma lane offset v12
        v_and_b32 v12, 6, v12
        v_xor_b32 v12, v12, v11
        v_lshlrev_b32 v12, 4, v12
        v_lshl_add_u32 v12, v1, 7, v12
        v_add_u32 v12, {2047*1152}, v12
        s_lshl_b32 s63, s54, 7
        s_add_u32 s63, s63, {2047*1152}
        v_mov_b32 v37, s63
        s_movk_i32 s63, -1152
        s_mul_i32 s64, s{S_W}, {XSTR}
        s_mul_i32 s42, s50, 73728
        s_add_u32 s12, s30, s42
        s_addc_u32 s13, s31, 0
        s_add_u32 s14, s12, {16*1152}
        s_addc_u32 s15, s13, 0
        s_add_u32 s16, s12, {32*1152}
        s_addc_u32 s17, s13, 0
        s_add_u32 s18, s12, {48*1152}
        s_addc_u32 s19, s13, 0
        v_mul_u32_u24 v19, 4608, v14
        v_and_b32 v20, 0xf0, v3
        s_lshl_b32 s42, s51, 8
        v_add3_u32 v19, v19, v20, s42
        v_lshrrev_b32 v20, 1, v2
        v_mul_u32_u24 v20, 1152, v20
        v_and_b32 v21, 16, v3
        s_lshl_b32 s42, s51, 5
        v_add3_u32 v20, v20, v21, s42
        ; partial store offsets v4..v7 (r), v8 (last tile)
        v_bfe_i32 v232, v0, 3, 1
        v_mul_u32_u24 v4, {8*PSTR}, v14
        v_lshl_add_u32 v4, v11, 4, v4
        v_and_b32 v5, {4*PSTR}, v232
        s_lshl_b32 s43, s50, 7
        s_add_u32 s43, s43, {PARTS}
        s_mul_i32 s42, s51, {32*PSTR}
        s_add_u32 s42, s42, s43
        v_add3_u32 v4, v4, v5, s42
        v_add_u32 v5, {2*PSTR}, v4
        v_add_u32 v6, {PSTR}, v4
        v_add_u32 v7, {3*PSTR}, v4
        v_mul_u32_u24 v8, {PSTR}, v14
        v_lshl_add_u32 v8, v11, 4, v8
        s_mul_i32 s42, s51, {4*PSTR}
        s_add_u32 s42, s42, s43
        s_add_u32 s42, s42, {128*PSTR}
        v_add_u32 v8, s42, v8
        v_mov_b32 v233, s{S_T8}
        v_mov_b32 v234, 0xff
        v_and_b32 v235, 0x370, v3
        v_add_u32 v235, {F_H}, v235
        s_lshl_b32 s42, s51, 10
        s_add_u32 s42, s42, {F_E}
        v_add_u32 v236, s42, v3
        v_lshl_add_u32 v237, v2, 3, s42
        s_mov_b32 s66, 0x05040100
        s_mov_b32 s67, 0x07060302
        s_mov_b32 s55, {SPIN}
        s_waitcnt vmcnt(0)
        """)
        self.stamp(10)
        ld = "\n".join(f"global_load_dwordx4 {vr(SL+4*k,4)}, v{9+(k>>1)}, s[36:37] offset:{-4096 if k%2==0 else 0} sc1" for k in range(4))
        a("s_barrier")
        if self.o("polldelay", 0): a(f"s_sleep {self.o('polldelay', 0)}")
        if self.o("npoll", 0): a("s_memrealtime s[72:73]\ns_mov_b32 s74, 0")
        a(f"{ld}\n{'s_barrier' if self.o('stg', 0) == 2 else ''}\nL_ffn_poll:")
        NP = "s_memrealtime s[68:69]\ns_waitcnt lgkmcnt(0)\ns_cmp_eq_u32 s74, 0\ns_cselect_b32 s74, s68, s74\ns_sub_u32 s94, 131073, s55\ns_mul_i32 s94, s94, 100\ns_add_u32 s94, s94, s70" if self.o("npoll", 0) else ""
        a("v_mov_b32 v24, 0")
        for k in range(8):
            if k % 2 == 0: a(f"s_waitcnt vmcnt({3-(k>>1)})")
            a(f"v_xor_b32 v{KY+k}, v36, v{SL+1+2*k}\nv_bitop3_b32 v24, v24, v{KY+k}, v{IV+k} bitop3:0xf6")
        a(f"""
        v_and_b32 v24, 0xffff, v24
        v_cmp_ne_u32 vcc, 0, v24
        v_max3_u32 v38, v28, v29, v30
        v_max3_u32 v39, v31, v32, v33
        {NP}
        s_cbranch_vccz L_ffn_go
        {ld}
        s_sub_u32 s55, s55, 1
        s_cbranch_scc0 L_ffn_poll
        s_waitcnt vmcnt(0)
L_ffn_go:
        {"s_barrier" if self.o("n2t", 4) and self.o("stg", 0) != 2 else ""}
        """)
        self.stamp(4)
        T = IV
        a(f"""
        v_max3_u32 v38, v38, v34, v35
        v_max_u32 v38, v38, v39
        v_alignbit_b32 v24, 1, v38, 5
        v_sub_u32 v{T}, v28, v38
        v_sub_u32 v{T+1}, v29, v38
        v_max_u32_dpp v21, v24, v24 row_ror:1 row_mask:0xf bank_mask:0xf
        v_sub_u32 v{T+2}, v30, v38
        v_sub_u32 v{T+3}, v31, v38
        v_max_u32_dpp v21, v21, v21 row_ror:2 row_mask:0xf bank_mask:0xf
        v_sub_u32 v{T+4}, v32, v38
        v_sub_u32 v{T+5}, v33, v38
        v_max_u32_dpp v21, v21, v21 row_ror:4 row_mask:0xf bank_mask:0xf
        v_sub_u32 v{T+6}, v34, v38
        v_sub_u32 v{T+7}, v35, v38
        v_max_u32_dpp v21, v21, v21 row_ror:8 row_mask:0xf bank_mask:0xf
        v_max3_u32 v39, v{T}, v{T+1}, v{T+2}
        v_max3_u32 v22, v{T+3}, v{T+4}, v{T+5}
        v_max_u32_dpp v21, v21, v21 row_bcast:15 row_mask:0xa bank_mask:0xf
        s_mov_b32 exec_lo, 0x80000000
        s_mov_b32 exec_hi, 0x80000000
        ds_write_b32 v25, v21
        s_mov_b64 exec, -1
        s_mov_b32 s55, {SPIN*16}
        ds_read_b128 {vr(SL,4)}, v26
        ds_read_b128 {vr(SL+4,4)}, v26 offset:16
        v_max3_u32 v39, v39, v{T+6}, v{T+7}
        v_max_u32 v39, v39, v22
        v_add_u32 v39, v39, v38
        v_alignbit_b32 v23, 1, v39, 5
        {self.fs(1)}
L_s1:
        s_waitcnt lgkmcnt(0)
        v_min3_u32 v21, v{SL}, v{SL+1}, v{SL+2}
        v_min3_u32 v22, v{SL+3}, v{SL+4}, v{SL+5}
        v_min3_u32 v21, v21, v{SL+6}, v{SL+7}
        v_min_u32 v21, v21, v22
        v_cmp_eq_u32 vcc, 0, v21
        v_cmp_ge_u32 s[6:7], v24, v21
        v_cmp_ge_u32 s[8:9], v23, v21
        s_cbranch_vccz L_s1_ok
        ds_read_b128 {vr(SL,4)}, v26
        ds_read_b128 {vr(SL+4,4)}, v26 offset:16
        s_sub_u32 s55, s55, 1
        s_cbranch_scc0 L_s1
L_s1_ok:
        {self.fs(2)}
        s_bcnt1_i32_b64 s10, s[6:7]
        v_mbcnt_lo_u32_b32 v22, s6, 0
        v_mbcnt_lo_u32_b32 v13, s8, 0
        v_mbcnt_hi_u32_b32 v22, s7, v22
        v_mbcnt_hi_u32_b32 v13, s9, v13
        v_min_u32 v22, 16, v22
        v_add_u32 v13, s10, v13
        v_lshl_add_u32 v22, v22, 2, s62
        v_min_u32 v13, 16, v13
        s_mov_b64 exec, s[6:7]
        ds_write_b32 v22, v24
        v_lshl_add_u32 v13, v13, 2, s62
        s_mov_b64 exec, s[8:9]
        ds_write_b32 v13, v23
        s_mov_b64 exec, 1
        ds_add_u32 v26, v27 offset:32
        s_mov_b64 exec, -1
        ds_read_b32 v22, v26 offset:32
        ds_read_b32 v13, v15
        """)
        rd4 = "\n".join(f"ds_read_b128 {vr(SL+4*k,4)}, v16 offset:{16*k}" for k in range(4))
        a(rd4)
        if self.o("ctouch", 1):
            a(f"""
        v_and_b32 v24, 0x7ff, v24
        v_and_b32 v23, 0x7ff, v23
        v_mad_i32_i24 v24, v24, s63, v37
        v_mad_i32_i24 v23, v23, s63, v37
        s_mov_b64 exec, s[6:7]
        global_load_dword v239, v24, s[4:5]
        s_cmp_eq_u64 s[8:9], 0
        s_cbranch_scc1 L_no2
        s_mov_b64 exec, s[8:9]
        global_load_dword v239, v23, s[4:5]
L_no2:
        s_mov_b64 exec, -1""")
        a(f"""
        {self.fs(3)}
L_s2:
        s_waitcnt lgkmcnt(0)
        v_cmp_ne_u32 vcc, 16, v22
        v_mov_b32 v24, 0
        s_cbranch_vccz L_s2_ok
        ds_read_b32 v22, v26 offset:32
        ds_read_b32 v13, v15
        {rd4}
        s_sub_u32 s55, s55, 1
        s_cbranch_scc0 L_s2
L_s2_ok:
        {self.fs(11)}
        """)
        for k in range(16): a(f"v_sub_u32 v{SL+k}, v13, v{SL+k}\nv_alignbit_b32 v24, v24, v{SL+k}, 31")
        a(f"""
        v_bcnt_u32_b32 v24, v24, 0
        v_add_u32_dpp v24, v24, v24 quad_perm:[1,0,3,2] row_mask:0xf bank_mask:0xf
        v_add_u32_dpp v24, v24, v24 quad_perm:[2,3,0,1] row_mask:0xf bank_mask:0xf
        v_cmp_gt_u32 vcc, 8, v24
        v_lshl_add_u32 v24, v24, 2, v26
        s_mov_b64 exec, vcc
        ds_write_b32 v24, v13 offset:64
        s_mov_b64 exec, -1
        {self.fs(12)}
L_s3:
        ds_read_b32 v23, v17 offset:64
        ds_read_b32 v13, v18 offset:64
        s_add_u32 m0, s64, {F_X}
        s_waitcnt lgkmcnt(0)
        v_cmp_eq_u32 vcc, 0, v23
        v_and_b32 v23, 0x7ff, v23
        s_sub_u32 s55, s55, 1
        s_cselect_b64 vcc, 0, vcc
        s_cbranch_vccnz L_s3
        """)
        self.stamp(5)
        xdma = f"""
        v_mad_i32_i24 v23, v23, s63, v12
        global_load_lds_dwordx4 v23, s[4:5]
        s_add_u32 m0, s64, {F_X + 4*XSTR - 512}
        v_and_b32 v22, 0x7ff, v13
        global_load_lds_dwordx4 v23, s[4:5] offset:512
        v_sub_u32 v22, 2047, v22
        s_cmp_lg_u32 s{S_W}, 0
        s_cbranch_scc1 L_nox9@
        s_mov_b32 m0, {F_X + 8*XSTR - 1024}
        s_nop 0
        global_load_lds_dwordx4 v23, s[4:5] offset:1024
        s_branch L_x3@
L_nox9@:
        v_lshlrev_b32 v24, 3, v22
        v_add_u32 v24, {STATS}, v24
        global_load_dword v25, v24, s[36:37] sc1
L_x3@:
        """
        xflag = f"""
        s_cmp_lg_u32 s{S_W}, 1
        s_cbranch_scc1 L_nost@
        ds_write_b32 v18, v25 offset:448
L_nost@:
        s_mov_b64 exec, 1
        ds_add_u32 v26, v36 offset:36
        s_mov_b64 exec, -1
        """
        a(xdma.replace("@", ""))
        x4 = lambda s, e: f"global_load_dwordx4 {vr(RAW+32*s+4*e,4)}, v19, s[{12+4*s+2*(e>>2)}:{13+4*s+2*(e>>2)}] offset:{1152*(e&3)}"
        loads = [x4(0, e) for e in range(8)] + [f"global_load_dwordx4 {vr(EXR+4*s,4)}, v20, s[{12+4*s}:{13+4*s}] offset:1024" for s in range(2)] + [x4(1, e) for e in range(8)]
        NB = self.o("nb", 2); NB2 = self.o("nb2", 8)
        ver = ["v_readlane_b32 s10, v13, 7", "s_mov_b32 s11, 0", "s_lshl_b32 s10, s10, 5"]
        for k in range(8): ver += [f"v_cmp_le_u32 vcc, s10, v{KY+k}", "s_bcnt1_i32_b64 s56, vcc", "s_add_u32 s11, s11, s56"]
        ver += ["s_lshl_b32 s11, s11, 16", "s_or_b32 s11, s11, 4", "v_mov_b32 v36, s11"]
        NB0 = self.o("nb0", 0)
        for l in loads[:NB0]: a(l)
        VP_ = self.o("verp", 1)
        if VP_ == 0:
            for t in ver: a(t)
        a("s_barrier")
        if VP_ == 1:
            for t in ver: a(t)
        E2 = self.o("e2", 0)
        if E2:
            assert VP_ != 2
            a(f"s_waitcnt vmcnt({NB0})"); a(xflag.replace("@", "")); a("s_setprio 0"); self.stamp(6)
        if self.o("bw", 1): a("s_barrier")
        for l in loads[NB0:NB]:
            a(l)
            if VP_ == 2:
                for _ in range(12):
                    if ver: a(ver.pop(0))
        if VP_ == 2:
            for t in ver: a(t)
        if not E2:
            a(f"s_waitcnt vmcnt({NB})")
            a(xflag.replace("@", ""))
            a("s_setprio 0")
            self.stamp(6)
        for l in loads[NB:NB+NB2]: a(l)
        a(spin("L_s4", 36, 16, 0, 0xff))
        a(f"""
        s_lshr_b32 s61, s61, 16
        s_cmp_eq_u32 s61, {9 if self.o("forceslow", 0) else 8}
        s_cbranch_scc0 L_slow
L_dgo:
        """)
        def perms(s, d):
            if s == 1 and d == 0:
                for k in range(2):
                    a(f"""ds_write_b128 v236, {vr(EXR+4*k,4)}
                    ds_read_b64_tr_b16 {vr(EX+4*k,2)}, v237
                    ds_read_b64_tr_b16 {vr(EX+4*k+2,2)}, v237 offset:512""")
            for j in range(8):
                a(f"v_perm_b32 v{OP+32*s+4*j+d}, v{RAW+32*s+4*(2*d+1)+(j>>1)}, v{RAW+32*s+4*(2*d)+(j>>1)}, s{66+(j&1)}")
        LAG = self.o("lag", 8)
        todo = [(10 * s + 2 * d + 1, s, d) for s in range(2) for d in range(4)]
        for n in range(NB + NB2, 18):
            a(loads[n])
            if todo and todo[0][0] + LAG <= n:
                k, s, d = todo.pop(0); a(f"s_waitcnt vmcnt({n - k})"); perms(s, d)
        EH = self.o("eh", 2)
        while len(todo) > EH:
            k, s, d = todo.pop(0); a(f"s_waitcnt vmcnt({17 - k})"); perms(s, d)
        self.stamp(7)
        a(f"""
        s_barrier
        ds_read_b128 v[28:31], v235
        ds_read_b128 v[32:35], v235 offset:1024
        s_mov_b32 s58, 0x00ff00ff
        s_mov_b32 s59, 0x00ff00ff
        """)
        rest = []
        n0 = len(a.l)
        for k, s, d in todo:
            a(f"s_waitcnt vmcnt({17 - k})"); perms(s, d)
        rest = a.l[n0:]; del a.l[n0:]
        for _ in range(9):
            if rest: a(rest.pop(0))
        a("s_waitcnt lgkmcnt(0)")
        self.stamp(8)
        A = lambda j, s: vr(OP + 32 * s + 4 * j, 4) if j < 8 else vr(EX + 4 * s, 4)
        mfd = lambda j, s: a(f"v_mfma_f32_16x16x32_bf16 {vr(AC+4*j,4)}, {A(j,s)}, {'v[28:31]' if s == 0 else 'v[32:35]'}, {'0' if s == 0 else vr(AC+4*j,4)}")
        TM = 212
        def out(jh, r):
            t = TM + 8 * jh + 4 * r
            return [f"v_bitop3_b32 v{t+c}, v232, v{AC+16*jh+4*c+r+2}, v{AC+16*jh+4*c+r} bitop3:0xca" for c in range(4)] + \
                   [f"v_bitop3_b32 v{t}, v234, v233, v{t} bitop3:0xca", f"global_store_dwordx4 v{4+2*jh+r}, {vr(t,4)}, s[36:37] sc1"]
        ext = [f"v_bitop3_b32 v{AC+32}, v234, v233, v{AC+32} bitop3:0xca", f"s_mov_b64 exec, s[58:59]\nglobal_store_dwordx4 v8, {vr(AC+32,4)}, s[36:37] sc1\ns_mov_b64 exec, -1"]
        EO = EH and self.o("eho", 1)
        if EO:
            order = [(8, 0), (8, 1)] + [(j + 4 * h, s) for h in range(2) for s in range(2) for j in range(4)]
        elif EH:
            order = [(8, 0), (8, 1)] + [(j, 0) for j in range(8)] + [(j, 1) for j in range(8)]
        else:
            order = [(8, 0), (8, 1)] + [(j, s) for j in range(8) for s in range(2)]
        fill = []
        for n, (j, s) in enumerate(order):
            if s == 1 and j < 8:
                while rest: a(rest.pop(0))
            mfd(j, s)
            if rest: a(rest.pop(0))
            if rest and EO: a(rest.pop(0))
            if n == 7: fill += ext
            if (EO or not EH) and n == 12: fill += out(0, 0) + out(0, 1)
            for _ in range(2):
                if fill: a(fill.pop(0))
        if EH and not EO: fill += out(0, 0) + out(0, 1)
        for t in fill + out(1, 0) + out(1, 1): a(t)
        self.stamp(9)
        if self.o("pp", 0):
            a(f"""s_lshl_b32 s42, s{S_XCD}, 3
            s_add_u32 s42, s42, s54
            s_add_u32 s43, s{S_XCD}, 64
            s_cmp_eq_u32 s54, 8
            s_cselect_b32 s42, s43, s42
            s_mul_i32 s42, s42, {2*PSTR}
            s_add_u32 s42, s42, {PARTS}
            v_min_u32 v9, 145, v0
            v_lshl_add_u32 v9, v9, 7, s42
            s_waitcnt vmcnt(0)
            {"s_sleep %d" % (self.o("pp", 0) - 1) if self.o("pp", 0) > 1 else ""}
            global_load_dword v10, v9, s[36:37] sc1
            s_waitcnt vmcnt(0)""")
        self.dump()
        a(f"""
        s_endpgm
L_slow:
        v_mov_b32 v21, 0
        v_mov_b32 v38, v26
        s_mov_b32 s10, 16
L_slow_r:
        """)
        for k in range(8): a(f"v_sub_u32 v{AC+k}, v{KY+k}, v21")
        a(f"""
        v_max3_u32 v24, v{AC}, v{AC+1}, v{AC+2}
        v_max3_u32 v24, v24, v{AC+3}, v{AC+4}
        v_max3_u32 v24, v24, v{AC+5}, v{AC+6}
        v_max_u32 v24, v24, v{AC+7}
        ds_max_u32 v38, v24 offset:96
        s_mov_b64 exec, 1
        ds_add_u32 v26, v27 offset:40
        s_mov_b64 exec, -1
L_slow_s:
        ds_read_b32 v24, v26 offset:40
        ds_read_b32 v39, v38 offset:96
        s_waitcnt lgkmcnt(0)
        v_readfirstlane_b32 s11, v24
        s_cmp_ge_u32 s11, s10
        s_cbranch_scc1 L_slow_ok
        s_sub_u32 s55, s55, 1
        s_cbranch_scc0 L_slow_s
L_slow_ok:
        v_add_u32 v21, v21, v39
        v_alignbit_b32 v24, 1, v21, 5
        ds_write_b32 v38, v24 offset:64
        v_add_u32 v38, 4, v38
        s_add_u32 s10, s10, 16
        s_cmp_le_u32 s10, 128
        s_cbranch_scc1 L_slow_r
        ds_read_b32 v23, v17 offset:64
        ds_read_b32 v13, v18 offset:64
        s_add_u32 m0, s64, {F_X}
        s_waitcnt lgkmcnt(0)
        v_and_b32 v23, 0x7ff, v23
        """)
        a(xdma.replace("@", "b"))
        a("v_mov_b32 v36, 4\ns_waitcnt vmcnt(0)")
        a(xflag.replace("@", "b"))
        a("s_branch L_dgo")
        XS, GO, UO = 40, 112, 184
        N1 = self.o("n1", 9); THR = self.o("thr", 0)
        def dma(lab, n, thr):
            a(f"""s_movk_i32 s55, {n}
{lab}:
            s_mov_b32 m0, s53
            s_add_u32 s42, s53, 73728
            global_load_lds_dwordx4 v1, s[26:27]
            s_mov_b32 m0, s42
            s_add_u32 s53, s53, 4096
            global_load_lds_dwordx4 v1, s[28:29]
            v_add_u32 v1, {32*9216}, v1
            {"s_waitcnt vmcnt(%d)" % (thr & 63) if thr else ""}
            s_sub_u32 s55, s55, 1
            s_cmp_lg_u32 s55, 0
            s_cbranch_scc1 {lab}""")
        a(f"L_gu:\ns_setprio 0\ns_add_u32 s53, s53, {4096*self.R1}\nv_mov_b32 v1, v76")
        if self.o("r1h", 0) and self.o("late0", 1): a(f"s_add_u32 m0, s53, {73728-4096}\ns_nop 0\nglobal_load_lds_dwordx4 v1, s[28:29]\nv_add_u32 v1, {32*9216}, v1")
        dma("L_dma1", self.P1 + self.o("px", 2), 0)
        a(f"""
        v_lshrrev_b32 v12, 1, v2
        v_min_u32 v12, 8, v12
        v_mul_u32_u24 v12, {XSTR}, v12
        v_and_b32 v13, 16, v3
        v_add_u32 v12, v12, v13
        v_add_u32 v12, {F_X + 1024}, v12
        v_mov_b32 v20, 0x3f803f80
        v_mov_b32 v21, v20
        v_mov_b32 v22, v20
        v_mov_b32 v23, v20
        ds_write_b128 v12, v[20:23]
        ; tr-read addresses v4..v7
        v_bfe_u32 v15, v0, 2, 2
        v_and_b32 v16, 3, v0
        v_lshl_add_u32 v17, v14, 3, v15
        v_bfe_u32 v18, v0, 3, 2
        v_xor_b32 v18, s51, v18
        v_lshlrev_b32 v18, 5, v18
        v_lshl_add_u32 v18, v16, 3, v18
        v_lshl_add_u32 v4, v17, 7, v18
        v_add_u32 v5, 36864, v4
        v_add_u32 v6, 73728, v4
        v_add_u32 v7, {73728+36864}, v4
        """)
        addr = f"""v_and_b32 v19, 6, v11
        v_xor_b32 v19, v19, v14
        v_lshlrev_b32 v19, 4, v19
        v_lshl_add_u32 v19, v11, 7, v19
        v_xor_b32 v20, 64, v19
        v_bfe_i32 v21, v0, 3, 1
        v_lshlrev_b32 v22, 2, v0
        v_xor_b32 v22, v22, v0
        v_and_b32 v22, 16, v22
        v_or_b32 v22, 1024, v22
        v_bfi_b32 v19, v21, v22, v19
        v_xor_b32 v22, 16, v22
        v_bfi_b32 v20, v21, v22, v20
        v_add_u32 v19, {F_X}, v19
        v_add_u32 v20, {F_X}, v20
        v_lshl_add_u32 v18, v11, 2, v26
        s_lshr_b32 s42, s51, 1
        s_lshl_b32 s42, s42, 10
        s_and_b32 s43, s51, 1
        s_lshl_b32 s43, s43, 3
        s_add_u32 s42, s42, s43
        s_add_u32 s42, s42, {F_H}
        v_add_u32 v27, s42, v3
        v_and_b32 v8, {PSTR}, v21
        v_lshl_add_u32 v8, v11, 4, v8
        s_mul_i32 s42, s50, {2*PSTR}
        s_add_u32 s42, s42, {PARTS + 72*128}
        v_add_u32 v8, s42, v8""".split("\n")
        for t in addr: a(t)
        def trs(lo, hi):
            for s in range(lo, hi):
                for m, base in ((0, GO), (1, UO)):
                    for e in range(2):
                        a(f"ds_read_b64_tr_b16 {vr(base+4*s+2*e,2)}, v{4+2*m+s//9} offset:{4096*(s%9)+512*e}")
        S1 = self.R1 + self.P1
        if self.o("ft", 0) == 1:
            a(f"""s_lshr_b32 s42, s51, 1
            s_mul_i32 s42, s42, 9
            s_add_u32 s42, s42, s54
            s_lshl_b32 s42, s42, 6
            s_add_u32 s42, s42, {9*(576 - self.R0) - 1152}
            s_and_b32 s58, s51, 1""")
            self.touch_setup(77)
        PX, N2T = self.o("px", 2), self.o("n2t", 4)
        S2 = S1 + PX + N2T
        tr2 = lambda m, s: [f"ds_read_b64_tr_b16 {vr((GO, UO)[m]+4*s+2*e,2)}, v{4+2*m+s//9} offset:{4096*(s%9)+512*e}" for e in range(2)]
        a(f"s_waitcnt vmcnt({2*PX})")
        self.stamp(10)
        a("s_barrier")
        STG = self.o("stg", 0)
        NR = 18 - S2
        if STG:
            def stage():
                for i in range(N2T):
                    for m in (0, 1): a(f"global_load_dwordx4 {vr(XS+8*i+4*m,4)}, v1, s[{26+2*m}:{27+2*m}]")
                    a(f"v_add_u32 v1, {32*9216}, v1")
            if STG == 2:
                a("s_barrier"); stage(); trs(0, S1)
            else:
                trs(0, S1); a("s_barrier"); stage()
            a(f"""v_add_u32 v36, s53, v3
            v_add_u32 v37, 73728, v36
            s_add_u32 s53, s53, {4096*N2T}
            s_mov_b32 s55, {SPIN*16}
            v_mov_b32 v23, 0x100
            s_waitcnt vmcnt({2*N2T if self.o("stw", 1) == 0 else 0})""")
            self.stamp(12)
            a("s_barrier\ns_setprio 2")
            S2 = S1 + PX
            mid = [t for s in range(S1, S2) for m in (0, 1) for t in tr2(m, s)]
            wrs = [f"ds_write_b128 v{36+m}, {vr(XS+8*i+4*m,4)} offset:{4096*i}" for i in range(N2T) for m in (0, 1)]
            if self.o("stw", 1): mid = wrs + mid
            else: mid = mid + [None] + wrs
        else:
            trs(0, S1)
            SF = self.o("sf", 0); SF1 = min(SF, self.o("sf1", 14))
            if SF:
                a(f"""s_mul_i32 s42, s50, 73728
                s_mul_i32 s43, s51, {128*SF}
                s_add_u32 s42, s42, s43
                s_add_u32 s62, s30, s42
                s_addc_u32 s63, s31, 0
                s_waitcnt lgkmcnt(0)""")
            for i in range(SF1): a(f"s_load_dword s{4+i%16}, s[62:63], {128*i}")
            if N2T:
                a("s_barrier"); dma("L_dma4", N2T, self.o("thr2", 2))
            for i in range(SF1, SF): a(f"s_load_dword s{4+i%16}, s[62:63], {128*i}")
            NW_ = self.o("nw", 0)
            a(f"s_mov_b32 s55, {SPIN*16}\nv_mov_b32 v23, 0x100\ns_waitcnt vmcnt({2*NW_})")
            S2 -= NW_
            self.stamp(12)
            a("s_barrier\ns_setprio 2")
            mid = [t for s in range(S1, S2) for m in (0, 1) for t in tr2(m, s)]
        per = self.o("per", -(-len(mid) // max(1, 2 * NR)) if not STG else 1)
        for i in range(NR):
            for m in (0, 1):
                a(f"s_add_u32 m0, s53, {4096*i + 73728*m}\ns_nop 0\nglobal_load_lds_dwordx4 v1, s[{26+2*m}:{27+2*m}]")
                for _ in range(per):
                    if mid and mid[0] is not None: a(mid.pop(0))
            a(f"v_add_u32 v1, {32*9216}, v1")
        mid = [t if t is not None else f"s_waitcnt vmcnt({2*NR})" for t in mid]
        if self.o("bw", 1): a("s_barrier")
        for t in mid: a(t)
        self.stamp(4)
        def sync_all():
            a("""s_waitcnt vmcnt(0)
            s_mov_b64 exec, 1
            ds_add_u32 v26, v23 offset:36
            s_mov_b64 exec, -1""")
            self.stamp(5)
            a(f"""L_s6:
            ds_read_b32 v24, v26 offset:36
            s_waitcnt lgkmcnt(0)
            v_readfirstlane_b32 s61, v24
            s_cmp_eq_u32 s61, 0x80410
            s_cbranch_scc1 L_s6_ok
            s_and_b32 s60, s61, 0xffff
            s_cmp_eq_u32 s60, 0x420
            s_cbranch_scc1 L_s6_ok
            s_sub_u32 s55, s55, 1
            s_cbranch_scc0 L_s6
L_s6_ok:""")
            self.stamp(11)
        if E2:
            a(f"""L_s8:
        ds_read_b32 v24, v26 offset:36
        s_waitcnt lgkmcnt(0)
        v_readfirstlane_b32 s61, v24
        s_and_b32 s61, s61, 0xffff00ff
        s_cmp_eq_u32 s61, {0x90010 if self.o("forceslow", 0) else 0x80010}
        s_cbranch_scc1 L_s8_ok
        s_and_b32 s60, s61, 0xff
        s_cmp_eq_u32 s60, 0x20
        s_cbranch_scc1 L_s8_ok
        s_sub_u32 s55, s55, 1
        s_cbranch_scc0 L_s8
L_s8_ok:""")
        else: sync_all()
        fill1 = ["v_and_b32 v7, 0xffff0000, v25", "v_rcp_f32 v16, v7", "v_lshlrev_b32 v6, 16, v25", "v_xor_b32 v25, 0x80000000, v6"]
        fill2 = []
        for r in range(28, 32): fill2.append(f"v_fmac_f32_dpp v{r}, v{r}, v25 row_newbcast:8 row_mask:0xf bank_mask:0xf")
        for r in range(4): fill2.append(f"v_mul_f32 v{36+r}, v9, v{28+r}")
        for r in range(4): fill2.append(f"v_exp_f32 v{36+r}, v{36+r}")
        for r in range(28, 32): fill2.append(f"v_mul_f32 v{r}, v{r}, v10")
        for r in range(4): fill2.append(f"v_add_f32 v{36+r}, 1.0, v{36+r}")
        for r in range(4): fill2.append(f"v_rcp_f32 v{36+r}, v{36+r}")
        for r in range(4): fill2.append(f"v_mul_f32 v{28+r}, v{28+r}, v{36+r}")
        fill1 += [f"v_mul_f32 v16, {f2u(32.0)}, v16", f"v_mul_f32 v9, {f2u(-LOG2E)}, v16", "v_mul_f32 v10, v16, v16"]
        rdx = lambda s: a(f"ds_read_b128 {vr(XS+4*s,4)}, v{19+(s&1)} offset:{XSTR*(s>>1)}")
        mf = lambda m, s: a(f"v_mfma_f32_16x16x32_bf16 {('v[28:31]', 'v[32:35]')[m]}, {vr((GO, UO)[m]+4*s,4)}, {vr(XS+4*s,4)}, {'0' if s==0 else ('v[28:31]', 'v[32:35]')[m]}")
        if E2:
            UH = self.o("uh", 5)
            fill1 = [t.replace("v7", "v15").replace("v6", "v12") for t in fill1]
            rds = [f"ds_read_b128 {vr(XS+4*s,4)}, v{19+(s&1)} offset:{XSTR*(s>>1)}" for s in range(18)] + ["ds_read_b32 v25, v18 offset:448", "ds_read_b32 v13, v18 offset:64"]
            nrd = 0
            for _ in range(6): a(rds.pop(0)); nrd += 1
            done = 0
            for s in range(S2):
                if s >= done:
                    done = s + (1 if s == 0 else 2)
                    a(f"s_waitcnt lgkmcnt({max(0, nrd - done)})")
                for m in (0, 1):
                    if m == 1 and s >= S2 - UH: continue
                    mf(m, s)
                    if rds: a(rds.pop(0)); nrd += 1
            assert not rds
            sync_all()
            order = [(0, s) for s in range(S2, 18)] + [(1, s) for s in range(S2 - UH, 18)]
            for m in (0, 1):
                for s in range(S2, 18):
                    for t in tr2(m, s): a(t)
            for t in fill1: a(t)
            for n, (m, s) in enumerate(order):
                if m == 0: a(f"s_waitcnt lgkmcnt({min(15, 2*(17-s) + 2*(18-S2))})")
                if (m, s) == (1, S2): a("s_waitcnt lgkmcnt(0)")
                mf(m, s)
                if n >= 18 - S2 + 3:
                    for _ in range(3):
                        if fill2: a(fill2.pop(0))
        else:
            I = self.o("gi", 5)
            order = [(m, s) for s in range(I) for m in (0, 1)] + [(0, s) for s in range(I, 18)] + [(1, s) for s in range(I, 18)]
            rds = []
            for n, (m, s) in enumerate(order):
                if m == 0: rds.append((f"ds_read_b128 {vr(XS+4*s,4)}, v{19+(s&1)} offset:{XSTR*(s>>1)}", n))
                if s >= S2: rds += [(t, n) for t in tr2(m, s)]
                if n == 14: rds += [("ds_read_b32 v25, v18 offset:448", n), ("ds_read_b32 v13, v18 offset:64", n)]
            fill1 = [t.replace("v7", "v15").replace("v6", "v12") for t in fill1]
            q = []; lastg = max(n for n, o in enumerate(order) if o[0] == 0)
            for _ in range(6): t = rds.pop(0); a(t[0]); q.append(t[1])
            for n, (m, s) in enumerate(order):
                if q and q[0] <= n:
                    k = sum(1 for z in q if z <= n + (2 if n else 0)); q = q[k:]
                    a(f"s_waitcnt lgkmcnt({len(q)})")
                assert not rds or rds[0][1] > n
                mf(m, s)
                c = 0
                while rds and len(q) < 14 and (c < 1 or (c < 2 and rds[0][1] <= n + 12) or rds[0][1] <= n + 5):
                    t = rds.pop(0); a(t[0]); q.append(t[1]); c += 1
                while c < 2 and n > 14 and fill1: a(fill1.pop(0)); c += 1
                while c < 2 and n >= lastg + 4 and not fill1 and fill2: a(fill2.pop(0)); c += 1
            assert not fill1 and not rds
        self.stamp(7)
        while fill2: a(fill2.pop(0))
        for r in range(32, 36): a(f"v_fmac_f32_dpp v{r}, v{r}, v25 row_newbcast:8 row_mask:0xf bank_mask:0xf")
        for r in range(4): a(f"v_mul_f32 v{28+r}, v{28+r}, v{32+r}")
        a(f"""
        v_cvt_pk_bf16_f32 v28, v28, v29
        v_cvt_pk_bf16_f32 v29, v30, v31
        ds_write_b64 v27, v[28:29]
        s_waitcnt lgkmcnt(0)
        """)
        self.stamp(8)
        OT = f"""; the last line of every output row is written in pieces by all XCDs: bring it on chip first (value unused)
        s_cmp_lg_u32 s{S_W}, 5
        s_cbranch_scc1 L_not
        s_lshl_b32 s42, s50, 5
        v_and_b32 v1, 31, v2
        v_add_u32 v1, s42, v1
        v_min_u32 v1, 2047, v1
        v_mul_u32_u24 v1, 1152, v1
        s_mov_b32 exec_hi, 0
        global_load_dword v1, v1, s[32:33] offset:1024
        s_waitcnt vmcnt(0)
L_not:""" if self.o("ot", 0) == 4 else ""
        a(f"""
        s_barrier
        {OT}
        s_cmp_lg_u32 s{S_W}, 4
        s_cbranch_scc1 L_gu_end
        v_lshlrev_b32 v36, 5, v13
        v_not_b32 v37, v36
        v_ashrrev_i32 v38, 31, v37
        v_or_b32 v38, 0x80000000, v38
        v_xor_b32 v36, v36, v38
        v_and_b32 v36, 0xffff0000, v36
        v_mul_f32 v36, {f2u(-LOG2E)}, v36
        v_exp_f32 v36, v36
        v_bfe_u32 v4, v37, 5, 11
        v_mov_b32 v6, v12
        v_mov_b32 v7, v15
        v_add_f32 v36, 1.0, v36
        v_rcp_f32 v5, v36
        v_lshl_or_b32 v4, v4, 8, s{S_T8}
        s_mov_b64 exec, 0xffff
        global_store_dwordx4 v8, v[4:7], s[36:37] sc1
        s_cmp_lg_u32 s50, 0
        s_cbranch_scc1 L_gu_end
        v_mov_b32 v9, {EPOCH}
        v_mov_b32 v10, s38
        s_mov_b64 exec, 1
        global_store_dword v9, v10, s[36:37] sc1
L_gu_end:
        """)
        self.dump()
        a("s_endpgm")

    def conv(self):
        a = self.a
        BAND, ST = 40, 224
        T64 = self.o("tile64", 1)
        a(f"""
L_conv:
        s_cmp_eq_u32 s52, 0
        s_cbranch_scc1 L_cprio
        s_setprio {self.o("pt", 1)}
L_cprio:
        s_lshl_b32 s42, s52, 8
        s_add_u32 m0, s55, s42
        s_waitcnt vmcnt(2)
        s_lshr_b32 s43, s{S_W}, 1
        {"s_cmp_lg_u32 s43, 1" if self.o("e1", 0) else "s_cmp_lt_u32 s51, 2"}
        s_cbranch_scc1 L_cw
        s_waitcnt vmcnt(1)
L_cw:
        {self.fs(1, "cf")}
        v_lshlrev_b32 v70, 16, v70
        v_mul_f32 v70, {f2u(LOG2E)}, v70
        v_exp_f32 v70, v70
        """)
        for r in range(64, 70): a(f"v_lshlrev_b32 v{r}, 16, v{r}")
        a(f"""
        v_cvt_pk_bf16_f32 v70, v70, v70
        v_and_b32 v70, 0xffff0000, v70
        v_mul_f32 v64, v70, v64
        v_mul_f32 v65, v70, v65
        v_mul_f32 v70, {f2u(1024.0)}, v70
        v_mul_f32 v64, {f2u(LOG2E)}, v64
        v_mul_f32 v65, {f2u(INV2PI)}, v65
        v_mul_f32 v66, v70, v66
        v_mul_f32 v67, v70, v67
        """)
        def touch(cond, lab):
            return f"""{cond}
            s_cbranch_scc0 {lab}
            global_load_dword v1, v76, s[56:57]
{lab}:"""
        T2 = f"s_cmp_eq_u32 s47, 9\ns_cbranch_scc0 L_ct2\nv_add_u32 v76, {352*9216}, v76\nglobal_load_dword v1, v76, s[56:57]\nL_ct2:"
        if not self.o("e1", 0): a(touch("s_cmp_eq_u32 s48, 1", "L_ct1"))
        T3 = touch(f"s_cmp_lt_u32 s{S_W}, {self.o('n3', 2)}", "L_ct3"); self.T3 = T3
        t2at, t3at, TA = self.o("t2at", 8), self.o("t3at", 32), self.o("tile_at", 28)
        if t2at == 0: a(T2)
        E = ((22, 1.0, True), (24, 16.0, False), (26, 512.0, True))
        for k, (d, e, cj) in enumerate(E):
            if k: a(f"v_mul_f32 v{12+k}, {f2u(e)}, v64\nv_mul_f32 v{16+k}, {f2u(e)}, v65")
        for k, (d, e, cj) in enumerate(E): a(f"v_exp_f32 v{12+k}, v{12+k if k else 64}\nv_fract_f32 v{16+k}, v{16+k if k else 65}")
        a("""v_pk_mul_f32 v[20:21], v[68:69], v[66:67] op_sel:[0,0] op_sel_hi:[0,1] neg_hi:[0,1]
        v_pk_fma_f32 v[90:91], v[68:69], v[66:67], v[20:21] op_sel:[1,1,0] op_sel_hi:[1,0,1] neg_lo:[0,1,0] neg_hi:[0,1,0]""")
        for k, (d, e, cj) in enumerate(E): a(f"v_cos_f32 v{d}, v{16+k}\nv_sin_f32 v{d+1}, v{16+k}")
        a("v_mov_b32 v34, 0x3f80\nds_write_addtid_b32 v34")
        for k, (d, e, cj) in enumerate(E):
            a(f"v_mul_f32 v{d}, v{12+k}, v{d}\nv_mul_f32 v{d+1}, {'-' if cj else ''}v{12+k}, v{d+1}")
        H = lambda e: 90 + 2 * e
        gops = []
        for e in range(1, 17): gops.append((H(e), H(e - 1), 22, [32 + e]))
        for k, e in enumerate((0, 4, 8, 12, 16)):
            gops.append((H(e), H(e), 26, ([49 + 4 * k] if k < 4 else []) + ([46 + 4 * k] if k > 0 else [])))
        for k, e in enumerate((8, 16)): gops.append((H(e), H(e), 26, [51 + 4 * k]))
        for k, e in enumerate((8, 16)): gops.append((H(e), H(e), 26, [59 + 4 * k]))
        a(f"""v_cvt_pk_bf16_f32 v35, v90, v91
        ds_write_addtid_b32 v35 offset:{32*ROW}
        v_cvt_pk_bf16_f32 v36, v24, v25
        ds_write_addtid_b32 v36 offset:{ROW}""")
        self.tile_ld = [f"global_load_dwordx4 {vr(40+4*k,4)}, v6, s[{12+2*k}:{13+2*k}] sc1" for k in range(4)]
        self.stat_ld = [f"global_load_dwordx4 {vr(ST+4*k,4)}, v{(4, 7)[k>>1]}, s[36:37] offset:{-4096 if k%2==0 else 0} sc1" for k in range(4)]
        def hp_only(n, txt):
            return f"s_cmp_eq_u32 s52, 0\ns_cbranch_scc1 L_hp{n}\n{txt}\nL_hp{n}:"
        ins = {TA: hp_only(0, f"""v_bfe_u32 v12, v0, 2, 6
                v_and_b32 v6, 0x30, v3
                v_lshl_add_u32 v6, v12, {6 if T64 else 7}, v6
                {self.tile_ld[0]}
                {self.tile_ld[1]}"""),
               TA + 3: hp_only(1, self.tile_ld[2] + "\n" + self.tile_ld[3])}
        salu = []
        for k in range(4):
            salu += [f"s_bfe_u32 s43, s{S_TT}, {(2<<16) | (2*k)}", "s_mul_i32 s43, s43, 0x20004000", f"s_and_b32 s{4+k}, s43, 0x40004000"]
        salu += ["s_sub_u32 s8, s52, 1", "s_lshl_b32 s9, s52, 2", "s_and_b32 s10, s8, 2056", "s_add_u32 s10, s10, 54", "s_add_u32 s10, s10, s62",
                 "s_lshl_b32 s11, s52, 6", "s_sub_u32 s11, s62, s11", f"s_add_u32 s11, s11, {K8 + 254}",
                 ] + (["s_lshl_b32 s42, s50, 14"] if T64 else ["s_lshr_b32 s42, s50, 1", "s_lshl_b32 s42, s42, 15", "s_and_b32 s43, s50, 1", "s_lshl_b32 s43, s43, 6", "s_add_u32 s42, s42, s43"]) + [f"s_add_u32 s42, s42, {TILE}",
                 "s_add_u32 s12, s36, s42\ns_addc_u32 s13, s37, 0"]
        for k in range(1, 4): salu.append(f"s_add_u32 s{12+2*k}, s12, {(4096 if T64 else 8192)*k}\ns_addc_u32 s{13+2*k}, s13, 0")
        dup = []
        a(self.fs(10, "cf"))
        for i in range(2, 32):
            t = 34 + (i & 1) * 2
            cmul(a, 28, 24 if i == 2 else 28, 24, 30)
            a(f"v_cvt_pk_bf16_f32 v{t}, v28, v29")
            if salu: a(salu.pop(0))
            a(f"ds_write_addtid_b32 v{t} offset:{i*ROW}")
            if i - 2 < len(gops):
                d, s, z, rows = gops[i - 2]
                cmul(a, d, s, z, 32)
                tg = t + 1 if len(rows) == 1 else 12 + 1 + len(dup)
                a(f"v_cvt_pk_bf16_f32 v{tg}, v{d}, v{d+1}")
                if salu: a(salu.pop(0))
                a(f"ds_write_addtid_b32 v{tg} offset:{rows[0]*ROW}")
                if len(rows) > 1: dup.append(f"ds_write_addtid_b32 v{tg} offset:{rows[1]*ROW}")
            if i == 31:
                for t in dup: a(t)
            if i in ins:
                assert not salu
                a(ins[i])
            if i == 16: a(self.fs(9, "cf"))
            if i == t2at: a(T2)
            if i == t3at: a(T3)
        self.stamp(4)
        band = f"""v_lshlrev_b32 v5, 3, v9
        v_mov_b32 v6, {0x7f << 5}
        v_lshlrev_b32 v6, v8, v6
        v_bfe_u32 v6, v6, v5, 8
        v_lshl_or_b32 v6, v6, 15, v6""".split("\n")
        for j in range(4): band += [f"v_and_b32 v{BAND+j}, {0x10001 << (2*j)}, v6", f"v_mul_u32_u24 v{BAND+j}, {0x3f80 >> (2*j)}, v{BAND+j}"]
        band += [f"v_mov_b32 v6, {0x1ff << 4}", "v_lshlrev_b32 v6, v8, v6", "v_bfe_u32 v6, v6, v5, 8", "v_lshl_or_b32 v6, v6, 15, v6"]
        for j in range(4): band += [f"v_and_b32 v{BAND+4+j}, {0x10001 << (2*j)}, v6", f"v_mul_u32_u24 v{BAND+4+j}, {0x3f80 >> (2*j)}, v{BAND+4+j}"]
        self.band = band
        a("s_waitcnt lgkmcnt(0)\ns_barrier")
        self.stamp(11)
        fill = f"""v_add_u32 v14, 1, v9
        v_and_b32 v14, 6, v14
        v_add_u32 v14, v14, v14
        v_sub_u32 v14, 2112, v14
        v_and_b32 v14, s8, v14
        v_lshl_add_u32 v17, v8, 2, s62
        v_mul_u32_u24 v18, {KS}, v9
        v_add3_u32 v14, v14, v18, v17
        v_min_u32 v15, s9, v8
        v_sub_u32 v15, v15, v9
        v_lshl_add_u32 v15, v15, 1, v18
        v_add_u32 v15, s10, v15
        v_and_b32 v18, 32, v0
        v_add_u32 v18, v18, v8
        v_bfe_i32 v19, v0, 4, 1
        v_add_u32 v18, v18, v18
        v_sub_u32 v18, v19, v18
        v_lshl_add_u32 v18, v18, 1, s11""".split("\n")
        self.kfill = fill
        a("s_cmp_eq_u32 s52, 0\ns_cbranch_scc0 L_helper")
        self.mfma_waves()
        self.helper()

    def kg(self, extra, tail, h):
        a = self.a
        fill = extra + self.kfill if h else self.kfill + extra
        per = (len(fill) - 8 + 3) // 4 if tail else (len(fill) - 8 + 6) // 7
        def F(n):
            for _ in range(n):
                if fill: a(fill.pop(0))
        for s in range(8):
            a(f"""ds_read_b128 {vr(128+4*s,4)}, v79 offset:{16*s}
            ds_read_b128 {vr(160+4*s,4)}, v78 offset:{32*ROW+16*s}
            ds_read_b128 {vr(192+4*s,4)}, v80 offset:{48*ROW+16*s}""")
            if s == 3: F(8)
            if s >= 4: self.kg_mfma(s - 4, 12); F(per)
        n = 0
        for s in range(4, 8):
            if tail:
                a(tail[s - 4]); n += 1
            self.kg_mfma(s, 3 * (7 - s) + n)
            if s < 7: F(per)
        assert not fill
        a("s_barrier")
        self.stamp(5)
        a(f"""
        ds_write_b32 v14, v84
        ds_write_b32 v17, v84 offset:{K8+256}
        """)
        if h:
            a("""v_readlane_b32 s42, v26, 63
            v_bitop3_b32 v19, v19, v26, v25 bitop3:0xca
            v_cvt_pk_bf16_f32 v28, v24, v22
            v_cvt_pk_bf16_f32 v29, v20, v20""")
        else:
            a("""v_add_f32 v20, v20, v71
            v_bitop3_b32 v19, v19, v26, v25 bitop3:0xca
            v_readlane_b32 s42, v20, 0
            v_cvt_pk_bf16_f32 v28, v23, v22
            v_cvt_pk_bf16_f32 v29, v21, v20""")

    def copies(self, extra, h):
        a = self.a
        pend = [f"v_cvt_pk_bf16_f32 v30, v24, v{24 if h else 23}", f"v_cvt_pk_bf16_f32 v31, v22, v{20 if h else 21}", "v_cvt_pk_bf16_f32 v32, v26, v19", "v_cvt_pk_bf16_f32 v33, v25, v25",
                "v_cvt_pk_bf16_f32 v34, v26, v26", "v_cvt_pk_bf16_f32 v35, v19, v25", "v_cvt_pk_bf16_f32 v27, v27, s42"] + extra
        n = 0
        for t in range(2):
            for par in range(2):
                for ad in (81, 82):
                    for k in range(2):
                        a(f"ds_write_b32 v{ad}, v{28+4*t+2*par+k} offset:{1024*(1-t) + par*(KS-4) + 4*k}")
                        n += 1
                        for _ in range(1 if n <= 7 else 3):
                            if pend: a(pend.pop(0))
        a("ds_write_b16_d16_hi v15, v27\nds_write_b16 v18, v27")
        while pend: a(pend.pop(0))

    def kg_mfma(self, s, cnt):
        a = self.a
        a(f"s_waitcnt lgkmcnt({cnt})")
        a(f"v_mfma_f32_16x16x32_bf16 v[20:23], {vr(160+4*s,4)}, {vr(128+4*s,4)}, {'0' if s==0 else 'v[20:23]'}")
        a(f"v_mfma_f32_16x16x32_bf16 v[24:27], {vr(192+4*s,4)}, {vr(128+4*s,4)}, {'0' if s==0 else 'v[24:27]'}")

    def mfma_waves(self):
        a = self.a
        KR = lambda i, j: 128 + 32 * i + 4 * j
        K32, TT, BAND, VP = 12, 16, 40, 92
        ACC = lambda g: (80, 84, 32, 36, 48, 52, 56, 60)[g]
        URING = [64, 68, 72, 76, 108, 112, 116, 120, 124]
        VFT = lambda tau: (80, 32)[tau & 1]
        addr = f"""v_and_b32 v10, 3, v8
        v_mul_u32_u24 v10, {KS - 2}, v10
        v_lshl_add_u32 v11, v8, 1, v9
        v_mul_u32_u24 v4, 17, v9
        v_sub_u32 v4, v4, v11
        s_add_u32 s43, s62, {24 + 3*KS}
        v_sub_u32 v10, v4, v10
        v_add_u32 v10, s43, v10
        v_lshl_add_u32 v11, v11, 4, s63
        v_lshlrev_b32 v7, 5, v8
        v_lshl_add_u32 v7, v9, 3, v7
        s_lshl_b32 s43, s51, 12
        s_add_u32 s43, s43, {YBASE}
        v_add_u32 v7, s43, v7
        v_lshlrev_b32 v4, 2, v9
        v_sub_u32 v4, v4, v8
        s_add_u32 s43, s62, {K8 + 60}
        v_lshl_add_u32 v4, v4, 2, s43
        s_lshl_b32 s43, s51, 2
        s_add_u32 s43, s43, {CFL}
        v_mov_b32 v88, s43""".split("\n")
        ds = f"""v_add_u32 v72, -1, v2
        v_lshlrev_b32 v71, 16, v71
        v_and_b32 v71, v71, v72
        v_mul_f32 v71, {f2u(1024.0)}, v71""".split("\n")
        self.kg(ds + ([self.T3] if self.o("t3at", 32) == 32 else []) + addr, None, 0)
        self.copies(self.band, 0)
        self.stamp(12)
        if self.o("t3at", 32) == 33: a(self.T3)
        a(f"s_waitcnt lgkmcnt(0)\ns_barrier\ns_setprio {self.o('pm', 1)}")
        self.stamp(7)
        ops = []; first = set()
        def mm(accreg, A, B, fresh=False):
            c0 = fresh or accreg not in first; first.add(accreg)
            ops.append(("m", accreg, A, B, c0))
        U = lambda nu, ph: ("U", nu, ph)
        def cls(g0, j):
            n = 0
            for ip in range(max(0, g0 - 3), g0 + 2):
                for g in (g0, g0 + 1):
                    i = g - ip
                    if 0 <= i <= 3:
                        mm(ACC(g), ("K", i, j), U(8 * ip - j, g0)); n += 1
                        if j == 0 and g0 > 0 and n in (3, 4): ops.append(("y", g0 - 2 + (n == 4)))
            if j == 0 and g0 > 0: ops.append(("flag",))
        def vgen(tau):
            mm(VFT(tau), U(8 * tau, 9), ("R", BAND), True); mm(ACC(4 + tau), ("K32",), U(8 * tau, 9))
            mm(VFT(tau) + 4, ("US", 8 * tau), ("R", BAND + 4), True)
        def win(g, tau): mm(ACC(g), ("R", VP + 4 * tau), ("T", g - tau))
        for j in range(8): cls(0, j)
        for j in range(8): cls(2, j)
        cls(4, 0); cls(4, 1); vgen(0); vgen(1)
        cls(4, 2); ops.append(("cvtV", 0))
        cls(4, 3); ops.append(("cvtV", 1))
        cls(4, 4); win(4, 0); win(5, 1); win(5, 0)
        for j in range(5, 8): cls(4, j)
        cls(6, 0); vgen(2); vgen(3)
        cls(6, 1); ops.append(("cvtV", 2)); win(6, 1); win(7, 1)
        cls(6, 2); ops.append(("cvtV", 3)); win(6, 0); win(7, 0)
        cls(6, 3); win(6, 2); win(7, 3); win(7, 2)
        for j in range(4, 8): cls(6, j)
        ops.append(("y", 6)); ops.append(("y", 7)); ops.append(("flag",))
        assert sum(o[0] == "m" for o in ops) == 230
        need = []; seen = set(); last = {}
        for k, o in enumerate(ops):
            if o[0] == "m":
                for x in (o[2], o[3]):
                    last[x] = k
                    if x[0] != "R" and x not in seen:
                        seen.add(x)
                        if x[0] in ("U", "US"): need.append((x, k, 1))
                        else: need += [(x, k, 0), (x, k, 1)]
        reg = {}; free = list(URING); q = []
        def issue(x, hf):
            if x[0] in ("U", "US"):
                r = free.pop(0)
                off = 16 * (28 + 4 * x[1]) - (16 if x[0] == "US" else 0)
                a(f"ds_read_b128 {vr(r,4)}, v11 offset:{off}")
            elif x[0] in ("K", "K32"):
                r = KR(x[1], x[2]) if x[0] == "K" else K32
                mu = x[2] + 8 * x[1] if x[0] == "K" else 32
                a(f"ds_read_b64 {vr(r+2*hf,2)}, v10 offset:{64*(32-mu)+8*hf}")
            else:
                r = TT + 4 * (x[1] - 4); o = 16 * (7 - x[1]) + 2 * hf
                a(f"ds_read2_b32 {vr(r+2*hf,2)}, v4 offset0:{o} offset1:{o+1}")
            if hf: reg[x] = r
            q.append(x if hf else None)
        def wait_for(keys):
            nonlocal q
            pos = max([k for k, o in enumerate(q) if o in keys], default=-1)
            if pos >= 0:
                a(f"s_waitcnt lgkmcnt({min(15, len(q)-1-pos)})"); q = q[pos + 1:]
        AHEAD = self.o("ahead", 14); WG = self.o("wgrp", 4); URG = self.o("urg", 9)
        nfl = 0; side = []
        for k, o in enumerate(ops):
            if o[0] == "y":
                r = ACC(o[1])
                side += [f"v_cvt_pk_bf16_f32 v{r}, v{r}, v{r+1}", f"v_cvt_pk_bf16_f32 v{r+1}, v{r+2}, v{r+3}", f"ds_write_b64 v7, {vr(r,2)} offset:{512*o[1]}"]
                continue
            if o[0] == "flag":
                nfl += 1
                side += [f"ds_write_b32 v88, v88 offset:{16*(nfl-1)}\n" + (self.fs(nfl, "barstamp") if nfl <= 3 else "")]
                continue
            if o[0] == "cvtV":
                side += [f"v_cvt_pk_bf16_f32 v{VP+4*o[1]+r}, v{VFT(o[1])+4+r}, v{VFT(o[1])+r}" for r in range(4)]
                continue
            if o[2][0] == "R" or o[3][0] == "R":
                if o[2][0] == "R" and any(f"v{o[2][1]}," in t or f"v{o[2][1]+3}," in t for t in side) or o[3][0] == "R" and side:
                    for t in side:
                        a(t)
                        if "ds_" in t: q.append(None)
                    side = []
            n = 0
            ok = lambda: need and (free or need[0][0][0] not in ("U", "US")) and len(q) < 15
            while ok() and need[0][1] <= k + AHEAD and (k == 0 and n < 14 or n < 1 or (need[0][1] <= k + URG and n < 2) or need[0][1] <= k):
                x = need.pop(0); issue(x[0], x[2]); n += 1
            assert all(x[0] == "R" or x in reg for x in (o[2], o[3])), (k, o)
            if any(x in q for x in (o[2], o[3])):
                keys = []
                for oo in ops[k:k + (WG if k > 0 else 1)]:
                    if oo[0] == "m": keys += [oo[2], oo[3]]
                wait_for(keys); n += 1
            if side: n = min(n, 1)
            while side and n < 2:
                t = side.pop(0); a(t); n += 1
                if "ds_" in t: q.append(None)
            R = lambda x: vr(x[1] if x[0] == "R" else reg[x], 4)
            a(f"v_mfma_f32_16x16x32_bf16 {vr(o[1],4)}, {R(o[2])}, {R(o[3])}, {'0' if o[4] else vr(o[1],4)}")
            for x in (o[2], o[3]):
                if x[0] in ("U", "US") and last[x] == k: free.append(reg[x])
        for t in side: a(t)
        self.stamp(8)
        a(f"""
        s_cmp_lg_u32 s{S_W}, 0
        s_cbranch_scc1 L_mw_end
        s_mul_i32 s42, s50, {PSTR}
        s_add_u32 s42, s42, {PARTS + 4096}
        v_add_u32 v18, s42, v3
        v_add_u32 v20, 4096, v18
        v_and_b32 v21, 0x70, v3
        s_add_u32 s42, s42, {72*128 - 4096}
        v_add_u32 v21, s42, v21
        s_mov_b32 s61, {SPIN}
        v_lshl_add_u32 v24, v9, 1, s54
        v_mov_b32 v35, s{S_T8}
        {"s_barrier" if self.o("pollafter", 0) else ""}
L_part_poll:
        global_load_dwordx4 v[164:167], v21, s[36:37] sc1
        """)
        for k in range(9):
            a(f"global_load_dwordx4 {vr(128+4*k,4)}, v{18 if k < 8 else 20}, s[36:37] offset:{1024*k-4096 if k < 8 else 0} sc1")
        a(f"""v_mul_u32_u24 v26, {UCH}, v9
        v_add_u32 v26, {UBASE+UPAD}, v26
        v_lshlrev_b32 v27, 12, v9
        s_waitcnt vmcnt(9)
        v_bfe_u32 v28, v164, 8, 11
        v_lshl_add_u32 v29, v28, 1, v26
        v_lshl_add_u32 v30, v28, 1, v27
        ds_read_b128 v[36:39], v88 offset:48
        ds_read_u16_d16_hi v31, v29
        ds_read_u16_d16_hi v32, v30 offset:{YBASE}
        v_mul_u32_u24 v28, 1152, v28
        v_add_u32 v28, v28, v24
        v_xor_b32 v22, v35, v164
        s_waitcnt vmcnt(8)
        v_xor_b32 v128, v35, v128
        v_or_b32 v22, v22, v128
        """)
        for k in range(1, 9):
            a(f"""s_waitcnt vmcnt({8-k})
            v_xor_b32 v{128+4*k}, v35, v{128+4*k}
            v_pk_add_f32 v[130:131], v[130:131], {vr(130+4*k,2)}
            v_pk_add_f32 v[128:129], v[128:129], {vr(128+4*k,2)}""")
            if k % 2 == 0: a(f"v_bitop3_b32 v22, v22, v{124+4*k}, v{128+4*k} bitop3:0xfe")
        a(f"""
        s_waitcnt lgkmcnt(0)
        v_bitop3_b32 v36, v37, v38, v39 bitop3:0x7f
        v_and_b32 v36, {CFL & 0xf0}, v36
        v_or_b32 v22, v22, v36
        v_and_b32 v22, 0xff, v22
        v_cmp_ne_u32 vcc, 0, v22
        v_permlane32_swap_b32 v128, v130
        s_sub_u32 s61, s61, 1
        s_cselect_b64 vcc, 0, vcc
        s_cbranch_vccnz L_part_poll
        """)
        if not self.o("cf", 0): self.stamp(9)
        a(f"""
        v_permlane32_swap_b32 v129, v131
        v_add_f32 v128, v128, v130
        v_add_f32 v129, v129, v131
        v_and_b32 v31, 0xffff0000, v31
        v_and_b32 v32, 0xffff0000, v32
        v_permlane16_swap_b32 v128, v129
        v_add_f32 v128, v128, v129
        v_mul_f32 v31, {f2u(32.0)}, v31
        v_mul_f32 v32, {f2u(1/32)}, v32
        v_add_f32_dpp v128, v128, v128 row_ror:8 row_mask:0xf bank_mask:0xf
        v_fma_f32 v128, v128, v165, v31
        v_mul_f32 v33, {f2u(-LOG2E)}, v128
        v_exp_f32 v33, v33
        v_fma_f32 v34, v31, v167, v166
        v_add_f32 v33, 1.0, v33
        v_rcp_f32 v33, v33
        v_mul_f32 v128, v128, v32
        v_fmac_f32 v34, v128, v33
        v_cvt_pk_bf16_f32 v34, v34, v34
        {"" if self.o("pollafter", 0) else "s_barrier"}
        global_store_short v28, v34, s[32:33]
        """)
        if not self.o("cf", 0): self.stamp(10)
        a("L_mw_end:")
        self.dump()
        a("s_endpgm")

    def helper(self):
        a = self.a
        ST = 224
        a("L_helper:")
        st0 = f"""v_and_b32 v62, 255, v0
        v_lshlrev_b32 v4, 4, v62
        v_add_u32 v4, {STATS + 4096}, v4
        v_add_u32 v7, 8192, v4""".split("\n") + self.stat_ld
        pre0 = f"""v_and_b32 v5, 3, v0
        v_mul_u32_u24 v5, {UCH}, v5
        v_lshl_add_u32 v5, v12, 4, v5
        v_add_u32 v5, {UBASE+UPAD}, v5
        v_mov_b32 v56, s4
        v_mov_b32 v57, s5
        v_mov_b32 v58, s6
        v_mov_b32 v59, s7
        v_mov_b32 v63, 0x40004000
        v_and_b32 v88, 3, v0
        v_lshlrev_b32 v88, 2, v88
        v_add_u32 v88, {CFL}, v88
        s_mov_b32 s61, {SPIN}
        v_lshlrev_b32 v37, 2, v62
        v_add_u32 v64, {UBASE+UPAD}, v37
        v_add_u32 v65, {UBASE+UPAD+UCH}, v37
        v_add_u32 v66, {UBASE+UPAD+2*UCH}, v37
        v_add_u32 v67, {UBASE+UPAD+3*UCH}, v37
        v_add_u32 v37, {YBASE}, v37
        v_mul_u32_u24 v36, 2304, v62
        v_add_u32 v36, s54, v36
        v_mov_b32 v8, {f2u(-32*LOG2E)}
        v_mov_b32 v9, 0xffff0000
        v_mov_b32 v10, {f2u(32.0)}
        v_lshlrev_b32 v62, 6, v62
        v_xor_b32 v62, s{S_T16}, v62""".split("\n")
        ust = ["\n".join([f"v_xor_b32 v{40+4*k+r}, v{56+r}, v{40+4*k+r}" for r in range(4)] + [f"ds_write_b128 v5, {vr(40+4*k,4)} offset:{1024*k}"]) for k in range(4)]
        chk = ["v_bitop3_b32 v38, v40, v41, v42 bitop3:0xfe"] + [f"v_bitop3_b32 v38, v38, v{r}, v{r+1} bitop3:0xfe" for r in range(43, 55, 2)]
        chk += ["v_bitop3_b32 v38, v38, v55, v63 bitop3:0xa8", "v_cmp_ne_u32 vcc, 0, v38"]
        if self.o("ulate", 1):
            self.kg(st0 + pre0[:8], None, 1)
            self.copies(pre0[8:], 1)
            a("s_waitcnt vmcnt(4)")
            for t in ust + chk: a(t)
        else:
            self.kg(st0 + pre0[:8], [f"s_waitcnt vmcnt({7-k})\n" + t for k, t in enumerate(ust)], 1)
            self.copies(pre0[8:] + chk, 1)
        self.stamp(12)
        a(f"""s_cbranch_vccz L_tile_ok
L_tile_chk:
        {chr(10).join(self.tile_ld)}
        s_waitcnt vmcnt(0)""")
        for t in ust + chk: a(t)
        a("""s_sub_u32 s61, s61, 1
        s_cselect_b64 vcc, 0, vcc
        s_cbranch_vccnz L_tile_chk
L_tile_ok:""")
        self.stamp(6)
        a(f"s_mov_b32 s61, {SPIN*16}\ns_waitcnt vmcnt(0)\nL_h_poll:\nv_mov_b32 v41, 0")
        for k in range(8):
            a(f"v_xor_b32 v42, {(0x7ff ^ (512*(k>>1)) ^ (k&1)) << 5}, v{ST+1+2*k}\nv_bitop3_b32 v41, v41, v42, v62 bitop3:0xf6")
        a(f"""v_and_b32 v41, 0xffff, v41
        v_cmp_ne_u32 vcc, 0, v41
        s_cbranch_vccz L_h_ok
        {chr(10).join(self.stat_ld)}
        s_waitcnt vmcnt(0)
        s_sub_u32 s61, s61, 16
        s_cbranch_scc0 L_h_poll
L_h_ok:
        """)
        a(f"s_setprio 2\ns_waitcnt lgkmcnt(0)\ns_barrier")
        self.stamp(7)
        B = lambda s: 96 + 32 * s
        for sp in range(2):
            for c in range(4): a(f"ds_read2st64_b32 {vr(16+8*sp+2*c,2)}, v{64+c} offset0:{8*sp} offset1:{8*sp+4}")
        RU = lambda s, c: 16 + 8 * (s >> 1) + 2 * c + (s & 1)
        def pre(s, t):
            u, g, p = B(s) + 4 * t, B(s) + 8 + 4 * t, B(s) + 24 + 2 * t
            st = ST + 4 * s + 2 * t
            for c in range(4): a(f"v_lshlrev_b32 v{u+c}, 16, v{RU(s,c)}" if t == 0 else f"v_and_b32 v{u+c}, v9, v{RU(s,c)}")
            for c in range(4): a(f"v_mul_f32 v{g+c}, v8, v{u+c}")
            for c in range(4): a(f"v_exp_f32 v{g+c}, v{g+c}")
            a(f"v_and_b32 v{p+1}, v9, v{st}")
            for c in range(4): a(f"v_add_f32 v{g+c}, 1.0, v{g+c}")
            for c in range(4): a(f"v_rcp_f32 v{g+c}, v{g+c}")
            a(f"v_lshlrev_b32 v{p}, 16, v{st}\nv_mul_f32 v{p+1}, v10, v{p+1}")
        def waitflag(s):
            lab = f"L_w{s}"
            rdy = f"""ds_read2st64_b32 v[32:33], v37 offset0:{4*s} offset1:{16+4*s}
            ds_read2st64_b32 v[34:35], v37 offset0:{32+4*s} offset1:{48+4*s}"""
            a(f"""s_setprio 2
{lab}:
            ds_read_b32 v41, v88 offset:{16*s}
            {rdy if s == 3 else ""}
            s_waitcnt lgkmcnt(0)
            v_cmp_eq_u32 vcc, 0, v41
            s_cbranch_vccz {lab}_ok
            s_sleep {1 if s == 3 else 2}
            s_sub_u32 s61, s61, 1
            s_cbranch_scc0 {lab}
{lab}_ok:""")
            if s < 3: a(rdy + "\ns_setprio 0\ns_waitcnt lgkmcnt(0)")
        def fin(s, t):
            u, g, y, p = B(s) + 4 * t, B(s) + 8 + 4 * t, B(s) + 16 + 4 * t, B(s) + 24 + 2 * t
            for c in range(4): a(f"v_lshlrev_b32 v{y+c}, 16, v{32+c}" if t == 0 else f"v_and_b32 v{y+c}, v9, v{32+c}")
            for c in range(4): a(f"v_fma_f32 v{y+c}, v{y+c}, v{g+c}, v{p+1}")
            for c in range(4): a(f"v_fma_f32 v{u+c}, v{u+c}, v{y+c}, v{p}")
            a(f"v_cvt_pk_bf16_f32 v{g}, v{u}, v{u+1}\nv_cvt_pk_bf16_f32 v{g+1}, v{u+2}, v{u+3}")
        def st(s, t):
            a(f"global_store_dwordx2 v36, {vr(B(s)+8+4*t,2)}, s[32:33] offset:{1152*t}")
            if t == 1 and s < 3: a(f"v_add_u32 v36, {512*1152}, v36")
        a("s_waitcnt lgkmcnt(4)\ns_setprio 0")
        a(self.fs(10, "barstamp"))
        todo = [(s, t) for s in range(4) for t in range(2)]
        for _ in range(self.o("hpre", 3)): pre(*todo.pop(0))
        for s in range(4):
            if s < 3: a(self.fs(s + 1, "barstamp"))
            waitflag(s)
            fin(s, 0); st(s, 0); fin(s, 1)
            if todo: pre(*todo.pop(0))
            st(s, 1)
            if todo: pre(*todo.pop(0))
        self.stamp(8)
        a("s_waitcnt vmcnt(0)")
        if not self.o("cf", 0): self.stamp(9)
        a("s_barrier")
        self.dump()
        a("L_end:\ns_endpgm")

    def post(self, t):
        if self.o("cyc", 0): t = re.sub(r"s_memrealtime s\[(7[2-9]|8\d|9[0-5]):", r"s_memtime s[\1:", t)
        NTM = self.o("ntm", 0)
        if NTM & 1: t = t.replace("global_load_dwordx4 v[12:15], v6, s[4:5]", "global_load_dwordx4 v[12:15], v6, s[4:5] nt").replace("global_load_ushort v16, v7, s[4:5] offset:1024", "global_load_ushort v16, v7, s[4:5] offset:1024 nt")
        if NTM & 2: t = re.sub(r"(global_load_short_d16_hi v6\d, v60, s\[\d+:\d+\])", r"\1 nt", t)
        if NTM & 4: t = t.replace("global_load_lds_dwordx4 v76, s[56:57]", "global_load_lds_dwordx4 v76, s[56:57] nt")
        if NTM & 8: t = re.sub(r"(global_load_dword v1, v76, s\[56:57\])", r"\1 sc1", t)
        if NTM & 16: t = re.sub(r"(global_load_lds_dwordx4 v1, s\[\d+:\d+\])", r"\1 nt", t)
        if NTM & 32: t = re.sub(r"(global_load_dwordx4 v\[\d+:\d+\], v19, s\[\d+:\d+\] offset:\d+)", r"\1 nt", t)
        if self.o("nost", 0): t = "\n".join(l for l in t.split("\n") if "global_store_dwordx2" not in l)
        if self.o("forceslow", 0): t = t.replace("0x80410", "0x90410")
        return t
    def build(self):
        self.prologue(); self.spare_pre(); self.ffn_pre(); self.conv_pre(); self.ln(); self.ffn(); self.conv()
        return HEADER + f"""; @launch grid=(256,1,1) block=(512,1,1) lds={LDSZ}
.amdgcn_target "amdgcn-amd-amdhsa--gfx950"
""" + self.post(self.a.text(self.o("verbose", 0))) + """.section .rodata,"a"
.p2align 6
""" + descriptor(KN, 256, 102)

if __name__ == "__main__":
    opt = {}
    for s in sys.argv[2:]:
        k, v = s.split("="); opt[k] = int(v)
    open(sys.argv[1], "w").write(G(**opt).build())
```

```python
import sys, re
from parts import *
import gen_v6 as V
from gen_v6 import *

KS = 1216; K8 = 4 * KS; K4 = K8 + 320
BND = LNS
YT = 1280
YOFF = 9472

class G8(V.G):
    def __init__(self, stamps=False, **opt):
        for k, v in dict(early=0, n2t=5, thr2=3, nw=1, eh=3, kpre=24, t1at=3, tile_at=32, p1=5, px=1, stg=0, t3at=102, tile64=0, statlate=0, wdo=2, gm=1, ot=1, b2b=1, t4=1, stchk=1, sp2n=7, n2=0, pp=1, pollafter=2, prog=9, m32e=2).items(): opt.setdefault(k, v)
        super().__init__(stamps, **opt)
    def conv_pre(self):
        a = self.a
        T4 = self.o("t4", 0) or self.o("xo", 0)
        GM = f"s_mul_i32 s50, s{S_XCD}, 18\ns_add_u32 s50, s50, s{S_SLOT}"
        if self.o("gm", 0): GM = f"s_lshl_b32 s50, s{S_XCD}, 4\ns_lshl_b32 s42, s{S_XCD}, 1\ns_add_u32 s42, s42, 112\ns_cmp_ge_u32 s{S_SLOT}, 16\ns_cselect_b32 s50, s42, s50\ns_add_u32 s50, s50, s{S_SLOT}"
        HK = f"s_and_b32 s54, s{S_SLOT}, 15\ns_lshl_b32 s54, s54, 3\ns_mul_i32 s43, s{S_XCD}, {self.o('hk', 0)}\ns_add_u32 s54, s54, s43" if self.o("hk", 0) else ""
        E0 = "s_cmp_lg_u32 s47, 2\ns_cbranch_scc1 L_cp2\nglobal_load_dword v1, v76, s[56:57]\nL_cp2:"
        a(f"""
L_conv_pre:
        {GM}
        s_lshl_b32 s53, s50, 2
        s_add_u32 s53, s53, s51            ; channel
        s_lshl_b32 s42, s53, 8
        s_lshl_b32 s43, s52, 7
        s_add_u32 s42, s42, s43
        v_add_u32 v60, s42, v4
        s_lshl_b32 s54, s50, 3
        {HK}
        s_lshl_b32 s42, s53, 1
        v_mov_b32 v61, s42
        v_mov_b64 v[64:65], 0
        v_mov_b64 v[66:67], 0
        v_mov_b64 v[68:69], 0
        v_mov_b64 v[70:71], 0
        s_barrier
        global_load_short_d16_hi v70, v61, s[18:19]
        global_load_short_d16_hi v64, v60, s[6:7]
        global_load_short_d16_hi v65, v60, s[8:9]
        global_load_short_d16_hi v66, v60, s[10:11]
        global_load_short_d16_hi v67, v60, s[12:13]
        global_load_short_d16_hi v68, v60, s[14:15]
        global_load_short_d16_hi v69, v60, s[16:17]
        global_load_short_d16_hi v71, v61, s[20:21]
        global_load_ushort v1, v61, s[20:21]
        s_lshr_b32 s42, s51, 1
        s_mul_i32 s42, s42, {3168 if self.o('ft', 0) == 2 else 2112 if self.o('ord2', 1) else 1472}
        s_and_b32 s58, s51, 1
        s_mul_i32 s43, {"s51" if T4 else "s58"}, {18*64}
        s_add_u32 s43, s43, {64*self.wd['mf']}
        s_lshr_b32 s47, s{S_W}, 1
        s_cmp_eq_u32 s47, 0
        s_cmovk_i32 s42, 3168
        {"s_cmp_eq_u32 s52, 0" if T4 else "s_cmp_eq_u32 s47, 1"}
        s_cselect_b32 s42, s43, s42
        s_cmovk_i32 s58, 2
        s_lshl_b32 s43, s{S_SLOT}, 6
        s_add_u32 s42, s42, s43
        """)
        if self.o("xo", 0): a(f"s_lshr_b32 s43, s{S_SLOT}, 1\ns_lshl_b32 s43, s43, 6\ns_add_u32 s43, s43, 3264\ns_and_b32 s59, s{S_SLOT}, 1\ns_cmp_eq_u32 s{S_W}, 3\ns_cselect_b32 s42, s43, s42\ns_cselect_b32 s58, s59, s58")
        self.touch_setup()
        a(f"""
        {"" if self.o("late0", 1) else E0}
        s_mul_i32 s55, s51, {TCH}
        s_lshl_b32 s42, s52, 8
        s_add_u32 m0, s55, s42
        s_mul_i32 s63, s51, {UCH}
        s_add_u32 s63, s63, {UBASE}
        v_mov_b64 v[84:85], 0
        v_mov_b64 v[86:87], 0
        s_cmp_eq_u32 s52, 0
        s_cbranch_scc1 L_cp_m
        ; helpers: zero pad of u and the flag words
        s_setprio {self.o("pt", 1)}
        v_min_u32 v83, 29, v2
        v_lshl_add_u32 v83, v83, 4, s63
        ds_write_b128 v83, v[84:87]
        v_and_b32 v88, 0x70, v3
        v_add_u32 v88, {CFL}, v88
        ds_write_b128 v88, v[84:87]
        s_branch L_cp_e
L_cp_m:
        v_and_b32 v8, 15, v0
        v_bfe_u32 v9, v0, 4, 2
        v_and_b32 v10, 31, v0
        v_and_b32 v11, 32, v0
        v_mul_u32_u24 v78, {ROW}, v10
        v_lshrrev_b32 v11, 1, v11
        v_add3_u32 v78, v78, v11, s55
        v_lshl_add_u32 v10, v10, 5, v11
        s_add_u32 s42, s55, 1072
        v_sub_u32 v81, s42, v10
        v_lshrrev_b32 v77, 2, v10
        s_add_u32 s42, s55, {K4 + 380}
        v_sub_u32 v77, s42, v77
        v_bfe_i32 v79, v0, 4, 1
        v_sub_u32 v80, 495, v10
        v_ashrrev_i32 v80, 31, v80
        v_sub_u32 v82, 1007, v10
        v_ashrrev_i32 v82, 31, v82
        v_bfe_u32 v10, v0, 3, 2            ; copy s
        v_and_b32 v11, 7, v0               ; k
        v_mul_u32_u24 v73, {KS}, v10
        v_and_b32 v83, 4, v0
        v_lshl_add_u32 v83, v83, 4, v11
        v_lshl_add_u32 v83, v83, 4, v73
        v_lshlrev_b32 v72, 4, v10
        v_add_u32 v72, {K8 + 256}, v72
        v_sub_u32 v74, 5, v11
        v_ashrrev_i32 v74, 31, v74
        v_bfi_b32 v83, v74, v72, v83
        v_and_b32 v72, 8, v0
        v_mad_u32_u24 v72, v72, 3, v11
        v_lshlrev_b32 v72, 4, v72
        v_add_u32 v72, {K4}, v72
        v_bfe_i32 v74, v0, 5, 1
        v_bfi_b32 v83, v74, v72, v83
        v_add_u32 v83, s55, v83
        v_sub_u32 v74, 4, v11
        v_ashrrev_i32 v74, 31, v74
        v_add_u32 v72, 507, v11
        v_min_u32 v75, 2, v11
        v_bfi_b32 v74, v74, v72, v75
        v_sub_u32 v74, v74, v10
        v_lshl_add_u32 v73, v74, 1, v73
        v_min_u32 v74, 1, v10
        v_lshl_add_u32 v73, v74, 3, v73
        s_add_u32 s42, s55, 58
        v_add_u32 v73, s42, v73
        v_max_u32 v72, 4, v11
        v_mul_u32_u24 v72, 0x202, v72
        v_add_u32 v72, {0x0504 + 0x0808 - 4*0x202}, v72
        v_and_b32 v72, 0x707, v72
L_cp_e:
        """)

    def spare_pre(self):
        n0 = len(self.a.l); V.G.spare_pre(self)
        if self.o("late0", 1):
            k = self.a.l.index("    s_barrier", n0)
            del self.a.l[k:]; self.a("s_mov_b32 s49, 0\ns_branch L_lnp")
    def ffn_pre(self):
        n0 = len(self.a.l); V.G.ffn_pre(self)
        if self.o("late0", 1):
            k = self.a.l.index("    s_barrier", n0)
            del self.a.l[k:k + 1 + 4 * self.R1]
            self.a.l.insert(k, "    s_mov_b32 s49, s42")

    def setup(self):
        a = self.a
        a(f"""
        v_mul_f32 v70, {f2u(LOG2E)}, v70
        v_exp_f32 v70, v70
        v_mov_b32 v34, 0x3f80
        ds_write_addtid_b32 v34
        v_cvt_pk_bf16_f32 v70, v70, v70
        v_and_b32 v70, 0xffff0000, v70
        v_mul_f32 v64, v70, v64
        v_mul_f32 v65, v70, v65
        v_mul_f32 v70, {f2u(1024.0)}, v70
        v_mul_f32 v64, {f2u(LOG2E)}, v64
        v_mul_f32 v65, {f2u(INV2PI)}, v65
        v_mul_f32 v66, v70, v66
        v_mul_f32 v67, v70, v67
        """)
        E = ((22, 1.0, True), (24, 16.0, False), (26, 512.0, True))
        for k, (d, e, cj) in enumerate(E):
            if k: a(f"v_mul_f32 v{12+k}, {f2u(e)}, v64\nv_mul_f32 v{16+k}, {f2u(e)}, v65")
        for k, (d, e, cj) in enumerate(E): a(f"v_exp_f32 v{12+k}, v{12+k if k else 64}\nv_fract_f32 v{16+k}, v{16+k if k else 65}")
        a("""v_pk_mul_f32 v[20:21], v[68:69], v[66:67] op_sel:[0,0] op_sel_hi:[0,1] neg_hi:[0,1]
        v_pk_fma_f32 v[90:91], v[68:69], v[66:67], v[20:21] op_sel:[1,1,0] op_sel_hi:[1,0,1] neg_lo:[0,1,0] neg_hi:[0,1,0]""")
        for k, (d, e, cj) in enumerate(E): a(f"v_cos_f32 v{d}, v{16+k}\nv_sin_f32 v{d+1}, v{16+k}")
        a(f"v_cvt_pk_bf16_f32 v35, v90, v91\nds_write_addtid_b32 v35 offset:{32*ROW}")
        for k, (d, e, cj) in enumerate(E):
            a(f"v_mul_f32 v{d}, v{12+k}, v{d}\nv_mul_f32 v{d+1}, {'-' if cj else ''}v{12+k}, v{d+1}")
        a(f"v_cvt_pk_bf16_f32 v36, v24, v25\nds_write_addtid_b32 v36 offset:{ROW}")

    def ln_copy(self, conv):
        n0 = len(self.a.l)
        V.G.ln(self)
        blk = self.a.l[n0:]; del self.a.l[n0:]
        txt = "\n".join(blk)
        cut = txt.index(f"    s_cmp_lt_u32 s{S_SLOT}, 18\n    s_cbranch_scc1 L_conv")
        head, tail = txt[:cut], txt[cut:]
        if not conv:
            head = re.sub(r"    s_waitcnt vmcnt\((8|9)\)\n    s_cmp_eq_u32 s47, \d\n    s_cbranch_scc1 L_ln\n", "", head)
            tail = tail.split("\n", 2)[2]
            if self.o("late0", 1):
                i0 = head.index(f"    s_waitcnt vmcnt({self.R1})"); i1 = head.index("L_ln:")
                r1 = "".join(f"s_add_u32 m0, s49, {4096*i}\ns_nop 0\nglobal_load_lds_dwordx4 v76, s[56:57]\nv_add_u32 v76, {32*9216}, v76\n" for i in range(self.R1))
                if self.o("r1h", 0):
                    k = r1.rindex("s_add_u32 m0")
                    r1 = r1[:k] + f"s_cmp_eq_u32 s52, 0\ns_cbranch_scc1 L_lw3\ns_waitcnt vmcnt({self.R1-1})\ns_branch L_ln\nL_lw3:\n" + r1[k:]
                head = head[:i0] + ("s_waitcnt vmcnt(0)\n" if self.o("late0", 1) >= 2 else "") + f"""s_cmp_lt_u32 s{S_SLOT}, 27
                s_cbranch_scc1 L_lw2
                s_cmp_lt_u32 s{S_W}, 2
                s_cbranch_scc0 L_lw1
                global_load_dword v1, v76, s[56:57]
                s_waitcnt vmcnt(1)
                s_branch L_ln
L_lw1:
                s_waitcnt vmcnt(0)
                s_branch L_ln
L_lw2:
                {r1}
                s_waitcnt vmcnt({self.R1})
""" + head[i1:]
            self.a(head + tail)
            return
        head = re.sub(r"L_ln", "L_cln", head)
        i0 = head.index("    s_waitcnt vmcnt(9)"); i1 = head.index("L_cln:")
        if self.o("late0", 1) == 2:
            head = head[:i0] + "    s_waitcnt vmcnt(9)\n    s_cmp_eq_u32 s47, 2\n    s_cbranch_scc0 L_cln\n    global_load_dword v1, v76, s[56:57]\n" + head[i1:]
        elif self.o("late0", 1) == 3:
            head = head[:i0] + "    s_waitcnt vmcnt(9)\n" + head[i1:]
        elif self.o("late0", 1):
            head = head[:i0] + "    s_cmp_eq_u32 s47, 2\n    s_cbranch_scc0 L_clw\n    global_load_dword v1, v76, s[56:57]\n    s_waitcnt vmcnt(10)\n    s_branch L_cln\nL_clw:\n    s_waitcnt vmcnt(9)\n" + head[i1:]
        else: head = head[:i0] + "    s_waitcnt vmcnt(10)\n    s_cmp_eq_u32 s47, 2\n    s_cbranch_scc1 L_cln\n    s_waitcnt vmcnt(9)\n" + head[i1:]
        j = head.rindex("    s_waitcnt lgkmcnt(0)\n    s_barrier")
        if not self.o("esetup", 0):
            self.a(head)
            return
        self.a(head[:j])
        self.a("s_cmp_eq_u32 s52, 0\ns_cbranch_scc0 L_cs1\ns_waitcnt vmcnt(1)" if self.o("early", 0) else "s_cmp_eq_u32 s52, 0\ns_cbranch_scc0 L_cs1\ns_waitcnt vmcnt(0)")
        self.setup()
        self.a("L_cs1:")
        self.a(head[j:].replace("L_cln_st:\n    s_waitcnt lgkmcnt(0)", "L_cln_st:\n    s_waitcnt vmcnt(1) lgkmcnt(0)"))

    def conv(self):
        a = self.a
        ST = 224
        T64 = self.o("tile64", 1)
        def touch(cond, lab, pre=""):
            return f"{cond}\ns_cbranch_scc0 {lab}\n{pre}\nglobal_load_dword v1, v76, s[56:57]\n{lab}:"
        T2 = touch(f"s_cmp_ge_u32 s51, {4 - self.o('n2', 2)}" if self.o("t2hi", 0) else f"s_cmp_lt_u32 s51, {self.o('n2', 2)}", "L_ct2", "")
        T1 = touch("s_cmp_eq_u32 s47, 3", "L_ct1")
        self.T3 = touch(f"s_cmp_lt_u32 s{S_W}, {self.o('n3', 2)}", "L_ct3")
        self.T1, self.T2 = T1, T2
        t1at, t2at, t3at, TA = self.o("t1at", 40), self.o("t2at", 41), self.o("t3at", 32), self.o("tile_at", 32)
        if self.o("esetup", 0): a("s_cmp_eq_u32 s52, 0\ns_cbranch_scc1 L_cs2")
        else: a("s_waitcnt vmcnt(2)")
        if self.o("pdrop", 99) == 0: a("s_setprio 0")
        if t1at == 0: a(T1)
        self.setup()
        self.tile_ld = [f"global_load_dwordx4 {vr(40+4*k,4)}, v6, s[{12+2*k}:{13+2*k}] sc1" for k in range(4)]
        self.stat_ld = [f"global_load_dwordx4 {vr(ST+4*k,4)}, v{(4, 7)[k>>1]}, s[36:37] offset:{-4096 if k%2==0 else 0} sc1" for k in range(4)]
        tadr = (["s_lshl_b32 s42, s50, 14"] if T64 else ["s_lshr_b32 s42, s50, 1", "s_lshl_b32 s42, s42, 15", "s_and_b32 s43, s50, 1", "s_lshl_b32 s43, s43, 6", "s_add_u32 s42, s42, s43"])
        tadr += [f"s_add_u32 s42, s42, {TILE}", "s_add_u32 s12, s36, s42", "s_addc_u32 s13, s37, 0"]
        for k in range(1, 4): tadr += [f"s_add_u32 s{12+2*k}, s12, {(4096 if T64 else 8192)*k}", f"s_addc_u32 s{13+2*k}, s13, 0"]
        tadr += ["v_bfe_u32 v63, v0, 2, 6", "v_and_b32 v6, 0x30, v3", f"v_lshl_add_u32 v6, v63, {6 if T64 else 7}, v6"]
        self.tile_first = "\n".join(tadr + self.tile_ld)
        a("L_cs2:")
        a(self.fs(10, "cf"))
        H = lambda e: 90 + 2 * e
        pos = {**{e: [e] for e in range(4)}, **{e: [e + 4] for e in range(4, 8)}, 8: [4, 16], 9: [5, 17], 10: [6, 18], 11: [7],
               **{e: [e] for e in range(12, 16)}, 16: [20], 17: [21], 18: [22]}
        gops = [(H(e), H(e - 1), 22, pos[e]) for e in range(1, 19)]
        gops += [(H(e), H(e), 26, r) for e, r in zip((4, 8, 12, 16), ([24], [25], [28], [29]))]
        gops += [(H(8), H(8), 26, [26]), (H(16), H(16), 26, [27]), (H(8), H(8), 26, [30]), (H(16), H(16), 26, [31])]
        dup = []
        for i in range(2, 32):
            t = 34 + (i & 1) * 2
            if 14 <= i < 14 + self.o("skiprows", 0): continue
            cmul(a, 28, 24 if i == 2 else 28, 24, 30)
            a(f"v_cvt_pk_bf16_f32 v{t}, v28, v29\nds_write_addtid_b32 v{t} offset:{i*ROW}")
            if i - 2 < len(gops):
                d, s, z, rows = gops[i - 2]
                cmul(a, d, s, z, 32)
                tg = t + 1 if len(rows) == 1 else 12 + len(dup)
                a(f"v_cvt_pk_bf16_f32 v{tg}, v{d}, v{d+1}\nds_write_addtid_b32 v{tg} offset:{(32+rows[0])*ROW}")
                if len(rows) > 1: dup.append(f"ds_write_addtid_b32 v{tg} offset:{(32+rows[1])*ROW}")
            if i == 31:
                for t in dup: a(t)
            if i == TA: a(f"s_cmp_eq_u32 s52, 0\ns_cbranch_scc1 L_hp0\n{self.tile_first}\nL_hp0:")
            if i == self.o("kb", 99):
                a("s_cmp_eq_u32 s52, 0\ns_cbranch_scc0 L_kb\ns_barrier")
                self.stamp(11)
                for s in range(self.o("kbn", 6)): a(f"ds_read_b128 {vr(128+8*s,4)}, v78 offset:{32*ROW+32*(s^8)}\nds_read_b128 {vr(132+8*s,4)}, v78 offset:{32*(s^8)}")
                a("L_kb:")
            if i == 16: a(self.fs(9, "cf"))
            if i == self.o("pdrop", 99): a("s_setprio 0")
            if i == t1at: a(T1)
            if self.o("xo", 0) == i: a(touch(f"s_cmp_eq_u32 s{S_W}, 3", "L_ctx"))
            if i == t2at: a(T2)
            if i == t3at: a(self.T3)
        self.stamp(4)
        a("s_cmp_eq_u32 s52, 0\ns_cbranch_scc0 L_helper")
        if self.o("kb", 99) < 32: a("s_setprio 2")
        elif not self.o("ks", 0):
            a("s_setprio 2\ns_barrier")
            self.stamp(11)
        self.mfma_waves()
        self.helper()

    def mfma_waves(self):
        a = self.a
        KR = lambda i, j: 192 + 32 * i + 4 * j
        K16, M32, B1, B2, P1, P2, P3 = 12, 16, 20, 24, 28, 32, 36
        T3 = {4: 40, 5: M32, 6: B1, 7: B2}
        T2 = lambda d, b: 168 + 8 * (d - 2) + 4 * b
        V3 = lambda tau: 92 + 4 * tau
        V2 = lambda tau, b: 136 + 8 * (tau & 3) + 4 * b
        ACC = lambda g: 44 + 4 * (g % 6)
        VF = 108
        URING = [68, 72, 76, 80, 84, 132]
        D = 48
        fill = f"""v_add_u32 v74, -1, v2
        v_and_b32 v71, v71, v74
        v_mul_f32 v71, {f2u(1024.0)}, v71
        v_and_b32 v10, 3, v8
        v_add_u32 v5, 1, v10
        v_mul_u32_u24 v10, {KS - 2}, v10
        v_lshl_add_u32 v11, v8, 1, v9
        v_mul_u32_u24 v4, 17, v9
        v_sub_u32 v4, v4, v11
        v_and_b32 v5, 4, v5
        s_add_u32 s43, s55, {32 + 3*KS}
        v_lshl_add_u32 v10, v5, 1, v10
        v_sub_u32 v10, v4, v10
        v_add_u32 v10, s43, v10
        v_lshl_add_u32 v11, v11, 4, s63
        s_add_u32 s43, s55, {K8 + 252}
        v_lshrrev_b32 v75, 2, v3
        v_sub_u32 v75, s43, v75
        v_lshl_add_u32 v7, v9, 6, v3
        v_add_u32 v7, s55, v7
        v_lshlrev_b32 v4, 2, v9
        v_sub_u32 v4, v4, v8
        s_add_u32 s43, s55, {K4 + 120}
        v_lshl_add_u32 v89, v4, 3, s43
        s_add_u32 s43, s55, {K8 + 60}
        v_lshl_add_u32 v4, v4, 2, s43
        s_lshl_b32 s43, s51, 2
        s_add_u32 s43, s43, {CFL}
        v_mov_b32 v88, s43
        v_add_u32 v5, {BND}, v3""".split("\n")
        if self.o("t3at", 32) == 32: fill.insert(12, self.T3)
        if self.o("m32e", 1) == 2:
            fill += ["s_movk_i32 s43, 0x3000", "v_lshlrev_b32 v6, v8, s43", f"v_lshlrev_b32 v{M32}, 3, v9", f"v_bfe_u32 v6, v6, v{M32}, 8", "v_lshl_or_b32 v6, v6, 15, v6"]
            for j in range(4): fill += [f"v_lshrrev_b32 v{M32+j}, {2*j}, v6", f"v_and_b32 v{M32+j}, 0x10001, v{M32+j}"]
        late = []
        for j in range(4): late += [f"v_lshrrev_b32 v{M32+j}, 7, v{M32+j}", f"v_and_b32 v{M32+j}, 0x10001, v{M32+j}", f"v_mul_u32_u24 v{M32+j}, s59, v{M32+j}"]
        def F(n):
            for _ in range(n):
                if fill: a(fill.pop(0))
        rd = lambda s: a(f"ds_read_b128 {vr(128+8*s,4)}, v78 offset:{32*ROW+32*(s^KX)}\nds_read_b128 {vr(132+8*s,4)}, v78 offset:{32*(s^KX)}")
        PRE = 6; KSB = self.o("ksb", 6) if self.o("ks", 0) else -1
        KX = 8 if self.o("kb", 99) < 32 else 0
        if KX:
            nrd = self.o("kbn", 6); have = nrd
            rd(nrd); rd(nrd + 1); nrd += 2
            a("s_waitcnt lgkmcnt(8)")
        else:
            for s in range(PRE): rd(s)
            nrd = PRE; have = 0
            F(self.o("f0", 6))
        for s in range(16):
            if s == KSB:
                a("s_barrier\ns_setprio 2")
                self.stamp(11)
                while nrd < min(16, s + 7): rd(nrd); nrd += 1
            if s >= have: a(f"s_waitcnt lgkmcnt({2*(nrd - s - 1)})")
            elif KX: F(1)
            a(f"v_mfma_f32_32x32x16_bf16 {vr(D,16)}, {vr(128+8*s,4)}, {vr(132+8*s,4)}, {'0' if s == 0 else vr(D,16)}")
            if nrd < (8 if s < KSB else 16): rd(nrd); nrd += 1
            elif self.o("m32e", 1) == 2: F(2)
            F(1)
        self.stamp(5)
        a("ds_write_b128 v83, v[84:87]")
        F(99)
        x = lambda k: D + k
        W = lambda dl: 128 + 4 * dl
        cv = lambda d, lo, hi: a(f"v_cvt_pk_bf16_f32 v{d}, v{lo}, v{hi}")
        sel = [f"v_add_f32 v{x(0)}, v{x(0)}, v71", f"v_bitop3_b32 v{x(1)}, v79, v{x(0)}, v{x(1)} bitop3:0xca", f"v_bitop3_b32 v{x(3)}, v79, v{x(4)}, v{x(3)} bitop3:0xca",
               f"v_bitop3_b32 v{x(5)}, v79, v{x(4)}, v{x(5)} bitop3:0xca", f"v_bitop3_b32 v{x(7)}, v79, v{x(8)}, v{x(7)} bitop3:0xca",
               f"v_bitop3_b32 v{x(9)}, v80, v{x(8)}, v{x(9)} bitop3:0xca", f"v_bitop3_b32 v{x(10)}, v82, v{x(8)}, v{x(10)} bitop3:0xca"]
        for t in sel[:5]: a(t)
        for dl in range(4):
            for k in range(4): cv(W(dl) + k, x(7 + dl - 2 * k), x(6 + dl - 2 * k))
            a(f"ds_write_b128 v81, {vr(W(dl),4)} offset:{((4-dl)%4)*KS}")
            if dl == 0: a(sel[5] + "\n" + sel[6])
            if dl == 1: a(f"v_readlane_b32 s42, v{W(0)+2}, 0\nv_readlane_b32 s43, v{W(0)+3}, 0\nv_readlane_b32 s58, v{W(0)}, 63")
            if dl == 2 and self.o("m32e", 1) != 2: a("s_pack_lh_b32_b16 s42, s58, s42\nv_mov_b32 v71, s42\nv_perm_b32 v71, v71, s43, v72")
        self.ktail = f"""ds_write_b16 v73, v71
        v_cvt_pk_bf16_f32 v72, v{D+13}, v{D+12}
        v_cvt_pk_bf16_f32 v74, v{D+15}, v{D+14}
        ds_write_b32 v77, v72
        v_readlane_b32 s59, v72, 63
        ds_write_b32 v75, v74
        s_and_b32 s59, s59, 0xffff""".split("\n")
        if self.o("m32e", 1) == 2: self.ktail = ["s_pack_lh_b32_b16 s42, s58, s42", "v_mov_b32 v71, s42", "v_perm_b32 v71, v71, s43, v72"] + self.ktail
        else:
            for t in self.ktail: a(t)
        self.stamp(12)
        if self.o("t3at", 32) == 33: a(self.T3)
        ops = []; first = set()
        def mm(g, A, B):
            if isinstance(g, tuple): ops.append(("m", g[0], A, B, True)); return
            c0 = g not in first; first.add(g)
            ops.append(("m", ACC(g), A, B, c0))
        R = lambda r: ("R", r)
        DF = self.o("df", 7)
        for ip in range(8):
            mains = [(R(V2(ip - d, b)), ("T2", d, b)) for d in (4, 3, 2) if ip - d >= 0 for b in (0, 1)]
            mains = [(R(V3(ip - d)), ("T3", d)) for d in range(4, 8) if ip - d >= 0] + mains
            for j in range(7, -1, -1):
                u = ("U", 8 * ip - j)
                mm(ip, ("K", 0, j), u)
                if ip < 7 and ip + 1 < DF: mm(ip + 1, ("K", 1, j), u)
                if ip >= DF: mm(ip, ("K", 1, j), ("U", 8 * ip - 8 - j, 1))
                if j > 0:
                    for _ in range(-(-len(mains) // j)): mm(ip, *mains.pop(0))
                if j == 6 and 1 <= ip <= 6: ops.append(("cvt", ip - 1))
                if j == self.o("y6", 6) and ip == 7: ops += [("y", 6), ("flag", 6)]
            u = ("U", 8 * ip); us = ("US", 8 * ip)
            if ip <= 5:
                mm((VF,), u, R(P1)); mm((VF + 4,), u, R(P2)); mm(ip + 2, ("K16",), u)
                mm((VF + 8,), u, R(P3))
                ops.append(("y", ip))
                if self.o("yu", 0): ops.append(("flag", ip))
                if ip <= 3: mm((VF + 16,), u, R(B1)); mm(ip + 4, R(M32), u)
                if not self.o("yu", 0): ops.append(("flag", ip))
                mm((VF + 12,), us, R(P2))
                if ip <= 3: mm((VF + 20,), us, R(B2))
        ops += [("y", 7), ("flag", 7)]
        assert sum(o[0] == "m" for o in ops) == 202
        need = []; seen = set(); last = {}
        for k, o in enumerate(ops):
            if o[0] == "m":
                for xx in (o[2], o[3]):
                    last[xx] = k
                    if xx[0] != "R" and xx not in seen:
                        seen.add(xx)
                        if xx[0] in ("U", "US"): need.append((xx, k, 1))
                        else: need += [(xx, k, 0), (xx, k, 1)]
        if self.o("t3at", 32) >= 100: a("v_mov_b32 v90, v76")
        reg = {}; free = list(URING); q = [None] * 3
        def issue(x, hf):
            if x[0] in ("U", "US"):
                r = free.pop(0)
                off = 16 * (28 + 4 * x[1]) - (16 if x[0] == "US" else 0)
                a(f"ds_read_b128 {vr(r,4)}, v11 offset:{off}")
            elif x[0] in ("K", "K16"):
                r = KR(x[1], x[2]) if x[0] == "K" else K16
                mu = x[2] + 8 * x[1] if x[0] == "K" else 16
                a(f"ds_read_b64 {vr(r+2*hf,2)}, v10 offset:{64*(16-mu)+8*hf}")
            elif x[0] == "B":
                r = x[1]
                a(f"ds_read_b128 {vr(r,4)}, v5 offset:{1024*x[2]}")
            elif x[0] == "T2":
                r = T2(x[1], x[2])
                a(f"ds_read_b64 {vr(r+2*hf,2)}, v89 offset:{128*(4-x[1])+16*x[2]+8*hf}")
            else:
                r = T3[x[1]]; o = 16 * (7 - x[1]) + 2 * hf
                a(f"ds_read2_b32 {vr(r+2*hf,2)}, v4 offset0:{o} offset1:{o+1}")
            if hf: reg[x] = r
            q.append(x if hf else None)
        pre = [n for n in need if n[0][0] == "K"][:self.o("kpre", 32)]
        M32E = self.o("m32e", 1)
        if M32E:
            late = ["s_movk_i32 s43, 0x3000", "v_lshlrev_b32 v6, v8, s43", f"v_lshlrev_b32 v{M32}, 3, v9", f"v_bfe_u32 v6, v6, v{M32}, 8", "v_lshl_or_b32 v6, v6, 15, v6"]
            for j in range(4): late += [f"v_lshrrev_b32 v{M32+j}, {2*j}, v6", f"v_and_b32 v{M32+j}, 0x10001, v{M32+j}", f"v_mul_u32_u24 v{M32+j}, s59, v{M32+j}"]
        if M32E == 2: late = self.ktail + [f"v_mul_u32_u24 v{M32+j}, s59, v{M32+j}" for j in range(4)]
        for i, n in enumerate(pre):
            if n[0] == ("K", 0, 0): assert not any("ds_write_b16" in t for t in late)
            issue(n[0], n[2]); need.remove(n)
            if M32E and late and i >= (12 if M32E == 1 else 0):
                t = late.pop(0); a(t)
                if "ds_" in t: q.append(None)
        if M32E:
            while late:
                t = late.pop(0); a(t)
                if "ds_" in t: q.append(None)
        bl = [(("B", r, i), 6, 1) for i, r in enumerate(() if M32E else (M32,))] + [(("B", r, i + 1), 15, 1) for i, r in enumerate((P1, P2, P3, B1, B2))]
        for b in bl:
            p = min(i for i, n in enumerate(need) if n[1] > b[1]); need.insert(p, b)
        if len(q) > 8:
            q = q[-6:]; a("s_waitcnt lgkmcnt(6)")
        a(f"s_barrier\ns_setprio {self.o('pm', 1)}")
        self.stamp(7)
        def wait_for(keys):
            nonlocal q
            pos = max([k for k, o in enumerate(q) if o in keys], default=-1)
            if pos >= 0:
                a(f"s_waitcnt lgkmcnt({min(15, len(q)-1-pos)})"); q = q[pos + 1:]
        AHEAD = self.o("ahead", 16); WG = self.o("wgrp", 4); URG = self.o("urg", 9)
        side = []; t3done = False
        from asmlib import Ins
        def emit(t):
            a(t)
            if "ds_" in t: q.append(None)
        for k, o in enumerate(ops):
            if o[0] == "y":
                r = ACC(o[1])
                side = [f"ds_write_b128 v7, {vr(r,4)} offset:{YOFF+YT*o[1]}"] + side
                continue
            if o[0] == "flag":
                t = f"ds_write_b32 v88, v88 offset:{16*o[1]}\n" + (self.fs((o[1]+1)//2, "barstamp") if o[1] in (1, 3, 5) else "") + (self.fs((1, 2, 3, 4, 5, 6, 11, 12)[o[1]], "st2"))
                p = max([i for i, z in enumerate(side) if "ds_write_b128" in z], default=-1)
                side.insert(p + 1, t)
                continue
            if o[0] == "cvt":
                tau = o[1]
                for r in range(4):
                    side += [f"v_cvt_pk_bf16_f32 v{V2(tau,0)+2*r}, v{VF+12+r}, v{VF+8+r}", f"v_cvt_pk_bf16_f32 v{V2(tau,0)+2*r+1}, v{VF+4+r}, v{VF+r}"]
                if tau <= 3: side += [f"v_cvt_pk_bf16_f32 v{V3(tau)+r}, v{VF+20+r}, v{VF+16+r}" for r in range(4)]
                continue
            if 0 <= self.o("t3at", 32) - 100 <= k and not t3done:
                a(self.T3.replace("v76", "v90")); t3done = True
            if k == 8 and not M32E:
                wait_for([bl[0][0]]); side += late
            if k == 16:
                assert all(b[0] in reg for b in bl); wait_for([b[0] for b in bl])
            regs = {("v", o[1] + i) for i in range(4)} | {("v", z[1] + i) for z in (o[2], o[3]) if z[0] == "R" for i in range(4)}
            hit = max([i for i, t in enumerate(side) if (lambda I: (I.dst | I.src) & regs)(Ins(t.split(chr(10))[0]))], default=-1)
            for t in side[:hit + 1]: emit(t)
            side = side[hit + 1:]
            n = 0
            def ok():
                if not need or len(q) >= 15: return False
                z = need[0][0]
                if z[0] in ("U", "US"): return bool(free)
                if z[0] == "T3": return last.get(("R", T3[z[1]]), -1) < k
                return True
            while ok() and need[0][1] <= k + AHEAD and (k == 0 and n < 9 or n < 1 or (need[0][1] <= k + URG and n < 2) or need[0][1] <= k):
                xx = need.pop(0); issue(xx[0], xx[2]); n += 1
            assert all(z[0] == "R" or z in reg for z in (o[2], o[3])), (k, o)
            if any(z in q for z in (o[2], o[3])):
                keys = []
                for oo in ops[k:k + (WG if k > 0 else 1)]:
                    if oo[0] == "m": keys += [oo[2], oo[3]]
                wait_for(keys); n += 1
            if side and (n < 2 or self.o("yu", 0) and "ds_write" in side[0]): emit(side.pop(0))
            if side and self.o("yu", 0) == 2 and "ds_write_b32" in side[0]: emit(side.pop(0))
            RR = lambda z: vr(z[1] if z[0] == "R" else reg[z], 4)
            a(f"v_mfma_f32_16x16x32_bf16 {vr(o[1],4)}, {RR(o[2])}, {RR(o[3])}, {'0' if o[4] else vr(o[1],4)}")
            for z in (o[2], o[3]):
                if z[0] in ("U", "US") and last[z] == k: free.append(reg[z])
        for t in side: a(t)
        self.stamp(8)
        self.fixup()

    def fixup(self):
        a = self.a
        PF = ("sc1", "sc0 sc1", "sc1 nt", "sc0 sc1 nt")[self.o("pf", 0)]
        WB = f"s_lshl_b32 s42, s{S_SLOT}, 3\ns_add_u32 s42, s42, s{S_W}\ns_cmp_lg_u32 s42, 1\ns_cbranch_scc1 L_nowb\nbuffer_wbl2 sc1\ns_waitcnt vmcnt(0)\nL_nowb:" if self.o("wb", 0) == 1 else ""
        a(f"""
        {WB}
        s_cmp_lg_u32 s{S_W}, 0
        s_cbranch_scc1 L_mw_end
        s_mul_i32 s42, s50, {PSTR}
        s_add_u32 s42, s42, {PARTS + 4096}
        v_add_u32 v18, s42, v3
        v_add_u32 v20, 4096, v18
        v_and_b32 v21, 0x70, v3
        s_add_u32 s42, s42, {72*128 - 4096}
        v_add_u32 v21, s42, v21
        s_mov_b32 s61, {SPIN}
        v_lshl_add_u32 v24, v9, 1, s54
        v_mov_b32 v35, s{S_T8}
        {"s_barrier" if self.o("pollafter", 1) else ""}
        {"s_sleep %d" % self.o("pdelay", 0) if self.o("pdelay", 0) else ""}
L_part_poll:
        global_load_dwordx4 v[164:167], v21, s[36:37] {PF}
        """)
        for k in range(9):
            a(f"global_load_dwordx4 {vr(128+4*k,4)}, v{18 if k < 8 else 20}, s[36:37] offset:{1024*k-4096 if k < 8 else 0} {PF}")
        a(f"""v_mul_u32_u24 v26, {UCH}, v9
        v_add_u32 v26, {UBASE+UPAD}, v26
        v_mul_u32_u24 v27, {TCH}, v9
        v_mov_b32 v25, {YT}
        s_waitcnt vmcnt(9)
        v_bfe_u32 v28, v164, 8, 11
        v_lshl_add_u32 v29, v28, 1, v26
        v_lshrrev_b32 v30, 8, v28
        v_mad_u32_u24 v27, v30, v25, v27
        v_bfe_u32 v30, v28, 2, 2
        v_mul_u32_u24 v30, 320, v30
        v_and_b32 v33, 0xf0, v28
        v_add3_u32 v27, v27, v30, v33
        v_and_b32 v33, 3, v28
        v_lshl_add_u32 v30, v33, 2, v27
        ds_read_b128 v[36:39], v88 offset:112
        ds_read_u16_d16_hi v31, v29
        ds_read_b32 v32, v30 offset:{YOFF}
        v_mul_u32_u24 v28, 1152, v28
        v_add_u32 v28, v28, v24
        v_xor_b32 v22, v35, v164
        s_waitcnt vmcnt(8)
        v_xor_b32 v128, v35, v128
        v_or_b32 v22, v22, v128
        """)
        for k in range(1, 9):
            a(f"""s_waitcnt vmcnt({8-k})
            v_xor_b32 v{128+4*k}, v35, v{128+4*k}
            v_pk_add_f32 v[130:131], v[130:131], {vr(130+4*k,2)}
            v_pk_add_f32 v[128:129], v[128:129], {vr(128+4*k,2)}""")
            if k % 2 == 0: a(f"v_bitop3_b32 v22, v22, v{124+4*k}, v{128+4*k} bitop3:0xfe")
        a(f"""
        s_waitcnt lgkmcnt(0)
        v_bitop3_b32 v36, v37, v38, v39 bitop3:0x7f
        v_and_b32 v36, {CFL & 0xf0}, v36
        v_or_b32 v22, v22, v36
        v_and_b32 v22, 0xff, v22
        v_cmp_ne_u32 vcc, 0, v22
        v_permlane32_swap_b32 v128, v130
        s_sub_u32 s61, s61, 1
        s_cselect_b64 vcc, 0, vcc
        s_cbranch_vccnz L_part_poll
        """)
        if not self.o("cf", 0): self.stamp(9)
        a(f"""
        v_permlane32_swap_b32 v129, v131
        v_add_f32 v128, v128, v130
        v_add_f32 v129, v129, v131
        v_and_b32 v31, 0xffff0000, v31
        v_fma_f32 v34, v31, v167, v166
        v_permlane16_swap_b32 v128, v129
        v_add_f32 v128, v128, v129
        v_mul_f32 v31, {f2u(32.0)}, v31
        v_mul_f32 v32, {f2u(1/32)}, v32
        v_add_f32_dpp v128, v128, v128 row_ror:8 row_mask:0xf bank_mask:0xf
        v_fma_f32 v128, v128, v165, v31
        v_mul_f32 v33, {f2u(-LOG2E)}, v128
        v_exp_f32 v33, v33
        v_mul_f32 v128, v128, v32
        v_add_f32 v33, 1.0, v33
        v_rcp_f32 v33, v33
        v_fmac_f32 v34, v128, v33
        v_cvt_pk_bf16_f32 v34, v34, v34
        {"" if self.o("pollafter", 1) == 1 and self.o("fl", 0) not in (2, 3, 4) else "s_barrier"}
        global_store_short v28, v34, s[32:33]
        """)
        if not self.o("cf", 0): self.stamp(10)
        a("L_mw_end:")
        self.dump()
        a("s_endpgm")

    def helper(self):
        a = self.a
        ST = 224
        FL = self.o("fl", 0)
        FLS = f"""s_mul_i32 s4, s{S_XCD}, 18
        s_and_b32 s5, s50, 0xf0
        s_max_u32 s6, s4, s5
        s_add_u32 s4, s4, 18
        s_add_u32 s5, s5, 16
        s_min_u32 s4, s4, s5
        s_sub_u32 s4, s4, s6
        s_sub_u32 s5, s50, s6
        v_cvt_f32_u32 v8, s4
        v_rcp_f32 v8, v8
        v_cvt_f32_u32 v9, v62
        v_add_f32 v9, 0.5, v9
        v_mul_f32 v8, v8, v9
        v_cvt_u32_f32 v8, v8
        v_mul_u32_u24 v8, s4, v8
        v_sub_u32 v8, v62, v8
        v_cmp_eq_u32 s[6:7], s5, v8
        v_mov_b32 v68, v36""" if FL else ""
        a("L_helper:")
        if self.o("tile_at", 32) == 33: a(self.tile_first)
        a("s_waitcnt lgkmcnt(0)\ns_barrier")
        self.stamp(11)
        a(f"s_setprio {self.o('phs', 0)}")
        if self.o("tdelay", 0): a(f"s_sleep {self.o('tdelay', 0)}")
        if self.o("tile_at", 32) == 32: a(self.tile_first)
        a(f"""v_and_b32 v62, 255, v0
        v_lshlrev_b32 v4, 4, v62
        v_add_u32 v4, {STATS + 4096}, v4
        v_add_u32 v7, 8192, v4""")
        SL_ = self.o("statlate", 1)
        t1at, t2at = self.o("t1at", 40), self.o("t2at", 41)
        if not SL_ and not self.o("stmid", 1):
            for t in self.stat_ld: a(t)
        T4 = self.o("t4", 0)
        PG = self.o("prog", 0)
        if T4 and not PG: a(f"s_cmp_eq_u32 s47, 2\ns_cbranch_scc0 L_ct4\nv_add_u32 v76, {352*9216}, v76\nglobal_load_dword v1, v76, s[56:57]\nL_ct4:")
        if t1at == 40: a(self.T1)
        if self.o("n2", 2) == 0: t2at = 99
        else:
            a(f"v_mov_b32 v38, v63\ns_xor_b32 s42, s51, {3 if self.o('t2hi', 0) else 0}\ns_mul_i32 s42, s42, {18*64}\ns_lshl_b32 s43, s{S_SLOT}, 6\ns_add_u32 s42, s42, s43\ns_add_u32 s42, s42, {64*self.wd['t2']}\ns_mov_b32 s58, 2")
            self.touch_setup()
            a("v_mov_b32 v63, v38")
        for k in range(4):
            a(f"s_bfe_u32 s43, s{S_TT}, {(2<<16) | (2*k)}\ns_mul_i32 s43, s43, 0x20004000\ns_and_b32 s43, s43, 0x40004000\nv_mov_b32 v{56+k}, s43")
        a(f"""v_and_b32 v88, 3, v0
        v_mul_u32_u24 v5, {UCH}, v88
        v_lshl_add_u32 v5, v63, 4, v5
        v_add_u32 v5, {UBASE+UPAD}, v5
        v_mov_b32 v63, 0x40004000
        s_lshr_b32 s43, s51, 1
        s_lshl_b32 s43, s43, 4
        s_add_u32 s43, s43, {CFL}
        v_lshl_add_u32 v88, v88, 2, s43
        s_mov_b32 s61, {SPIN}
        v_lshlrev_b32 v37, 2, v62
        v_add_u32 v64, {UBASE+UPAD}, v37
        v_add_u32 v65, {UBASE+UPAD+UCH}, v37
        v_add_u32 v66, {UBASE+UPAD+2*UCH}, v37
        v_add_u32 v67, {UBASE+UPAD+3*UCH}, v37
        v_bfe_u32 v37, v0, 1, 2
        v_mul_u32_u24 v37, 320, v37
        v_and_b32 v39, 0x78, v0
        v_lshl_add_u32 v37, v39, 1, v37
        v_and_b32 v39, 1, v0
        v_lshl_add_u32 v37, v39, 3, v37
        s_lshr_b32 s43, s51, 1
        s_mul_i32 s43, s43, {YT}
        s_add_u32 s43, s43, {YOFF}
        v_add_u32 v37, s43, v37
        v_add_u32 v39, {2*TCH}, v37
        v_mul_u32_u24 v36, 2304, v62
        v_add_u32 v36, s54, v36
        {FLS}
        v_mov_b32 v8, {f2u(-32*LOG2E)}
        v_mov_b32 v9, 0xffff0000
        v_lshlrev_b32 v62, 6, v62
        v_xor_b32 v62, s{S_T16}, v62
        v_and_b32 v10, 15, v0
        v_lshrrev_b32 v11, 1, v0
        v_and_b32 v11, 24, v11
        s_lshl_b32 s42, s51, 4
        s_mov_b32 s58, {(3 << 12) | ((7 << 11) << 16)}
        s_mov_b32 s59, {(0x1f << 6) | ((7 << 3) << 16)}
        s_lshr_b64 s[58:59], s[58:59], s42
        s_and_b32 s58, s58, 0xffff
        s_lshr_b32 s59, {(0x7f << 5) | ((0x1ff << 4) << 16)}, s42
        s_and_b32 s59, s59, 0xffff
        s_lshl_b32 s42, s51, 10
        s_add_u32 s42, s42, {BND}
        v_add_u32 v12, s42, v3
        """)
        for h in range(2):
            a(f"v_lshlrev_b32 v13, v10, s{58+h}\nv_bfe_u32 v13, v13, v11, 8\nv_lshl_or_b32 v13, v13, 15, v13")
            for j in range(4): a(f"v_and_b32 v{16+4*h+j}, {0x10001 << (2*j)}, v13\nv_mul_u32_u24 v{16+4*h+j}, {0x3f80 >> (2*j)}, v{16+4*h+j}")
            a(f"ds_write_b128 v12, {vr(16+4*h,4)} offset:{4096*h}")
        if self.o("d16", 0):
            for r in range(16, 32, 2): a(f"v_mov_b64 {vr(r,2)}, 0")
        if PG:
            seq = ("TS0123", "T0S123", "0TS123", "T01S23", "0S1T23", "S0T123", "0T1S23", "0T123S", "T0123S")[PG - 1]
            n = 0
            a("s_setprio 3")
            for ch in seq:
                if ch == "T":
                    a(f"s_cmp_eq_u32 s47, 2\ns_cbranch_scc0 L_ct4\nv_add_u32 v76, {352*9216}, v76\nglobal_load_dword v1, v76, s[56:57]\ns_branch L_ct5\nL_ct4:\nglobal_load_dword v1, v3, s[24:25]\nL_ct5:".replace("v1, v3, s[24:25]", "v1, v11, s[24:25]")); n += 1
                elif ch == "S":
                    for t in self.stat_ld: a(t)
                    n += 4
                else:
                    k = int(ch)
                    a(f"s_waitcnt vmcnt({3 - k + n})")
                    if k == 3: self.stamp(12)
                    if k == 0: a(self.fs(10, "q0"))
                    for r in range(4): a(f"v_xor_b32 v{40+4*k+r}, v{56+r}, v{40+4*k+r}")
                    a(f"ds_write_b128 v5, {vr(40+4*k,4)} offset:{1024*k}")
            self.t_last = seq.index("T") > seq.index("S")
            a("s_branch L_tile_or\nL_tile_chk:")
            for k in range(4):
                for r in range(4): a(f"v_xor_b32 v{40+4*k+r}, v{56+r}, v{40+4*k+r}")
                a(f"ds_write_b128 v5, {vr(40+4*k,4)} offset:{1024*k}")
            a("L_tile_or:")
        else:
            if not SL_ and self.o("stmid", 1):
                assert t1at != 40
                if t2at == 40:
                    assert self.o("n2", 2) == 2 and not T4
                    a(self.T2)
                for t in self.stat_ld: a(t)
            nb = 0 if SL_ else 4
            if t1at == 40 and t2at == 40: a(f"s_waitcnt vmcnt({nb+1})")
            elif t1at == 40: a(f"s_waitcnt vmcnt({nb+1})\ns_cmp_eq_u32 s47, 3\ns_cbranch_scc1 L_tw\ns_waitcnt vmcnt({nb})\nL_tw:")
            elif T4 or t2at == 40: a(f"s_waitcnt vmcnt({nb+1})\ns_cmp_eq_u32 s47, 2\ns_cbranch_scc1 L_tw\ns_waitcnt vmcnt({nb})\nL_tw:")
            else: a(f"s_waitcnt vmcnt({nb})")
            self.stamp(12)
            a(f"s_setprio 3\nL_tile_chk:")
            for k in range(4):
                for r in range(4): a(f"v_xor_b32 v{40+4*k+r}, v{56+r}, v{40+4*k+r}")
                a(f"ds_write_b128 v5, {vr(40+4*k,4)} offset:{1024*k}")
        a("v_bitop3_b32 v38, v40, v41, v42 bitop3:0xfe")
        for r in range(43, 55, 2): a(f"v_bitop3_b32 v38, v38, v{r}, v{r+1} bitop3:0xfe")
        a(f"""v_bitop3_b32 v38, v38, v55, v63 bitop3:0xa8
        v_cmp_ne_u32 vcc, 0, v38
        s_cbranch_vccz L_tile_ok
        {chr(10).join(self.tile_ld)}
        s_waitcnt vmcnt(0)
        s_sub_u32 s61, s61, 1
        s_cbranch_scc0 L_tile_chk
L_tile_ok:""")
        self.stamp(6)
        if self.o("ntile", 0): a(f"s_sub_u32 s72, {SPIN+1}, s61")
        def statchk():
            a(f"s_waitcnt vmcnt({1 if PG and self.t_last else 0})\nL_h_poll:\nv_mov_b32 v38, 0")
            for k in range(8):
                a(f"v_xor_b32 v13, {(0x7ff ^ (512*(k>>1)) ^ (k&1)) << 5}, v{ST+1+2*k}\nv_bitop3_b32 v38, v38, v13, v62 bitop3:0xf6")
            a(f"""v_and_b32 v38, 0xffff, v38
            v_cmp_ne_u32 vcc, 0, v38
            s_cbranch_vccz L_h_ok
            {chr(10).join(self.stat_ld)}
            s_waitcnt vmcnt(0)
            s_sub_u32 s61, s61, 16
            s_cbranch_scc0 L_h_poll
L_h_ok:""")
        a(f"s_mov_b32 s61, {SPIN*16}")
        if SL_:
            for t in self.stat_ld: a(t)
        else:
            if t1at == 40: a("s_waitcnt vmcnt(1)\ns_cmp_eq_u32 s47, 3\ns_cbranch_scc1 L_h_poll")
            if T4 and not self.o("stmid", 1) and not self.o("stchk", 0): a("s_waitcnt vmcnt(1)\ns_cmp_eq_u32 s47, 2\ns_cbranch_scc1 L_h_poll")
            if not self.o("stchk", 0): statchk()
            if self.o("ntile", 0): a(f"s_sub_u32 s74, {SPIN*16+64}, s61")
        a(f"s_setprio {self.o('pur', 3)}\ns_waitcnt lgkmcnt(0)\ns_barrier")
        self.stamp(7)
        B = lambda s: 96 + 32 * s
        D16 = self.o("d16", 0); HP = self.o("hpre", 2); ASY = self.o("asy", 15)
        rdu = lambda s: "\n".join(f"ds_read_u16_d16_hi v{16+8*(s&1)+4*t+c}, v64 offset:{c*UCH+1024*s+2*t}" for t in range(2) for c in range(4))
        if D16: a(rdu(0))
        for sp in range(2):
            for c in range(4):
                if not D16: a(f"ds_read2st64_b32 {vr(16+8*sp+2*c,2)}, v{64+c} offset0:{8*sp} offset1:{8*sp+4}")
        RU = lambda s, c: 16 + 8 * (s >> 1) + 2 * c + (s & 1)
        a(f"s_setprio {self.o('ph0', 0)}")
        if t2at == 41 and 0: a(self.T2.replace("L_ct2:", "s_waitcnt vmcnt(1)\ns_branch L_h_poll\nL_ct2:") if SL_ else self.T2)
        if SL_: statchk()
        a("s_waitcnt lgkmcnt(4)")
        def pre(s, t):
            u, g, p = B(s) + 4 * t, B(s) + 8 + 4 * t, B(s) + 24 + 2 * t
            st = ST + 4 * s + 2 * t
            if D16:
                u = 16 + 8 * (s & 1) + 4 * t
                if (s, t) == (0, 1) or (s > 0 and t == 0): a("s_waitcnt lgkmcnt(0)")
            else:
                for c in range(4): a(f"v_lshlrev_b32 v{u+c}, 16, v{RU(s,c)}" if t == 0 else f"v_and_b32 v{u+c}, v9, v{RU(s,c)}")
            for c in range(4): a(f"v_mul_f32 v{g+c}, v8, v{u+c}")
            for c in range(4): a(f"v_exp_f32 v{g+c}, v{g+c}")
            if not (self.o("stchk", 0) and 2 * s + t < HP): a(f"v_and_b32 v{p+1}, v9, v{st}")
            for c in range(4): a(f"v_add_f32 v{g+c}, 1.0, v{g+c}")
            for c in range(4): a(f"v_rcp_f32 v{g+c}, v{g+c}")
            if not (self.o("stchk", 0) and 2 * s + t < HP): a(f"v_lshlrev_b32 v{p}, 16, v{st}")
        def aread(s):
            a(f"s_setprio {self.o('psp', 2)}\nds_read_b32 v41, v88 offset:{32*s}")
            for c in range(4): a(f"ds_read_b64 {vr(44+2*c,2)}, v{(37, 39)[c>>1]} offset:{(c&1)*TCH + 2*YT*s}")
            a(f"s_setprio {self.o('php', 0)}")
        def waitflag(s):
            lab = f"L_w{s}"
            SLP = self.o("hs3", 1) if s == 3 else self.o("hs", 2)
            CMB = s == 3 and self.o("cmb3", 1) or s < 3 and self.o("cmb", 0)
            if (ASY >> s) & 1: a(f"s_waitcnt lgkmcnt(0)\nv_cmp_eq_u32 vcc, 0, v41\ns_cbranch_vccz {lab}_go")
            rdy = "\n".join(f"ds_read_b64 {vr(44+2*c,2)}, v{(37, 39)[c>>1]} offset:{(c&1)*TCH + 2*YT*s}" for c in range(4))
            a(f"""s_setprio {self.o("psp", 2)}
{lab}:
            ds_read_b32 v41, v88 offset:{32*s}
            {rdy if CMB else ""}
            s_waitcnt lgkmcnt(0)
            v_cmp_eq_u32 vcc, 0, v41
            s_cbranch_vccz {lab}_ok
            {"s_sleep %d" % SLP if SLP else ""}
            s_sub_u32 s61, s61, 1
            s_cbranch_scc0 {lab}
{lab}_ok:""")
            if CMB:
                if s < 3: a(f"s_setprio {self.o('phf', 0)}")
            else: a(rdy + ("\n" + rdu(s + 1) if D16 and s < 3 else "") + f"\ns_setprio {self.o('phf', 0)}\ns_waitcnt lgkmcnt({8 if D16 else 0})")
            a(f"{lab}_go:")
        def fin(s, t):
            u, g, y, p = B(s) + 4 * t, B(s) + 8 + 4 * t, B(s) + 16 + 4 * t, B(s) + 24 + 2 * t
            for c in range(4): a(f"v_fma_f32 v{y+c}, v{44+2*c+t}, v{g+c}, v{p+1}")
            for c in range(4): a(f"v_fma_f32 v{u+c}, v{16+8*(s&1)+4*t+c if D16 else u+c}, v{y+c}, v{p}")
            a(f"v_cvt_pk_bf16_f32 v{g}, v{u}, v{u+1}\nv_cvt_pk_bf16_f32 v{g+1}, v{u+2}, v{u+3}")
        def st(s, t):
            ins = f"global_store_dwordx2 v36, {vr(B(s)+8+4*t,2)}, s[32:33] offset:{1152*t}"
            XF = ("", "sc1", "sc0 sc1", "nt", "sc1 nt")[self.o("xf", 0)]
            if XF and s < self.o("xfn", 4): a(f"s_cmp_ge_u32 s{S_SLOT}, 16\ns_cbranch_scc1 L_x{s}{t}\n{ins}\ns_branch L_y{s}{t}\nL_x{s}{t}:\n{ins} {XF}\nL_y{s}{t}:")
            else: a(ins)
            if t == 1 and s < 3: a(f"v_add_u32 v36, {512*1152}, v36")
        def flush(s):
            a("s_mov_b64 exec, s[6:7]")
            for t in range(2): a(f"global_store_dwordx2 v68, {vr(B(s)+8+4*t,2)}, s[32:33] offset:{1152*t} sc1")
            a(f"v_add_u32 v68, {512*1152}, v68\ns_mov_b64 exec, -1")
        todo = [(s, t) for s in range(4) for t in range(2)]
        assert not SL_
        if t2at == 41 and not self.o("stchk", 0): a(self.T2)
        for _ in range(self.o("hpre", 2)): pre(*todo.pop(0))
        if self.o("stchk", 0):
            assert HP <= 4
            if ASY & 1: aread(0)
            statchk()
            if t2at == 41: a(self.T2)
            for k in range(HP): a(f"v_and_b32 v{B(k>>1)+25+2*(k&1)}, v9, v{ST+2*k}\nv_lshlrev_b32 v{B(k>>1)+24+2*(k&1)}, 16, v{ST+2*k}")
        for s in range(4):
            if s < 3: a(self.fs(s + 1, "barstamp"))
            if s > 0 and self.o("sts", 0): a(self.fs((0, 1, 3, 5)[s], "sts") + "\ns_waitcnt vmcnt(0)\n" + self.fs((0, 2, 4, 6)[s], "sts"))
            if self.o("st2", 0): a(self.fs((1, 3, 5, 10)[s], "st2"))
            waitflag(s)
            if self.o("st2", 0): a(self.fs((2, 4, 6, 11)[s], "st2"))
            if self.o("sts", 0) and s in (0, 1, 3): a(self.fs((10, 11, 0, 12)[s], "sts"))
            fin(s, 0); st(s, 0)
            if todo and todo[0] == (s, 1): pre(*todo.pop(0))
            fin(s, 1)
            if self.o("b2b", 0): st(s, 1)
            if s < 3 and self.o('phf', 0) != self.o('php', 0): a(f"s_setprio {self.o('php', 0)}")
            if todo: pre(*todo.pop(0))
            if not self.o("b2b", 0): st(s, 1)
            if s < 3 and (ASY >> (s + 1)) & 1: aread(s + 1)
            if todo and not self.o("lazy", 0): pre(*todo.pop(0))
            if s in (1, 2) and FL in (1, 2, 3): flush(s - 1)
            if s == 2 and FL == 5: flush(0); flush(1)
        self.stamp(8)
        if self.o("pollafter", 1) == 2: a(f"s_waitcnt vmcnt({self.o('pav', 63)})\ns_barrier")
        a("s_waitcnt vmcnt(0)")
        if not self.o("cf", 0): self.stamp(9)
        a("s_barrier")
        if FL in (2, 3, 4):
            for s in {2: (2,), 3: (2, 3), 4: (0, 1, 2, 3)}[FL]: flush(s)
            a("s_waitcnt vmcnt(0)\ns_barrier")
        if self.o("wb", 0) == 2: a(f"s_lshl_b32 s42, s{S_SLOT}, 3\ns_add_u32 s42, s42, s{S_W}\ns_cmp_lg_u32 s42, 4\ns_cbranch_scc1 L_nowb\nbuffer_wbl2 sc1\ns_waitcnt vmcnt(0)\nL_nowb:")
        self.dump()
        a("s_endpgm")

    def build(self):
        if self.o("prepad", 0): self.a(".text\n.p2align 8\n.fill %d, 4, 0xbf810000" % (64 * self.o("prepad", 0)))
        self.prologue(); self.spare_pre(); self.ffn_pre(); self.conv_pre()
        self.ln_copy(True); self.conv()
        self.ln_copy(False); self.ffn()
        self.a("L_end:\ns_endpgm\n; never executed: keeps the instruction prefetch inside lines that were pulled into L2\n.fill %d, 4, 0xbf810000\nL_last:" % self.o("tailpad", 96))
        return HEADER + f"""; @launch grid=(256,1,1) block=(512,1,1) lds={LDSZ}
.amdgcn_target "amdgcn-amd-amdhsa--gfx950"
""" + self.post(self.a.text(self.o("verbose", 0))) + """.section .rodata,"a"
.p2align 6
""" + descriptor(KN, 256, 102)

if __name__ == "__main__":
    opt = {}
    for s in sys.argv[2:]:
        k, v = s.split("="); opt[k] = int(v)
    open(sys.argv[1], "w").write(G8(**opt).build())
GEN = G8
```

```python
import sys, re
from parts import *
import gen_v6 as V
from gen_v6 import *

KS = 1216; K8 = 4 * KS; K4 = K8 + 320
BND = LNS
YT = 1280
YOFF = 9472

class G8(V.G):
    def __init__(self, stamps=False, **opt):
        for k, v in dict(early=0, n2t=6, thr2=3, nw=1, eh=3, kpre=24, t1at=3, tile_at=32, p1=5, px=0, stg=0, t3at=102, tile64=0, statlate=0, wdo=2, gm=1, ot=1, b2b=1, t4=1, stchk=1, sp2n=7, n2=0, pp=1, pollafter=2, prog=9).items(): opt.setdefault(k, v)
        super().__init__(stamps, **opt)
    def conv_pre(self):
        a = self.a
        T4 = self.o("t4", 0) or self.o("xo", 0)
        GM = f"s_mul_i32 s50, s{S_XCD}, 18\ns_add_u32 s50, s50, s{S_SLOT}"
        if self.o("gm", 0): GM = f"s_lshl_b32 s50, s{S_XCD}, 4\ns_lshl_b32 s42, s{S_XCD}, 1\ns_add_u32 s42, s42, 112\ns_cmp_ge_u32 s{S_SLOT}, 16\ns_cselect_b32 s50, s42, s50\ns_add_u32 s50, s50, s{S_SLOT}"
        HK = f"s_and_b32 s54, s{S_SLOT}, 15\ns_lshl_b32 s54, s54, 3\ns_mul_i32 s43, s{S_XCD}, {self.o('hk', 0)}\ns_add_u32 s54, s54, s43" if self.o("hk", 0) else ""
        E0 = "s_cmp_lg_u32 s47, 2\ns_cbranch_scc1 L_cp2\nglobal_load_dword v1, v76, s[56:57]\nL_cp2:"
        a(f"""
L_conv_pre:
        {GM}
        s_lshl_b32 s53, s50, 2
        s_add_u32 s53, s53, s51            ; channel
        s_lshl_b32 s42, s53, 8
        s_lshl_b32 s43, s52, 7
        s_add_u32 s42, s42, s43
        v_add_u32 v60, s42, v4
        s_lshl_b32 s54, s50, 3
        {HK}
        s_lshl_b32 s42, s53, 1
        v_mov_b32 v61, s42
        v_mov_b64 v[64:65], 0
        v_mov_b64 v[66:67], 0
        v_mov_b64 v[68:69], 0
        v_mov_b64 v[70:71], 0
        s_barrier
        global_load_short_d16_hi v70, v61, s[18:19]
        global_load_short_d16_hi v64, v60, s[6:7]
        global_load_short_d16_hi v65, v60, s[8:9]
        global_load_short_d16_hi v66, v60, s[10:11]
        global_load_short_d16_hi v67, v60, s[12:13]
        global_load_short_d16_hi v68, v60, s[14:15]
        global_load_short_d16_hi v69, v60, s[16:17]
        global_load_short_d16_hi v71, v61, s[20:21]
        global_load_ushort v1, v61, s[20:21]
        s_lshr_b32 s42, s51, 1
        s_mul_i32 s42, s42, {3168 if self.o('ft', 0) == 2 else 2112 if self.o('ord2', 1) else 1472}
        s_and_b32 s58, s51, 1
        s_mul_i32 s43, {"s51" if T4 else "s58"}, {18*64}
        s_add_u32 s43, s43, {64*self.wd['mf']}
        s_lshr_b32 s47, s{S_W}, 1
        s_cmp_eq_u32 s47, 0
        s_cmovk_i32 s42, 3168
        {"s_cmp_eq_u32 s52, 0" if T4 else "s_cmp_eq_u32 s47, 1"}
        s_cselect_b32 s42, s43, s42
        s_cmovk_i32 s58, 2
        s_lshl_b32 s43, s{S_SLOT}, 6
        s_add_u32 s42, s42, s43
        """)
        if self.o("xo", 0): a(f"s_lshr_b32 s43, s{S_SLOT}, 1\ns_lshl_b32 s43, s43, 6\ns_add_u32 s43, s43, 3264\ns_and_b32 s59, s{S_SLOT}, 1\ns_cmp_eq_u32 s{S_W}, 3\ns_cselect_b32 s42, s43, s42\ns_cselect_b32 s58, s59, s58")
        self.touch_setup()
        a(f"""
        {"" if self.o("late0", 1) else E0}
        s_mul_i32 s55, s51, {TCH}
        s_lshl_b32 s42, s52, 8
        s_add_u32 m0, s55, s42
        s_mul_i32 s63, s51, {UCH}
        s_add_u32 s63, s63, {UBASE}
        v_mov_b64 v[84:85], 0
        v_mov_b64 v[86:87], 0
        s_cmp_eq_u32 s52, 0
        s_cbranch_scc1 L_cp_m
        ; helpers: zero pad of u and the flag words
        s_setprio {self.o("pt", 1)}
        v_min_u32 v83, 29, v2
        v_lshl_add_u32 v83, v83, 4, s63
        ds_write_b128 v83, v[84:87]
        v_and_b32 v88, 0x70, v3
        v_add_u32 v88, {CFL}, v88
        ds_write_b128 v88, v[84:87]
        s_branch L_cp_e
L_cp_m:
        v_and_b32 v8, 15, v0
        v_bfe_u32 v9, v0, 4, 2
        v_and_b32 v10, 31, v0
        v_and_b32 v11, 32, v0
        v_mul_u32_u24 v78, {ROW}, v10
        v_lshrrev_b32 v11, 1, v11
        v_add3_u32 v78, v78, v11, s55
        v_lshl_add_u32 v10, v10, 5, v11
        s_add_u32 s42, s55, 1072
        v_sub_u32 v81, s42, v10
        v_lshrrev_b32 v77, 2, v10
        s_add_u32 s42, s55, {K4 + 380}
        v_sub_u32 v77, s42, v77
        v_bfe_i32 v79, v0, 4, 1
        v_sub_u32 v80, 495, v10
        v_ashrrev_i32 v80, 31, v80
        v_sub_u32 v82, 1007, v10
        v_ashrrev_i32 v82, 31, v82
        v_bfe_u32 v10, v0, 3, 2            ; copy s
        v_and_b32 v11, 7, v0               ; k
        v_mul_u32_u24 v73, {KS}, v10
        v_and_b32 v83, 4, v0
        v_lshl_add_u32 v83, v83, 4, v11
        v_lshl_add_u32 v83, v83, 4, v73
        v_lshlrev_b32 v72, 4, v10
        v_add_u32 v72, {K8 + 256}, v72
        v_sub_u32 v74, 5, v11
        v_ashrrev_i32 v74, 31, v74
        v_bfi_b32 v83, v74, v72, v83
        v_and_b32 v72, 8, v0
        v_mad_u32_u24 v72, v72, 3, v11
        v_lshlrev_b32 v72, 4, v72
        v_add_u32 v72, {K4}, v72
        v_bfe_i32 v74, v0, 5, 1
        v_bfi_b32 v83, v74, v72, v83
        v_add_u32 v83, s55, v83
        v_sub_u32 v74, 4, v11
        v_ashrrev_i32 v74, 31, v74
        v_add_u32 v72, 507, v11
        v_min_u32 v75, 2, v11
        v_bfi_b32 v74, v74, v72, v75
        v_sub_u32 v74, v74, v10
        v_lshl_add_u32 v73, v74, 1, v73
        v_min_u32 v74, 1, v10
        v_lshl_add_u32 v73, v74, 3, v73
        s_add_u32 s42, s55, 58
        v_add_u32 v73, s42, v73
        v_max_u32 v72, 4, v11
        v_mul_u32_u24 v72, 0x202, v72
        v_add_u32 v72, {0x0504 + 0x0808 - 4*0x202}, v72
        v_and_b32 v72, 0x707, v72
L_cp_e:
        """)

    def spare_pre(self):
        n0 = len(self.a.l); V.G.spare_pre(self)
        if self.o("late0", 1):
            k = self.a.l.index("    s_barrier", n0)
            del self.a.l[k:]; self.a("s_mov_b32 s49, 0\ns_branch L_lnp")
    def ffn_pre(self):
        n0 = len(self.a.l); V.G.ffn_pre(self)
        if self.o("late0", 1):
            k = self.a.l.index("    s_barrier", n0)
            del self.a.l[k:k + 1 + 4 * self.R1]
            self.a.l.insert(k, "    s_mov_b32 s49, s42")

    def setup(self):
        a = self.a
        a(f"""
        v_mul_f32 v70, {f2u(LOG2E)}, v70
        v_exp_f32 v70, v70
        v_mov_b32 v34, 0x3f80
        ds_write_addtid_b32 v34
        v_cvt_pk_bf16_f32 v70, v70, v70
        v_and_b32 v70, 0xffff0000, v70
        v_mul_f32 v64, v70, v64
        v_mul_f32 v65, v70, v65
        v_mul_f32 v70, {f2u(1024.0)}, v70
        v_mul_f32 v64, {f2u(LOG2E)}, v64
        v_mul_f32 v65, {f2u(INV2PI)}, v65
        v_mul_f32 v66, v70, v66
        v_mul_f32 v67, v70, v67
        """)
        E = ((22, 1.0, True), (24, 16.0, False), (26, 512.0, True))
        for k, (d, e, cj) in enumerate(E):
            if k: a(f"v_mul_f32 v{12+k}, {f2u(e)}, v64\nv_mul_f32 v{16+k}, {f2u(e)}, v65")
        for k, (d, e, cj) in enumerate(E): a(f"v_exp_f32 v{12+k}, v{12+k if k else 64}\nv_fract_f32 v{16+k}, v{16+k if k else 65}")
        a("""v_pk_mul_f32 v[20:21], v[68:69], v[66:67] op_sel:[0,0] op_sel_hi:[0,1] neg_hi:[0,1]
        v_pk_fma_f32 v[90:91], v[68:69], v[66:67], v[20:21] op_sel:[1,1,0] op_sel_hi:[1,0,1] neg_lo:[0,1,0] neg_hi:[0,1,0]""")
        for k, (d, e, cj) in enumerate(E): a(f"v_cos_f32 v{d}, v{16+k}\nv_sin_f32 v{d+1}, v{16+k}")
        a(f"v_cvt_pk_bf16_f32 v35, v90, v91\nds_write_addtid_b32 v35 offset:{32*ROW}")
        for k, (d, e, cj) in enumerate(E):
            a(f"v_mul_f32 v{d}, v{12+k}, v{d}\nv_mul_f32 v{d+1}, {'-' if cj else ''}v{12+k}, v{d+1}")
        a(f"v_cvt_pk_bf16_f32 v36, v24, v25\nds_write_addtid_b32 v36 offset:{ROW}")

    def ln_copy(self, conv):
        n0 = len(self.a.l)
        V.G.ln(self)
        blk = self.a.l[n0:]; del self.a.l[n0:]
        txt = "\n".join(blk)
        cut = txt.index(f"    s_cmp_lt_u32 s{S_SLOT}, 18\n    s_cbranch_scc1 L_conv")
        head, tail = txt[:cut], txt[cut:]
        if not conv:
            head = re.sub(r"    s_waitcnt vmcnt\((8|9)\)\n    s_cmp_eq_u32 s47, \d\n    s_cbranch_scc1 L_ln\n", "", head)
            tail = tail.split("\n", 2)[2]
            if self.o("late0", 1):
                i0 = head.index(f"    s_waitcnt vmcnt({self.R1})"); i1 = head.index("L_ln:")
                r1 = "".join(f"s_add_u32 m0, s49, {4096*i}\ns_nop 0\nglobal_load_lds_dwordx4 v76, s[56:57]\nv_add_u32 v76, {32*9216}, v76\n" for i in range(self.R1))
                if self.o("r1h", 0):
                    k = r1.rindex("s_add_u32 m0")
                    r1 = r1[:k] + f"s_cmp_eq_u32 s52, 0\ns_cbranch_scc1 L_lw3\ns_waitcnt vmcnt({self.R1-1})\ns_branch L_ln\nL_lw3:\n" + r1[k:]
                head = head[:i0] + ("s_waitcnt vmcnt(0)\n" if self.o("late0", 1) >= 2 else "") + f"""s_cmp_lt_u32 s{S_SLOT}, 27
                s_cbranch_scc1 L_lw2
                s_cmp_lt_u32 s{S_W}, 2
                s_cbranch_scc0 L_lw1
                global_load_dword v1, v76, s[56:57]
                s_waitcnt vmcnt(1)
                s_branch L_ln
L_lw1:
                s_waitcnt vmcnt(0)
                s_branch L_ln
L_lw2:
                {r1}
                s_waitcnt vmcnt({self.R1})
""" + head[i1:]
            self.a(head + tail)
            return
        head = re.sub(r"L_ln", "L_cln", head)
        i0 = head.index("    s_waitcnt vmcnt(9)"); i1 = head.index("L_cln:")
        if self.o("late0", 1) == 2:
            head = head[:i0] + "    s_waitcnt vmcnt(9)\n    s_cmp_eq_u32 s47, 2\n    s_cbranch_scc0 L_cln\n    global_load_dword v1, v76, s[56:57]\n" + head[i1:]
        elif self.o("late0", 1) == 3:
            head = head[:i0] + "    s_waitcnt vmcnt(9)\n" + head[i1:]
        elif self.o("late0", 1):
            head = head[:i0] + "    s_cmp_eq_u32 s47, 2\n    s_cbranch_scc0 L_clw\n    global_load_dword v1, v76, s[56:57]\n    s_waitcnt vmcnt(10)\n    s_branch L_cln\nL_clw:\n    s_waitcnt vmcnt(9)\n" + head[i1:]
        else: head = head[:i0] + "    s_waitcnt vmcnt(10)\n    s_cmp_eq_u32 s47, 2\n    s_cbranch_scc1 L_cln\n    s_waitcnt vmcnt(9)\n" + head[i1:]
        j = head.rindex("    s_waitcnt lgkmcnt(0)\n    s_barrier")
        if not self.o("esetup", 0):
            self.a(head)
            return
        self.a(head[:j])
        self.a("s_cmp_eq_u32 s52, 0\ns_cbranch_scc0 L_cs1\ns_waitcnt vmcnt(1)" if self.o("early", 0) else "s_cmp_eq_u32 s52, 0\ns_cbranch_scc0 L_cs1\ns_waitcnt vmcnt(0)")
        self.setup()
        self.a("L_cs1:")
        self.a(head[j:].replace("L_cln_st:\n    s_waitcnt lgkmcnt(0)", "L_cln_st:\n    s_waitcnt vmcnt(1) lgkmcnt(0)"))

    def conv(self):
        a = self.a
        ST = 224
        T64 = self.o("tile64", 1)
        def touch(cond, lab, pre=""):
            return f"{cond}\ns_cbranch_scc0 {lab}\n{pre}\nglobal_load_dword v1, v76, s[56:57]\n{lab}:"
        T2 = touch(f"s_cmp_ge_u32 s51, {4 - self.o('n2', 2)}" if self.o("t2hi", 0) else f"s_cmp_lt_u32 s51, {self.o('n2', 2)}", "L_ct2", "")
        T1 = touch("s_cmp_eq_u32 s47, 3", "L_ct1")
        self.T3 = touch(f"s_cmp_lt_u32 s{S_W}, {self.o('n3', 2)}", "L_ct3")
        self.T1, self.T2 = T1, T2
        t1at, t2at, t3at, TA = self.o("t1at", 40), self.o("t2at", 41), self.o("t3at", 32), self.o("tile_at", 32)
        if self.o("esetup", 0): a("s_cmp_eq_u32 s52, 0\ns_cbranch_scc1 L_cs2")
        else: a("s_waitcnt vmcnt(2)")
        if self.o("pdrop", 99) == 0: a("s_setprio 0")
        if t1at == 0: a(T1)
        self.setup()
        self.tile_ld = [f"global_load_dwordx4 {vr(40+4*k,4)}, v6, s[{12+2*k}:{13+2*k}] sc1" for k in range(4)]
        self.stat_ld = [f"global_load_dwordx4 {vr(ST+4*k,4)}, v{(4, 7)[k>>1]}, s[36:37] offset:{-4096 if k%2==0 else 0} sc1" for k in range(4)]
        tadr = (["s_lshl_b32 s42, s50, 14"] if T64 else ["s_lshr_b32 s42, s50, 1", "s_lshl_b32 s42, s42, 15", "s_and_b32 s43, s50, 1", "s_lshl_b32 s43, s43, 6", "s_add_u32 s42, s42, s43"])
        tadr += [f"s_add_u32 s42, s42, {TILE}", "s_add_u32 s12, s36, s42", "s_addc_u32 s13, s37, 0"]
        for k in range(1, 4): tadr += [f"s_add_u32 s{12+2*k}, s12, {(4096 if T64 else 8192)*k}", f"s_addc_u32 s{13+2*k}, s13, 0"]
        tadr += ["v_bfe_u32 v63, v0, 2, 6", "v_and_b32 v6, 0x30, v3", f"v_lshl_add_u32 v6, v63, {6 if T64 else 7}, v6"]
        self.tile_first = "\n".join(tadr + self.tile_ld)
        a("L_cs2:")
        a(self.fs(10, "cf"))
        H = lambda e: 90 + 2 * e
        pos = {**{e: [e] for e in range(4)}, **{e: [e + 4] for e in range(4, 8)}, 8: [4, 16], 9: [5, 17], 10: [6, 18], 11: [7],
               **{e: [e] for e in range(12, 16)}, 16: [20], 17: [21], 18: [22]}
        gops = [(H(e), H(e - 1), 22, pos[e]) for e in range(1, 19)]
        gops += [(H(e), H(e), 26, r) for e, r in zip((4, 8, 12, 16), ([24], [25], [28], [29]))]
        gops += [(H(8), H(8), 26, [26]), (H(16), H(16), 26, [27]), (H(8), H(8), 26, [30]), (H(16), H(16), 26, [31])]
        dup = []
        for i in range(2, 32):
            t = 34 + (i & 1) * 2
            if 14 <= i < 14 + self.o("skiprows", 0): continue
            cmul(a, 28, 24 if i == 2 else 28, 24, 30)
            a(f"v_cvt_pk_bf16_f32 v{t}, v28, v29\nds_write_addtid_b32 v{t} offset:{i*ROW}")
            if i - 2 < len(gops):
                d, s, z, rows = gops[i - 2]
                cmul(a, d, s, z, 32)
                tg = t + 1 if len(rows) == 1 else 12 + len(dup)
                a(f"v_cvt_pk_bf16_f32 v{tg}, v{d}, v{d+1}\nds_write_addtid_b32 v{tg} offset:{(32+rows[0])*ROW}")
                if len(rows) > 1: dup.append(f"ds_write_addtid_b32 v{tg} offset:{(32+rows[1])*ROW}")
            if i == 31:
                for t in dup: a(t)
            if i == TA: a(f"s_cmp_eq_u32 s52, 0\ns_cbranch_scc1 L_hp0\n{self.tile_first}\nL_hp0:")
            if i == self.o("kb", 99):
                a("s_cmp_eq_u32 s52, 0\ns_cbranch_scc0 L_kb\ns_barrier")
                self.stamp(11)
                for s in range(self.o("kbn", 6)): a(f"ds_read_b128 {vr(128+8*s,4)}, v78 offset:{32*ROW+32*(s^8)}\nds_read_b128 {vr(132+8*s,4)}, v78 offset:{32*(s^8)}")
                a("L_kb:")
            if i == 16: a(self.fs(9, "cf"))
            if i == self.o("pdrop", 99): a("s_setprio 0")
            if i == t1at: a(T1)
            if self.o("xo", 0) == i: a(touch(f"s_cmp_eq_u32 s{S_W}, 3", "L_ctx"))
            if i == t2at: a(T2)
            if i == t3at: a(self.T3)
        self.stamp(4)
        a("s_cmp_eq_u32 s52, 0\ns_cbranch_scc0 L_helper")
        if self.o("kb", 99) < 32: a("s_setprio 2")
        elif not self.o("ks", 0):
            a("s_setprio 2\ns_barrier")
            self.stamp(11)
        self.mfma_waves()
        self.helper()

    def mfma_waves(self):
        a = self.a
        KR = lambda i, j: 192 + 32 * i + 4 * j
        K16, M32, B1, B2, P1, P2, P3 = 12, 16, 20, 24, 28, 32, 36
        T3 = {4: 40, 5: M32, 6: B1, 7: B2}
        T2 = lambda d, b: 168 + 8 * (d - 2) + 4 * b
        V3 = lambda tau: 92 + 4 * tau
        V2 = lambda tau, b: 136 + 8 * (tau & 3) + 4 * b
        ACC = lambda g: 44 + 4 * (g % 6)
        VF = 108
        URING = [68, 72, 76, 80, 84, 132]
        D = 48
        fill = f"""v_add_u32 v74, -1, v2
        v_and_b32 v71, v71, v74
        v_mul_f32 v71, {f2u(1024.0)}, v71
        v_and_b32 v10, 3, v8
        v_add_u32 v5, 1, v10
        v_mul_u32_u24 v10, {KS - 2}, v10
        v_lshl_add_u32 v11, v8, 1, v9
        v_mul_u32_u24 v4, 17, v9
        v_sub_u32 v4, v4, v11
        v_and_b32 v5, 4, v5
        s_add_u32 s43, s55, {32 + 3*KS}
        v_lshl_add_u32 v10, v5, 1, v10
        v_sub_u32 v10, v4, v10
        v_add_u32 v10, s43, v10
        v_lshl_add_u32 v11, v11, 4, s63
        s_add_u32 s43, s55, {K8 + 252}
        v_lshrrev_b32 v75, 2, v3
        v_sub_u32 v75, s43, v75
        v_lshl_add_u32 v7, v9, 6, v3
        v_add_u32 v7, s55, v7
        v_lshlrev_b32 v4, 2, v9
        v_sub_u32 v4, v4, v8
        s_add_u32 s43, s55, {K4 + 120}
        v_lshl_add_u32 v89, v4, 3, s43
        s_add_u32 s43, s55, {K8 + 60}
        v_lshl_add_u32 v4, v4, 2, s43
        s_lshl_b32 s43, s51, 2
        s_add_u32 s43, s43, {CFL}
        v_mov_b32 v88, s43
        v_add_u32 v5, {BND}, v3""".split("\n")
        if self.o("t3at", 32) == 32: fill.insert(12, self.T3)
        late = []
        for j in range(4): late += [f"v_lshrrev_b32 v{M32+j}, 7, v{M32+j}", f"v_and_b32 v{M32+j}, 0x10001, v{M32+j}", f"v_mul_u32_u24 v{M32+j}, s59, v{M32+j}"]
        def F(n):
            for _ in range(n):
                if fill: a(fill.pop(0))
        rd = lambda s: a(f"ds_read_b128 {vr(128+8*s,4)}, v78 offset:{32*ROW+32*(s^KX)}\nds_read_b128 {vr(132+8*s,4)}, v78 offset:{32*(s^KX)}")
        PRE = 6; KSB = self.o("ksb", 6) if self.o("ks", 0) else -1
        KX = 8 if self.o("kb", 99) < 32 else 0
        if KX:
            nrd = self.o("kbn", 6); have = nrd
            rd(nrd); rd(nrd + 1); nrd += 2
            a("s_waitcnt lgkmcnt(8)")
        else:
            for s in range(PRE): rd(s)
            nrd = PRE; have = 0
            F(self.o("f0", 6))
        for s in range(16):
            if s == KSB:
                a("s_barrier\ns_setprio 2")
                self.stamp(11)
                while nrd < min(16, s + 7): rd(nrd); nrd += 1
            if s >= have: a(f"s_waitcnt lgkmcnt({2*(nrd - s - 1)})")
            elif KX: F(1)
            a(f"v_mfma_f32_32x32x16_bf16 {vr(D,16)}, {vr(128+8*s,4)}, {vr(132+8*s,4)}, {'0' if s == 0 else vr(D,16)}")
            if nrd < (8 if s < KSB else 16): rd(nrd); nrd += 1
            F(1)
        self.stamp(5)
        a("ds_write_b128 v83, v[84:87]")
        F(99)
        x = lambda k: D + k
        W = lambda dl: 128 + 4 * dl
        cv = lambda d, lo, hi: a(f"v_cvt_pk_bf16_f32 v{d}, v{lo}, v{hi}")
        sel = [f"v_add_f32 v{x(0)}, v{x(0)}, v71", f"v_bitop3_b32 v{x(1)}, v79, v{x(0)}, v{x(1)} bitop3:0xca", f"v_bitop3_b32 v{x(3)}, v79, v{x(4)}, v{x(3)} bitop3:0xca",
               f"v_bitop3_b32 v{x(5)}, v79, v{x(4)}, v{x(5)} bitop3:0xca", f"v_bitop3_b32 v{x(7)}, v79, v{x(8)}, v{x(7)} bitop3:0xca",
               f"v_bitop3_b32 v{x(9)}, v80, v{x(8)}, v{x(9)} bitop3:0xca", f"v_bitop3_b32 v{x(10)}, v82, v{x(8)}, v{x(10)} bitop3:0xca"]
        for t in sel[:5]: a(t)
        for dl in range(4):
            for k in range(4): cv(W(dl) + k, x(7 + dl - 2 * k), x(6 + dl - 2 * k))
            a(f"ds_write_b128 v81, {vr(W(dl),4)} offset:{((4-dl)%4)*KS}")
            if dl == 0: a(sel[5] + "\n" + sel[6])
            if dl == 1: a(f"v_readlane_b32 s42, v{W(0)+2}, 0\nv_readlane_b32 s43, v{W(0)+3}, 0\nv_readlane_b32 s58, v{W(0)}, 63")
            if dl == 2: a("s_pack_lh_b32_b16 s42, s58, s42\nv_mov_b32 v71, s42\nv_perm_b32 v71, v71, s43, v72")
        a(f"""ds_write_b16 v73, v71
        v_cvt_pk_bf16_f32 v72, v{D+13}, v{D+12}
        v_cvt_pk_bf16_f32 v74, v{D+15}, v{D+14}
        ds_write_b32 v77, v72
        v_readlane_b32 s59, v72, 63
        ds_write_b32 v75, v74
        s_and_b32 s59, s59, 0xffff""")
        self.stamp(12)
        if self.o("t3at", 32) == 33: a(self.T3)
        ops = []; first = set()
        def mm(g, A, B):
            if isinstance(g, tuple): ops.append(("m", g[0], A, B, True)); return
            c0 = g not in first; first.add(g)
            ops.append(("m", ACC(g), A, B, c0))
        R = lambda r: ("R", r)
        DF = self.o("df", 7)
        for ip in range(8):
            mains = [(R(V2(ip - d, b)), ("T2", d, b)) for d in (4, 3, 2) if ip - d >= 0 for b in (0, 1)]
            mains = [(R(V3(ip - d)), ("T3", d)) for d in range(4, 8) if ip - d >= 0] + mains
            for j in range(7, -1, -1):
                u = ("U", 8 * ip - j)
                mm(ip, ("K", 0, j), u)
                if ip < 7 and ip + 1 < DF: mm(ip + 1, ("K", 1, j), u)
                if ip >= DF: mm(ip, ("K", 1, j), ("U", 8 * ip - 8 - j, 1))
                if j > 0:
                    for _ in range(-(-len(mains) // j)): mm(ip, *mains.pop(0))
                if j == 6 and 1 <= ip <= 6: ops.append(("cvt", ip - 1))
                if j == self.o("y6", 6) and ip == 7: ops += [("y", 6), ("flag", 6)]
            u = ("U", 8 * ip); us = ("US", 8 * ip)
            if ip <= 5:
                mm((VF,), u, R(P1)); mm((VF + 4,), u, R(P2)); mm(ip + 2, ("K16",), u)
                mm((VF + 8,), u, R(P3))
                ops.append(("y", ip))
                if self.o("yu", 0): ops.append(("flag", ip))
                if ip <= 3: mm((VF + 16,), u, R(B1)); mm(ip + 4, R(M32), u)
                if not self.o("yu", 0): ops.append(("flag", ip))
                mm((VF + 12,), us, R(P2))
                if ip <= 3: mm((VF + 20,), us, R(B2))
        ops += [("y", 7), ("flag", 7)]
        assert sum(o[0] == "m" for o in ops) == 202
        need = []; seen = set(); last = {}
        for k, o in enumerate(ops):
            if o[0] == "m":
                for xx in (o[2], o[3]):
                    last[xx] = k
                    if xx[0] != "R" and xx not in seen:
                        seen.add(xx)
                        if xx[0] in ("U", "US"): need.append((xx, k, 1))
                        else: need += [(xx, k, 0), (xx, k, 1)]
        if self.o("t3at", 32) >= 100: a("v_mov_b32 v90, v76")
        reg = {}; free = list(URING); q = [None] * 3
        def issue(x, hf):
            if x[0] in ("U", "US"):
                r = free.pop(0)
                off = 16 * (28 + 4 * x[1]) - (16 if x[0] == "US" else 0)
                a(f"ds_read_b128 {vr(r,4)}, v11 offset:{off}")
            elif x[0] in ("K", "K16"):
                r = KR(x[1], x[2]) if x[0] == "K" else K16
                mu = x[2] + 8 * x[1] if x[0] == "K" else 16
                a(f"ds_read_b64 {vr(r+2*hf,2)}, v10 offset:{64*(16-mu)+8*hf}")
            elif x[0] == "B":
                r = x[1]
                a(f"ds_read_b128 {vr(r,4)}, v5 offset:{1024*x[2]}")
            elif x[0] == "T2":
                r = T2(x[1], x[2])
                a(f"ds_read_b64 {vr(r+2*hf,2)}, v89 offset:{128*(4-x[1])+16*x[2]+8*hf}")
            else:
                r = T3[x[1]]; o = 16 * (7 - x[1]) + 2 * hf
                a(f"ds_read2_b32 {vr(r+2*hf,2)}, v4 offset0:{o} offset1:{o+1}")
            if hf: reg[x] = r
            q.append(x if hf else None)
        pre = [n for n in need if n[0][0] == "K"][:self.o("kpre", 32)]
        M32E = self.o("m32e", 1)
        if M32E:
            late = ["s_movk_i32 s43, 0x3000", "v_lshlrev_b32 v6, v8, s43", f"v_lshlrev_b32 v{M32}, 3, v9", f"v_bfe_u32 v6, v6, v{M32}, 8", "v_lshl_or_b32 v6, v6, 15, v6"]
            for j in range(4): late += [f"v_lshrrev_b32 v{M32+j}, {2*j}, v6", f"v_and_b32 v{M32+j}, 0x10001, v{M32+j}", f"v_mul_u32_u24 v{M32+j}, s59, v{M32+j}"]
        for i, n in enumerate(pre):
            issue(n[0], n[2]); need.remove(n)
            if M32E and late and i >= 12: a(late.pop(0))
        if M32E:
            while late: a(late.pop(0))
        bl = [(("B", r, i), 6, 1) for i, r in enumerate(() if M32E else (M32,))] + [(("B", r, i + 1), 15, 1) for i, r in enumerate((P1, P2, P3, B1, B2))]
        for b in bl:
            p = min(i for i, n in enumerate(need) if n[1] > b[1]); need.insert(p, b)
        if len(q) > 8:
            q = q[-6:]; a("s_waitcnt lgkmcnt(6)")
        a(f"s_barrier\ns_setprio {self.o('pm', 1)}")
        self.stamp(7)
        def wait_for(keys):
            nonlocal q
            pos = max([k for k, o in enumerate(q) if o in keys], default=-1)
            if pos >= 0:
                a(f"s_waitcnt lgkmcnt({min(15, len(q)-1-pos)})"); q = q[pos + 1:]
        AHEAD = self.o("ahead", 16); WG = self.o("wgrp", 4); URG = self.o("urg", 9)
        side = []; t3done = False
        from asmlib import Ins
        def emit(t):
            a(t)
            if "ds_" in t: q.append(None)
        for k, o in enumerate(ops):
            if o[0] == "y":
                r = ACC(o[1])
                side = [f"ds_write_b128 v7, {vr(r,4)} offset:{YOFF+YT*o[1]}"] + side
                continue
            if o[0] == "flag":
                t = f"ds_write_b32 v88, v88 offset:{16*o[1]}\n" + (self.fs((o[1]+1)//2, "barstamp") if o[1] in (1, 3, 5) else "") + (self.fs((1, 2, 3, 4, 5, 6, 11, 12)[o[1]], "st2"))
                p = max([i for i, z in enumerate(side) if "ds_write_b128" in z], default=-1)
                side.insert(p + 1, t)
                continue
            if o[0] == "cvt":
                tau = o[1]
                for r in range(4):
                    side += [f"v_cvt_pk_bf16_f32 v{V2(tau,0)+2*r}, v{VF+12+r}, v{VF+8+r}", f"v_cvt_pk_bf16_f32 v{V2(tau,0)+2*r+1}, v{VF+4+r}, v{VF+r}"]
                if tau <= 3: side += [f"v_cvt_pk_bf16_f32 v{V3(tau)+r}, v{VF+20+r}, v{VF+16+r}" for r in range(4)]
                continue
            if 0 <= self.o("t3at", 32) - 100 <= k and not t3done:
                a(self.T3.replace("v76", "v90")); t3done = True
            if k == 8 and not M32E:
                wait_for([bl[0][0]]); side += late
            if k == 16:
                assert all(b[0] in reg for b in bl); wait_for([b[0] for b in bl])
            regs = {("v", o[1] + i) for i in range(4)} | {("v", z[1] + i) for z in (o[2], o[3]) if z[0] == "R" for i in range(4)}
            hit = max([i for i, t in enumerate(side) if (lambda I: (I.dst | I.src) & regs)(Ins(t.split(chr(10))[0]))], default=-1)
            for t in side[:hit + 1]: emit(t)
            side = side[hit + 1:]
            n = 0
            def ok():
                if not need or len(q) >= 15: return False
                z = need[0][0]
                if z[0] in ("U", "US"): return bool(free)
                if z[0] == "T3": return last.get(("R", T3[z[1]]), -1) < k
                return True
            while ok() and need[0][1] <= k + AHEAD and (k == 0 and n < 9 or n < 1 or (need[0][1] <= k + URG and n < 2) or need[0][1] <= k):
                xx = need.pop(0); issue(xx[0], xx[2]); n += 1
            assert all(z[0] == "R" or z in reg for z in (o[2], o[3])), (k, o)
            if any(z in q for z in (o[2], o[3])):
                keys = []
                for oo in ops[k:k + (WG if k > 0 else 1)]:
                    if oo[0] == "m": keys += [oo[2], oo[3]]
                wait_for(keys); n += 1
            if side and (n < 2 or self.o("yu", 0) and "ds_write" in side[0]): emit(side.pop(0))
            if side and self.o("yu", 0) == 2 and "ds_write_b32" in side[0]: emit(side.pop(0))
            RR = lambda z: vr(z[1] if z[0] == "R" else reg[z], 4)
            a(f"v_mfma_f32_16x16x32_bf16 {vr(o[1],4)}, {RR(o[2])}, {RR(o[3])}, {'0' if o[4] else vr(o[1],4)}")
            for z in (o[2], o[3]):
                if z[0] in ("U", "US") and last[z] == k: free.append(reg[z])
        for t in side: a(t)
        self.stamp(8)
        self.fixup()

    def fixup(self):
        a = self.a
        PF = ("sc1", "sc0 sc1", "sc1 nt", "sc0 sc1 nt")[self.o("pf", 0)]
        WB = f"s_lshl_b32 s42, s{S_SLOT}, 3\ns_add_u32 s42, s42, s{S_W}\ns_cmp_lg_u32 s42, 1\ns_cbranch_scc1 L_nowb\nbuffer_wbl2 sc1\ns_waitcnt vmcnt(0)\nL_nowb:" if self.o("wb", 0) == 1 else ""
        a(f"""
        {WB}
        s_cmp_lg_u32 s{S_W}, 0
        s_cbranch_scc1 L_mw_end
        s_mul_i32 s42, s50, {PSTR}
        s_add_u32 s42, s42, {PARTS + 4096}
        v_add_u32 v18, s42, v3
        v_add_u32 v20, 4096, v18
        v_and_b32 v21, 0x70, v3
        s_add_u32 s42, s42, {72*128 - 4096}
        v_add_u32 v21, s42, v21
        s_mov_b32 s61, {SPIN}
        v_lshl_add_u32 v24, v9, 1, s54
        v_mov_b32 v35, s{S_T8}
        {"s_barrier" if self.o("pollafter", 1) else ""}
        {"s_sleep %d" % self.o("pdelay", 0) if self.o("pdelay", 0) else ""}
L_part_poll:
        global_load_dwordx4 v[164:167], v21, s[36:37] {PF}
        """)
        for k in range(9):
            a(f"global_load_dwordx4 {vr(128+4*k,4)}, v{18 if k < 8 else 20}, s[36:37] offset:{1024*k-4096 if k < 8 else 0} {PF}")
        a(f"""v_mul_u32_u24 v26, {UCH}, v9
        v_add_u32 v26, {UBASE+UPAD}, v26
        v_mul_u32_u24 v27, {TCH}, v9
        v_mov_b32 v25, {YT}
        s_waitcnt vmcnt(9)
        v_bfe_u32 v28, v164, 8, 11
        v_lshl_add_u32 v29, v28, 1, v26
        v_lshrrev_b32 v30, 8, v28
        v_mad_u32_u24 v27, v30, v25, v27
        v_bfe_u32 v30, v28, 2, 2
        v_mul_u32_u24 v30, 320, v30
        v_and_b32 v33, 0xf0, v28
        v_add3_u32 v27, v27, v30, v33
        v_and_b32 v33, 3, v28
        v_lshl_add_u32 v30, v33, 2, v27
        ds_read_b128 v[36:39], v88 offset:112
        ds_read_u16_d16_hi v31, v29
        ds_read_b32 v32, v30 offset:{YOFF}
        v_mul_u32_u24 v28, 1152, v28
        v_add_u32 v28, v28, v24
        v_xor_b32 v22, v35, v164
        s_waitcnt vmcnt(8)
        v_xor_b32 v128, v35, v128
        v_or_b32 v22, v22, v128
        """)
        for k in range(1, 9):
            a(f"""s_waitcnt vmcnt({8-k})
            v_xor_b32 v{128+4*k}, v35, v{128+4*k}
            v_pk_add_f32 v[130:131], v[130:131], {vr(130+4*k,2)}
            v_pk_add_f32 v[128:129], v[128:129], {vr(128+4*k,2)}""")
            if k % 2 == 0: a(f"v_bitop3_b32 v22, v22, v{124+4*k}, v{128+4*k} bitop3:0xfe")
        a(f"""
        s_waitcnt lgkmcnt(0)
        v_bitop3_b32 v36, v37, v38, v39 bitop3:0x7f
        v_and_b32 v36, {CFL & 0xf0}, v36
        v_or_b32 v22, v22, v36
        v_and_b32 v22, 0xff, v22
        v_cmp_ne_u32 vcc, 0, v22
        v_permlane32_swap_b32 v128, v130
        s_sub_u32 s61, s61, 1
        s_cselect_b64 vcc, 0, vcc
        s_cbranch_vccnz L_part_poll
        """)
        if not self.o("cf", 0): self.stamp(9)
        a(f"""
        v_permlane32_swap_b32 v129, v131
        v_add_f32 v128, v128, v130
        v_add_f32 v129, v129, v131
        v_and_b32 v31, 0xffff0000, v31
        v_fma_f32 v34, v31, v167, v166
        v_permlane16_swap_b32 v128, v129
        v_add_f32 v128, v128, v129
        v_mul_f32 v31, {f2u(32.0)}, v31
        v_mul_f32 v32, {f2u(1/32)}, v32
        v_add_f32_dpp v128, v128, v128 row_ror:8 row_mask:0xf bank_mask:0xf
        v_fma_f32 v128, v128, v165, v31
        v_mul_f32 v33, {f2u(-LOG2E)}, v128
        v_exp_f32 v33, v33
        v_mul_f32 v128, v128, v32
        v_add_f32 v33, 1.0, v33
        v_rcp_f32 v33, v33
        v_fmac_f32 v34, v128, v33
        v_cvt_pk_bf16_f32 v34, v34, v34
        {"" if self.o("pollafter", 1) == 1 and self.o("fl", 0) not in (2, 3, 4) else "s_barrier"}
        global_store_short v28, v34, s[32:33]
        """)
        if not self.o("cf", 0): self.stamp(10)
        a("L_mw_end:")
        self.dump()
        a("s_endpgm")

    def helper(self):
        a = self.a
        ST = 224
        FL = self.o("fl", 0)
        FLS = f"""s_mul_i32 s4, s{S_XCD}, 18
        s_and_b32 s5, s50, 0xf0
        s_max_u32 s6, s4, s5
        s_add_u32 s4, s4, 18
        s_add_u32 s5, s5, 16
        s_min_u32 s4, s4, s5
        s_sub_u32 s4, s4, s6
        s_sub_u32 s5, s50, s6
        v_cvt_f32_u32 v8, s4
        v_rcp_f32 v8, v8
        v_cvt_f32_u32 v9, v62
        v_add_f32 v9, 0.5, v9
        v_mul_f32 v8, v8, v9
        v_cvt_u32_f32 v8, v8
        v_mul_u32_u24 v8, s4, v8
        v_sub_u32 v8, v62, v8
        v_cmp_eq_u32 s[6:7], s5, v8
        v_mov_b32 v68, v36""" if FL else ""
        a("L_helper:")
        if self.o("tile_at", 32) == 33: a(self.tile_first)
        a("s_waitcnt lgkmcnt(0)\ns_barrier")
        self.stamp(11)
        a(f"s_setprio {self.o('phs', 0)}")
        if self.o("tdelay", 0): a(f"s_sleep {self.o('tdelay', 0)}")
        if self.o("tile_at", 32) == 32: a(self.tile_first)
        a(f"""v_and_b32 v62, 255, v0
        v_lshlrev_b32 v4, 4, v62
        v_add_u32 v4, {STATS + 4096}, v4
        v_add_u32 v7, 8192, v4""")
        SL_ = self.o("statlate", 1)
        t1at, t2at = self.o("t1at", 40), self.o("t2at", 41)
        if not SL_ and not self.o("stmid", 1):
            for t in self.stat_ld: a(t)
        T4 = self.o("t4", 0)
        PG = self.o("prog", 0)
        if T4 and not PG: a(f"s_cmp_eq_u32 s47, 2\ns_cbranch_scc0 L_ct4\nv_add_u32 v76, {352*9216}, v76\nglobal_load_dword v1, v76, s[56:57]\nL_ct4:")
        if t1at == 40: a(self.T1)
        if self.o("n2", 2) == 0: t2at = 99
        else:
            a(f"v_mov_b32 v38, v63\ns_xor_b32 s42, s51, {3 if self.o('t2hi', 0) else 0}\ns_mul_i32 s42, s42, {18*64}\ns_lshl_b32 s43, s{S_SLOT}, 6\ns_add_u32 s42, s42, s43\ns_add_u32 s42, s42, {64*self.wd['t2']}\ns_mov_b32 s58, 2")
            self.touch_setup()
            a("v_mov_b32 v63, v38")
        for k in range(4):
            a(f"s_bfe_u32 s43, s{S_TT}, {(2<<16) | (2*k)}\ns_mul_i32 s43, s43, 0x20004000\ns_and_b32 s43, s43, 0x40004000\nv_mov_b32 v{56+k}, s43")
        a(f"""v_and_b32 v88, 3, v0
        v_mul_u32_u24 v5, {UCH}, v88
        v_lshl_add_u32 v5, v63, 4, v5
        v_add_u32 v5, {UBASE+UPAD}, v5
        v_mov_b32 v63, 0x40004000
        s_lshr_b32 s43, s51, 1
        s_lshl_b32 s43, s43, 4
        s_add_u32 s43, s43, {CFL}
        v_lshl_add_u32 v88, v88, 2, s43
        s_mov_b32 s61, {SPIN}
        v_lshlrev_b32 v37, 2, v62
        v_add_u32 v64, {UBASE+UPAD}, v37
        v_add_u32 v65, {UBASE+UPAD+UCH}, v37
        v_add_u32 v66, {UBASE+UPAD+2*UCH}, v37
        v_add_u32 v67, {UBASE+UPAD+3*UCH}, v37
        v_bfe_u32 v37, v0, 1, 2
        v_mul_u32_u24 v37, 320, v37
        v_and_b32 v39, 0x78, v0
        v_lshl_add_u32 v37, v39, 1, v37
        v_and_b32 v39, 1, v0
        v_lshl_add_u32 v37, v39, 3, v37
        s_lshr_b32 s43, s51, 1
        s_mul_i32 s43, s43, {YT}
        s_add_u32 s43, s43, {YOFF}
        v_add_u32 v37, s43, v37
        v_add_u32 v39, {2*TCH}, v37
        v_mul_u32_u24 v36, 2304, v62
        v_add_u32 v36, s54, v36
        {FLS}
        v_mov_b32 v8, {f2u(-32*LOG2E)}
        v_mov_b32 v9, 0xffff0000
        v_lshlrev_b32 v62, 6, v62
        v_xor_b32 v62, s{S_T16}, v62
        v_and_b32 v10, 15, v0
        v_lshrrev_b32 v11, 1, v0
        v_and_b32 v11, 24, v11
        s_lshl_b32 s42, s51, 4
        s_mov_b32 s58, {(3 << 12) | ((7 << 11) << 16)}
        s_mov_b32 s59, {(0x1f << 6) | ((7 << 3) << 16)}
        s_lshr_b64 s[58:59], s[58:59], s42
        s_and_b32 s58, s58, 0xffff
        s_lshr_b32 s59, {(0x7f << 5) | ((0x1ff << 4) << 16)}, s42
        s_and_b32 s59, s59, 0xffff
        s_lshl_b32 s42, s51, 10
        s_add_u32 s42, s42, {BND}
        v_add_u32 v12, s42, v3
        """)
        for h in range(2):
            a(f"v_lshlrev_b32 v13, v10, s{58+h}\nv_bfe_u32 v13, v13, v11, 8\nv_lshl_or_b32 v13, v13, 15, v13")
            for j in range(4): a(f"v_and_b32 v{16+4*h+j}, {0x10001 << (2*j)}, v13\nv_mul_u32_u24 v{16+4*h+j}, {0x3f80 >> (2*j)}, v{16+4*h+j}")
            a(f"ds_write_b128 v12, {vr(16+4*h,4)} offset:{4096*h}")
        if self.o("d16", 0):
            for r in range(16, 32, 2): a(f"v_mov_b64 {vr(r,2)}, 0")
        if PG:
            seq = ("TS0123", "T0S123", "0TS123", "T01S23", "0S1T23", "S0T123", "0T1S23", "0T123S", "T0123S")[PG - 1]
            n = 0
            a("s_setprio 3")
            for ch in seq:
                if ch == "T":
                    a(f"s_cmp_eq_u32 s47, 2\ns_cbranch_scc0 L_ct4\nv_add_u32 v76, {352*9216}, v76\nglobal_load_dword v1, v76, s[56:57]\ns_branch L_ct5\nL_ct4:\nglobal_load_dword v1, v3, s[24:25]\nL_ct5:".replace("v1, v3, s[24:25]", "v1, v11, s[24:25]")); n += 1
                elif ch == "S":
                    for t in self.stat_ld: a(t)
                    n += 4
                else:
                    k = int(ch)
                    a(f"s_waitcnt vmcnt({3 - k + n})")
                    if k == 3: self.stamp(12)
                    if k == 0: a(self.fs(10, "q0"))
                    for r in range(4): a(f"v_xor_b32 v{40+4*k+r}, v{56+r}, v{40+4*k+r}")
                    a(f"ds_write_b128 v5, {vr(40+4*k,4)} offset:{1024*k}")
            self.t_last = seq.index("T") > seq.index("S")
            a("s_branch L_tile_or\nL_tile_chk:")
            for k in range(4):
                for r in range(4): a(f"v_xor_b32 v{40+4*k+r}, v{56+r}, v{40+4*k+r}")
                a(f"ds_write_b128 v5, {vr(40+4*k,4)} offset:{1024*k}")
            a("L_tile_or:")
        else:
            if not SL_ and self.o("stmid", 1):
                assert t1at != 40
                if t2at == 40:
                    assert self.o("n2", 2) == 2 and not T4
                    a(self.T2)
                for t in self.stat_ld: a(t)
            nb = 0 if SL_ else 4
            if t1at == 40 and t2at == 40: a(f"s_waitcnt vmcnt({nb+1})")
            elif t1at == 40: a(f"s_waitcnt vmcnt({nb+1})\ns_cmp_eq_u32 s47, 3\ns_cbranch_scc1 L_tw\ns_waitcnt vmcnt({nb})\nL_tw:")
            elif T4 or t2at == 40: a(f"s_waitcnt vmcnt({nb+1})\ns_cmp_eq_u32 s47, 2\ns_cbranch_scc1 L_tw\ns_waitcnt vmcnt({nb})\nL_tw:")
            else: a(f"s_waitcnt vmcnt({nb})")
            self.stamp(12)
            a(f"s_setprio 3\nL_tile_chk:")
            for k in range(4):
                for r in range(4): a(f"v_xor_b32 v{40+4*k+r}, v{56+r}, v{40+4*k+r}")
                a(f"ds_write_b128 v5, {vr(40+4*k,4)} offset:{1024*k}")
        a("v_bitop3_b32 v38, v40, v41, v42 bitop3:0xfe")
        for r in range(43, 55, 2): a(f"v_bitop3_b32 v38, v38, v{r}, v{r+1} bitop3:0xfe")
        a(f"""v_bitop3_b32 v38, v38, v55, v63 bitop3:0xa8
        v_cmp_ne_u32 vcc, 0, v38
        s_cbranch_vccz L_tile_ok
        {chr(10).join(self.tile_ld)}
        s_waitcnt vmcnt(0)
        s_sub_u32 s61, s61, 1
        s_cbranch_scc0 L_tile_chk
L_tile_ok:""")
        self.stamp(6)
        if self.o("ntile", 0): a(f"s_sub_u32 s72, {SPIN+1}, s61")
        def statchk():
            a(f"s_waitcnt vmcnt({1 if PG and self.t_last else 0})\nL_h_poll:\nv_mov_b32 v38, 0")
            for k in range(8):
                a(f"v_xor_b32 v13, {(0x7ff ^ (512*(k>>1)) ^ (k&1)) << 5}, v{ST+1+2*k}\nv_bitop3_b32 v38, v38, v13, v62 bitop3:0xf6")
            a(f"""v_and_b32 v38, 0xffff, v38
            v_cmp_ne_u32 vcc, 0, v38
            s_cbranch_vccz L_h_ok
            {chr(10).join(self.stat_ld)}
            s_waitcnt vmcnt(0)
            s_sub_u32 s61, s61, 16
            s_cbranch_scc0 L_h_poll
L_h_ok:""")
        a(f"s_mov_b32 s61, {SPIN*16}")
        if SL_:
            for t in self.stat_ld: a(t)
        else:
            if t1at == 40: a("s_waitcnt vmcnt(1)\ns_cmp_eq_u32 s47, 3\ns_cbranch_scc1 L_h_poll")
            if T4 and not self.o("stmid", 1) and not self.o("stchk", 0): a("s_waitcnt vmcnt(1)\ns_cmp_eq_u32 s47, 2\ns_cbranch_scc1 L_h_poll")
            if not self.o("stchk", 0): statchk()
            if self.o("ntile", 0): a(f"s_sub_u32 s74, {SPIN*16+64}, s61")
        a(f"s_setprio {self.o('pur', 3)}\ns_waitcnt lgkmcnt(0)\ns_barrier")
        self.stamp(7)
        B = lambda s: 96 + 32 * s
        D16 = self.o("d16", 0); HP = self.o("hpre", 2); ASY = self.o("asy", 15)
        rdu = lambda s: "\n".join(f"ds_read_u16_d16_hi v{16+8*(s&1)+4*t+c}, v64 offset:{c*UCH+1024*s+2*t}" for t in range(2) for c in range(4))
        if D16: a(rdu(0))
        for sp in range(2):
            for c in range(4):
                if not D16: a(f"ds_read2st64_b32 {vr(16+8*sp+2*c,2)}, v{64+c} offset0:{8*sp} offset1:{8*sp+4}")
        RU = lambda s, c: 16 + 8 * (s >> 1) + 2 * c + (s & 1)
        a(f"s_setprio {self.o('ph0', 0)}")
        if t2at == 41 and 0: a(self.T2.replace("L_ct2:", "s_waitcnt vmcnt(1)\ns_branch L_h_poll\nL_ct2:") if SL_ else self.T2)
        if SL_: statchk()
        a("s_waitcnt lgkmcnt(4)")
        def pre(s, t):
            u, g, p = B(s) + 4 * t, B(s) + 8 + 4 * t, B(s) + 24 + 2 * t
            st = ST + 4 * s + 2 * t
            if D16:
                u = 16 + 8 * (s & 1) + 4 * t
                if (s, t) == (0, 1) or (s > 0 and t == 0): a("s_waitcnt lgkmcnt(0)")
            else:
                for c in range(4): a(f"v_lshlrev_b32 v{u+c}, 16, v{RU(s,c)}" if t == 0 else f"v_and_b32 v{u+c}, v9, v{RU(s,c)}")
            for c in range(4): a(f"v_mul_f32 v{g+c}, v8, v{u+c}")
            for c in range(4): a(f"v_exp_f32 v{g+c}, v{g+c}")
            if not (self.o("stchk", 0) and 2 * s + t < HP): a(f"v_and_b32 v{p+1}, v9, v{st}")
            for c in range(4): a(f"v_add_f32 v{g+c}, 1.0, v{g+c}")
            for c in range(4): a(f"v_rcp_f32 v{g+c}, v{g+c}")
            if not (self.o("stchk", 0) and 2 * s + t < HP): a(f"v_lshlrev_b32 v{p}, 16, v{st}")
        def aread(s):
            a(f"s_setprio {self.o('psp', 2)}\nds_read_b32 v41, v88 offset:{32*s}")
            for c in range(4): a(f"ds_read_b64 {vr(44+2*c,2)}, v{(37, 39)[c>>1]} offset:{(c&1)*TCH + 2*YT*s}")
            a(f"s_setprio {self.o('php', 0)}")
        def waitflag(s):
            lab = f"L_w{s}"
            SLP = self.o("hs3", 1) if s == 3 else self.o("hs", 2)
            CMB = s == 3 and self.o("cmb3", 1) or s < 3 and self.o("cmb", 0)
            if (ASY >> s) & 1: a(f"s_waitcnt lgkmcnt(0)\nv_cmp_eq_u32 vcc, 0, v41\ns_cbranch_vccz {lab}_go")
            rdy = "\n".join(f"ds_read_b64 {vr(44+2*c,2)}, v{(37, 39)[c>>1]} offset:{(c&1)*TCH + 2*YT*s}" for c in range(4))
            a(f"""s_setprio {self.o("psp", 2)}
{lab}:
            ds_read_b32 v41, v88 offset:{32*s}
            {rdy if CMB else ""}
            s_waitcnt lgkmcnt(0)
            v_cmp_eq_u32 vcc, 0, v41
            s_cbranch_vccz {lab}_ok
            {"s_sleep %d" % SLP if SLP else ""}
            s_sub_u32 s61, s61, 1
            s_cbranch_scc0 {lab}
{lab}_ok:""")
            if CMB:
                if s < 3: a(f"s_setprio {self.o('phf', 0)}")
            else: a(rdy + ("\n" + rdu(s + 1) if D16 and s < 3 else "") + f"\ns_setprio {self.o('phf', 0)}\ns_waitcnt lgkmcnt({8 if D16 else 0})")
            a(f"{lab}_go:")
        def fin(s, t):
            u, g, y, p = B(s) + 4 * t, B(s) + 8 + 4 * t, B(s) + 16 + 4 * t, B(s) + 24 + 2 * t
            for c in range(4): a(f"v_fma_f32 v{y+c}, v{44+2*c+t}, v{g+c}, v{p+1}")
            for c in range(4): a(f"v_fma_f32 v{u+c}, v{16+8*(s&1)+4*t+c if D16 else u+c}, v{y+c}, v{p}")
            a(f"v_cvt_pk_bf16_f32 v{g}, v{u}, v{u+1}\nv_cvt_pk_bf16_f32 v{g+1}, v{u+2}, v{u+3}")
        def st(s, t):
            ins = f"global_store_dwordx2 v36, {vr(B(s)+8+4*t,2)}, s[32:33] offset:{1152*t}"
            XF = ("", "sc1", "sc0 sc1", "nt", "sc1 nt")[self.o("xf", 0)]
            if XF and s < self.o("xfn", 4): a(f"s_cmp_ge_u32 s{S_SLOT}, 16\ns_cbranch_scc1 L_x{s}{t}\n{ins}\ns_branch L_y{s}{t}\nL_x{s}{t}:\n{ins} {XF}\nL_y{s}{t}:")
            else: a(ins)
            if t == 1 and s < 3: a(f"v_add_u32 v36, {512*1152}, v36")
        def flush(s):
            a("s_mov_b64 exec, s[6:7]")
            for t in range(2): a(f"global_store_dwordx2 v68, {vr(B(s)+8+4*t,2)}, s[32:33] offset:{1152*t} sc1")
            a(f"v_add_u32 v68, {512*1152}, v68\ns_mov_b64 exec, -1")
        todo = [(s, t) for s in range(4) for t in range(2)]
        assert not SL_
        if t2at == 41 and not self.o("stchk", 0): a(self.T2)
        for _ in range(self.o("hpre", 2)): pre(*todo.pop(0))
        if self.o("stchk", 0):
            assert HP <= 4
            if ASY & 1: aread(0)
            statchk()
            if t2at == 41: a(self.T2)
            for k in range(HP): a(f"v_and_b32 v{B(k>>1)+25+2*(k&1)}, v9, v{ST+2*k}\nv_lshlrev_b32 v{B(k>>1)+24+2*(k&1)}, 16, v{ST+2*k}")
        for s in range(4):
            if s < 3: a(self.fs(s + 1, "barstamp"))
            if s > 0 and self.o("sts", 0): a(self.fs((0, 1, 3, 5)[s], "sts") + "\ns_waitcnt vmcnt(0)\n" + self.fs((0, 2, 4, 6)[s], "sts"))
            if self.o("st2", 0): a(self.fs((1, 3, 5, 10)[s], "st2"))
            waitflag(s)
            if self.o("st2", 0): a(self.fs((2, 4, 6, 11)[s], "st2"))
            if self.o("sts", 0) and s in (0, 1, 3): a(self.fs((10, 11, 0, 12)[s], "sts"))
            fin(s, 0); st(s, 0)
            if todo and todo[0] == (s, 1): pre(*todo.pop(0))
            fin(s, 1)
            if self.o("b2b", 0): st(s, 1)
            if s < 3 and self.o('phf', 0) != self.o('php', 0): a(f"s_setprio {self.o('php', 0)}")
            if todo: pre(*todo.pop(0))
            if not self.o("b2b", 0): st(s, 1)
            if s < 3 and (ASY >> (s + 1)) & 1: aread(s + 1)
            if todo and not self.o("lazy", 0): pre(*todo.pop(0))
            if s in (1, 2) and FL in (1, 2, 3): flush(s - 1)
            if s == 2 and FL == 5: flush(0); flush(1)
        self.stamp(8)
        if self.o("pollafter", 1) == 2: a(f"s_waitcnt vmcnt({self.o('pav', 63)})\ns_barrier")
        a("s_waitcnt vmcnt(0)")
        if not self.o("cf", 0): self.stamp(9)
        a("s_barrier")
        if FL in (2, 3, 4):
            for s in {2: (2,), 3: (2, 3), 4: (0, 1, 2, 3)}[FL]: flush(s)
            a("s_waitcnt vmcnt(0)\ns_barrier")
        if self.o("wb", 0) == 2: a(f"s_lshl_b32 s42, s{S_SLOT}, 3\ns_add_u32 s42, s42, s{S_W}\ns_cmp_lg_u32 s42, 4\ns_cbranch_scc1 L_nowb\nbuffer_wbl2 sc1\ns_waitcnt vmcnt(0)\nL_nowb:")
        self.dump()
        a("s_endpgm")

    def build(self):
        if self.o("prepad", 0): self.a(".text\n.p2align 8\n.fill %d, 4, 0xbf810000" % (64 * self.o("prepad", 0)))
        self.prologue(); self.spare_pre(); self.ffn_pre(); self.conv_pre()
        self.ln_copy(True); self.conv()
        self.ln_copy(False); self.ffn()
        self.a("L_end:\ns_endpgm\n; never executed: keeps the instruction prefetch inside lines that were pulled into L2\n.fill %d, 4, 0xbf810000\nL_last:" % self.o("tailpad", 96))
        return HEADER + f"""; @launch grid=(256,1,1) block=(512,1,1) lds={LDSZ}
.amdgcn_target "amdgcn-amd-amdhsa--gfx950"
""" + self.post(self.a.text(self.o("verbose", 0))) + """.section .rodata,"a"
.p2align 6
""" + descriptor(KN, 256, 102)

if __name__ == "__main__":
    opt = {}
    for s in sys.argv[2:]:
        k, v = s.split("="); opt[k] = int(v)
    open(sys.argv[1], "w").write(G8(**opt).build())
GEN = G8
```

```python
import sys, re
from parts import *
import gen_v6 as V
from gen_v6 import *

KS = 1216; K8 = 4 * KS; K4 = K8 + 320
BND = LNS
YT = 1280
YOFF = 9472

class G8(V.G):
    def __init__(self, stamps=False, **opt):
        for k, v in dict(early=0, n2t=5, thr2=3, nw=1, eh=3, kpre=24, t1at=3, tile_at=32, p1=5, px=1, stg=0, t3at=102, tile64=0, statlate=0, wdo=2, gm=1, ot=1, b2b=1, t4=1, stchk=1, sp2n=7, n2=0, pp=1, pollafter=2, prog=9, m32e=2).items(): opt.setdefault(k, v)
        super().__init__(stamps, **opt)
    def conv_pre(self):
        a = self.a
        T4 = self.o("t4", 0) or self.o("xo", 0)
        GM = f"s_mul_i32 s50, s{S_XCD}, 18\ns_add_u32 s50, s50, s{S_SLOT}"
        if self.o("gm", 0): GM = f"s_lshl_b32 s50, s{S_XCD}, 4\ns_lshl_b32 s42, s{S_XCD}, 1\ns_add_u32 s42, s42, 112\ns_cmp_ge_u32 s{S_SLOT}, 16\ns_cselect_b32 s50, s42, s50\ns_add_u32 s50, s50, s{S_SLOT}"
        HK = f"s_and_b32 s54, s{S_SLOT}, 15\ns_lshl_b32 s54, s54, 3\ns_mul_i32 s43, s{S_XCD}, {self.o('hk', 0)}\ns_add_u32 s54, s54, s43" if self.o("hk", 0) else ""
        E0 = "s_cmp_lg_u32 s47, 2\ns_cbranch_scc1 L_cp2\nglobal_load_dword v1, v76, s[56:57]\nL_cp2:"
        a(f"""
L_conv_pre:
        {GM}
        s_lshl_b32 s53, s50, 2
        s_add_u32 s53, s53, s51            ; channel
        s_lshl_b32 s42, s53, 8
        s_lshl_b32 s43, s52, 7
        s_add_u32 s42, s42, s43
        v_add_u32 v60, s42, v4
        s_lshl_b32 s54, s50, 3
        {HK}
        s_lshl_b32 s42, s53, 1
        v_mov_b32 v61, s42
        v_mov_b64 v[64:65], 0
        v_mov_b64 v[66:67], 0
        v_mov_b64 v[68:69], 0
        v_mov_b64 v[70:71], 0
        s_barrier
        global_load_short_d16_hi v70, v61, s[18:19]
        global_load_short_d16_hi v64, v60, s[6:7]
        global_load_short_d16_hi v65, v60, s[8:9]
        global_load_short_d16_hi v66, v60, s[10:11]
        global_load_short_d16_hi v67, v60, s[12:13]
        global_load_short_d16_hi v68, v60, s[14:15]
        global_load_short_d16_hi v69, v60, s[16:17]
        global_load_short_d16_hi v71, v61, s[20:21]
        global_load_ushort v1, v61, s[20:21]
        s_lshr_b32 s42, s51, 1
        s_mul_i32 s42, s42, {3168 if self.o('ft', 0) == 2 else 2112 if self.o('ord2', 1) else 1472}
        s_and_b32 s58, s51, 1
        s_mul_i32 s43, {"s51" if T4 else "s58"}, {18*64}
        s_add_u32 s43, s43, {64*self.wd['mf']}
        s_lshr_b32 s47, s{S_W}, 1
        s_cmp_eq_u32 s47, 0
        s_cmovk_i32 s42, 3168
        {"s_cmp_eq_u32 s52, 0" if T4 else "s_cmp_eq_u32 s47, 1"}
        s_cselect_b32 s42, s43, s42
        s_cmovk_i32 s58, 2
        s_lshl_b32 s43, s{S_SLOT}, 6
        s_add_u32 s42, s42, s43
        """)
        if self.o("xo", 0): a(f"s_lshr_b32 s43, s{S_SLOT}, 1\ns_lshl_b32 s43, s43, 6\ns_add_u32 s43, s43, 3264\ns_and_b32 s59, s{S_SLOT}, 1\ns_cmp_eq_u32 s{S_W}, 3\ns_cselect_b32 s42, s43, s42\ns_cselect_b32 s58, s59, s58")
        self.touch_setup()
        a(f"""
        {"" if self.o("late0", 1) else E0}
        s_mul_i32 s55, s51, {TCH}
        s_lshl_b32 s42, s52, 8
        s_add_u32 m0, s55, s42
        s_mul_i32 s63, s51, {UCH}
        s_add_u32 s63, s63, {UBASE}
        v_mov_b64 v[84:85], 0
        v_mov_b64 v[86:87], 0
        s_cmp_eq_u32 s52, 0
        s_cbranch_scc1 L_cp_m
        ; helpers: zero pad of u and the flag words
        s_setprio {self.o("pt", 1)}
        v_min_u32 v83, 29, v2
        v_lshl_add_u32 v83, v83, 4, s63
        ds_write_b128 v83, v[84:87]
        v_and_b32 v88, 0x70, v3
        v_add_u32 v88, {CFL}, v88
        ds_write_b128 v88, v[84:87]
        s_branch L_cp_e
L_cp_m:
        v_and_b32 v8, 15, v0
        v_bfe_u32 v9, v0, 4, 2
        v_and_b32 v10, 31, v0
        v_and_b32 v11, 32, v0
        v_mul_u32_u24 v78, {ROW}, v10
        v_lshrrev_b32 v11, 1, v11
        v_add3_u32 v78, v78, v11, s55
        v_lshl_add_u32 v10, v10, 5, v11
        s_add_u32 s42, s55, 1072
        v_sub_u32 v81, s42, v10
        v_lshrrev_b32 v77, 2, v10
        s_add_u32 s42, s55, {K4 + 380}
        v_sub_u32 v77, s42, v77
        v_bfe_i32 v79, v0, 4, 1
        v_sub_u32 v80, 495, v10
        v_ashrrev_i32 v80, 31, v80
        v_sub_u32 v82, 1007, v10
        v_ashrrev_i32 v82, 31, v82
        v_bfe_u32 v10, v0, 3, 2            ; copy s
        v_and_b32 v11, 7, v0               ; k
        v_mul_u32_u24 v73, {KS}, v10
        v_and_b32 v83, 4, v0
        v_lshl_add_u32 v83, v83, 4, v11
        v_lshl_add_u32 v83, v83, 4, v73
        v_lshlrev_b32 v72, 4, v10
        v_add_u32 v72, {K8 + 256}, v72
        v_sub_u32 v74, 5, v11
        v_ashrrev_i32 v74, 31, v74
        v_bfi_b32 v83, v74, v72, v83
        v_and_b32 v72, 8, v0
        v_mad_u32_u24 v72, v72, 3, v11
        v_lshlrev_b32 v72, 4, v72
        v_add_u32 v72, {K4}, v72
        v_bfe_i32 v74, v0, 5, 1
        v_bfi_b32 v83, v74, v72, v83
        v_add_u32 v83, s55, v83
        v_sub_u32 v74, 4, v11
        v_ashrrev_i32 v74, 31, v74
        v_add_u32 v72, 507, v11
        v_min_u32 v75, 2, v11
        v_bfi_b32 v74, v74, v72, v75
        v_sub_u32 v74, v74, v10
        v_lshl_add_u32 v73, v74, 1, v73
        v_min_u32 v74, 1, v10
        v_lshl_add_u32 v73, v74, 3, v73
        s_add_u32 s42, s55, 58
        v_add_u32 v73, s42, v73
        v_max_u32 v72, 4, v11
        v_mul_u32_u24 v72, 0x202, v72
        v_add_u32 v72, {0x0504 + 0x0808 - 4*0x202}, v72
        v_and_b32 v72, 0x707, v72
L_cp_e:
        """)

    def spare_pre(self):
        n0 = len(self.a.l); V.G.spare_pre(self)
        if self.o("late0", 1):
            k = self.a.l.index("    s_barrier", n0)
            del self.a.l[k:]; self.a("s_mov_b32 s49, 0\ns_branch L_lnp")
    def ffn_pre(self):
        n0 = len(self.a.l); V.G.ffn_pre(self)
        if self.o("late0", 1):
            k = self.a.l.index("    s_barrier", n0)
            del self.a.l[k:k + 1 + 4 * self.R1]
            self.a.l.insert(k, "    s_mov_b32 s49, s42")

    def setup(self):
        a = self.a
        a(f"""
        v_mul_f32 v70, {f2u(LOG2E)}, v70
        v_exp_f32 v70, v70
        v_mov_b32 v34, 0x3f80
        ds_write_addtid_b32 v34
        v_cvt_pk_bf16_f32 v70, v70, v70
        v_and_b32 v70, 0xffff0000, v70
        v_mul_f32 v64, v70, v64
        v_mul_f32 v65, v70, v65
        v_mul_f32 v70, {f2u(1024.0)}, v70
        v_mul_f32 v64, {f2u(LOG2E)}, v64
        v_mul_f32 v65, {f2u(INV2PI)}, v65
        v_mul_f32 v66, v70, v66
        v_mul_f32 v67, v70, v67
        """)
        E = ((22, 1.0, True), (24, 16.0, False), (26, 512.0, True))
        for k, (d, e, cj) in enumerate(E):
            if k: a(f"v_mul_f32 v{12+k}, {f2u(e)}, v64\nv_mul_f32 v{16+k}, {f2u(e)}, v65")
        for k, (d, e, cj) in enumerate(E): a(f"v_exp_f32 v{12+k}, v{12+k if k else 64}\nv_fract_f32 v{16+k}, v{16+k if k else 65}")
        a("""v_pk_mul_f32 v[20:21], v[68:69], v[66:67] op_sel:[0,0] op_sel_hi:[0,1] neg_hi:[0,1]
        v_pk_fma_f32 v[90:91], v[68:69], v[66:67], v[20:21] op_sel:[1,1,0] op_sel_hi:[1,0,1] neg_lo:[0,1,0] neg_hi:[0,1,0]""")
        for k, (d, e, cj) in enumerate(E): a(f"v_cos_f32 v{d}, v{16+k}\nv_sin_f32 v{d+1}, v{16+k}")
        a(f"v_cvt_pk_bf16_f32 v35, v90, v91\nds_write_addtid_b32 v35 offset:{32*ROW}")
        for k, (d, e, cj) in enumerate(E):
            a(f"v_mul_f32 v{d}, v{12+k}, v{d}\nv_mul_f32 v{d+1}, {'-' if cj else ''}v{12+k}, v{d+1}")
        a(f"v_cvt_pk_bf16_f32 v36, v24, v25\nds_write_addtid_b32 v36 offset:{ROW}")

    def ln_copy(self, conv):
        n0 = len(self.a.l)
        V.G.ln(self)
        blk = self.a.l[n0:]; del self.a.l[n0:]
        txt = "\n".join(blk)
        cut = txt.index(f"    s_cmp_lt_u32 s{S_SLOT}, 18\n    s_cbranch_scc1 L_conv")
        head, tail = txt[:cut], txt[cut:]
        if not conv:
            head = re.sub(r"    s_waitcnt vmcnt\((8|9)\)\n    s_cmp_eq_u32 s47, \d\n    s_cbranch_scc1 L_ln\n", "", head)
            tail = tail.split("\n", 2)[2]
            if self.o("late0", 1):
                i0 = head.index(f"    s_waitcnt vmcnt({self.R1})"); i1 = head.index("L_ln:")
                r1 = "".join(f"s_add_u32 m0, s49, {4096*i}\ns_nop 0\nglobal_load_lds_dwordx4 v76, s[56:57]\nv_add_u32 v76, {32*9216}, v76\n" for i in range(self.R1))
                if self.o("r1h", 0):
                    k = r1.rindex("s_add_u32 m0")
                    r1 = r1[:k] + f"s_cmp_eq_u32 s52, 0\ns_cbranch_scc1 L_lw3\ns_waitcnt vmcnt({self.R1-1})\ns_branch L_ln\nL_lw3:\n" + r1[k:]
                head = head[:i0] + ("s_waitcnt vmcnt(0)\n" if self.o("late0", 1) >= 2 else "") + f"""s_cmp_lt_u32 s{S_SLOT}, 27
                s_cbranch_scc1 L_lw2
                s_cmp_lt_u32 s{S_W}, 2
                s_cbranch_scc0 L_lw1
                global_load_dword v1, v76, s[56:57]
                s_waitcnt vmcnt(1)
                s_branch L_ln
L_lw1:
                s_waitcnt vmcnt(0)
                s_branch L_ln
L_lw2:
                {r1}
                s_waitcnt vmcnt({self.R1})
""" + head[i1:]
            self.a(head + tail)
            return
        head = re.sub(r"L_ln", "L_cln", head)
        i0 = head.index("    s_waitcnt vmcnt(9)"); i1 = head.index("L_cln:")
        if self.o("late0", 1) == 2:
            head = head[:i0] + "    s_waitcnt vmcnt(9)\n    s_cmp_eq_u32 s47, 2\n    s_cbranch_scc0 L_cln\n    global_load_dword v1, v76, s[56:57]\n" + head[i1:]
        elif self.o("late0", 1) == 3:
            head = head[:i0] + "    s_waitcnt vmcnt(9)\n" + head[i1:]
        elif self.o("late0", 1):
            head = head[:i0] + "    s_cmp_eq_u32 s47, 2\n    s_cbranch_scc0 L_clw\n    global_load_dword v1, v76, s[56:57]\n    s_waitcnt vmcnt(10)\n    s_branch L_cln\nL_clw:\n    s_waitcnt vmcnt(9)\n" + head[i1:]
        else: head = head[:i0] + "    s_waitcnt vmcnt(10)\n    s_cmp_eq_u32 s47, 2\n    s_cbranch_scc1 L_cln\n    s_waitcnt vmcnt(9)\n" + head[i1:]
        j = head.rindex("    s_waitcnt lgkmcnt(0)\n    s_barrier")
        if not self.o("esetup", 0):
            self.a(head)
            return
        self.a(head[:j])
        self.a("s_cmp_eq_u32 s52, 0\ns_cbranch_scc0 L_cs1\ns_waitcnt vmcnt(1)" if self.o("early", 0) else "s_cmp_eq_u32 s52, 0\ns_cbranch_scc0 L_cs1\ns_waitcnt vmcnt(0)")
        self.setup()
        self.a("L_cs1:")
        self.a(head[j:].replace("L_cln_st:\n    s_waitcnt lgkmcnt(0)", "L_cln_st:\n    s_waitcnt vmcnt(1) lgkmcnt(0)"))

    def conv(self):
        a = self.a
        ST = 224
        T64 = self.o("tile64", 1)
        def touch(cond, lab, pre=""):
            return f"{cond}\ns_cbranch_scc0 {lab}\n{pre}\nglobal_load_dword v1, v76, s[56:57]\n{lab}:"
        T2 = touch(f"s_cmp_ge_u32 s51, {4 - self.o('n2', 2)}" if self.o("t2hi", 0) else f"s_cmp_lt_u32 s51, {self.o('n2', 2)}", "L_ct2", "")
        T1 = touch("s_cmp_eq_u32 s47, 3", "L_ct1")
        self.T3 = touch(f"s_cmp_lt_u32 s{S_W}, {self.o('n3', 2)}", "L_ct3")
        self.T1, self.T2 = T1, T2
        t1at, t2at, t3at, TA = self.o("t1at", 40), self.o("t2at", 41), self.o("t3at", 32), self.o("tile_at", 32)
        if self.o("esetup", 0): a("s_cmp_eq_u32 s52, 0\ns_cbranch_scc1 L_cs2")
        else: a("s_waitcnt vmcnt(2)")
        if self.o("pdrop", 99) == 0: a("s_setprio 0")
        if t1at == 0: a(T1)
        self.setup()
        self.tile_ld = [f"global_load_dwordx4 {vr(40+4*k,4)}, v6, s[{12+2*k}:{13+2*k}] sc1" for k in range(4)]
        self.stat_ld = [f"global_load_dwordx4 {vr(ST+4*k,4)}, v{(4, 7)[k>>1]}, s[36:37] offset:{-4096 if k%2==0 else 0} sc1" for k in range(4)]
        tadr = (["s_lshl_b32 s42, s50, 14"] if T64 else ["s_lshr_b32 s42, s50, 1", "s_lshl_b32 s42, s42, 15", "s_and_b32 s43, s50, 1", "s_lshl_b32 s43, s43, 6", "s_add_u32 s42, s42, s43"])
        tadr += [f"s_add_u32 s42, s42, {TILE}", "s_add_u32 s12, s36, s42", "s_addc_u32 s13, s37, 0"]
        for k in range(1, 4): tadr += [f"s_add_u32 s{12+2*k}, s12, {(4096 if T64 else 8192)*k}", f"s_addc_u32 s{13+2*k}, s13, 0"]
        tadr += ["v_bfe_u32 v63, v0, 2, 6", "v_and_b32 v6, 0x30, v3", f"v_lshl_add_u32 v6, v63, {6 if T64 else 7}, v6"]
        self.tile_first = "\n".join(tadr + self.tile_ld)
        a("L_cs2:")
        a(self.fs(10, "cf"))
        H = lambda e: 90 + 2 * e
        pos = {**{e: [e] for e in range(4)}, **{e: [e + 4] for e in range(4, 8)}, 8: [4, 16], 9: [5, 17], 10: [6, 18], 11: [7],
               **{e: [e] for e in range(12, 16)}, 16: [20], 17: [21], 18: [22]}
        gops = [(H(e), H(e - 1), 22, pos[e]) for e in range(1, 19)]
        gops += [(H(e), H(e), 26, r) for e, r in zip((4, 8, 12, 16), ([24], [25], [28], [29]))]
        gops += [(H(8), H(8), 26, [26]), (H(16), H(16), 26, [27]), (H(8), H(8), 26, [30]), (H(16), H(16), 26, [31])]
        dup = []
        for i in range(2, 32):
            t = 34 + (i & 1) * 2
            if 14 <= i < 14 + self.o("skiprows", 0): continue
            cmul(a, 28, 24 if i == 2 else 28, 24, 30)
            a(f"v_cvt_pk_bf16_f32 v{t}, v28, v29\nds_write_addtid_b32 v{t} offset:{i*ROW}")
            if i - 2 < len(gops):
                d, s, z, rows = gops[i - 2]
                cmul(a, d, s, z, 32)
                tg = t + 1 if len(rows) == 1 else 12 + len(dup)
                a(f"v_cvt_pk_bf16_f32 v{tg}, v{d}, v{d+1}\nds_write_addtid_b32 v{tg} offset:{(32+rows[0])*ROW}")
                if len(rows) > 1: dup.append(f"ds_write_addtid_b32 v{tg} offset:{(32+rows[1])*ROW}")
            if i == 31:
                for t in dup: a(t)
            if i == TA: a(f"s_cmp_eq_u32 s52, 0\ns_cbranch_scc1 L_hp0\n{self.tile_first}\nL_hp0:")
            if i == self.o("kb", 99):
                a("s_cmp_eq_u32 s52, 0\ns_cbranch_scc0 L_kb\ns_barrier")
                self.stamp(11)
                for s in range(self.o("kbn", 6)): a(f"ds_read_b128 {vr(128+8*s,4)}, v78 offset:{32*ROW+32*(s^8)}\nds_read_b128 {vr(132+8*s,4)}, v78 offset:{32*(s^8)}")
                a("L_kb:")
            if i == 16: a(self.fs(9, "cf"))
            if i == self.o("pdrop", 99): a("s_setprio 0")
            if i == t1at: a(T1)
            if self.o("xo", 0) == i: a(touch(f"s_cmp_eq_u32 s{S_W}, 3", "L_ctx"))
            if i == t2at: a(T2)
            if i == t3at: a(self.T3)
        self.stamp(4)
        a("s_cmp_eq_u32 s52, 0\ns_cbranch_scc0 L_helper")
        if self.o("kb", 99) < 32: a("s_setprio 2")
        elif not self.o("ks", 0):
            a("s_setprio 2\ns_barrier")
            self.stamp(11)
        self.mfma_waves()
        self.helper()

    def mfma_waves(self):
        a = self.a
        KR = lambda i, j: 192 + 32 * i + 4 * j
        K16, M32, B1, B2, P1, P2, P3 = 12, 16, 20, 24, 28, 32, 36
        T3 = {4: 40, 5: M32, 6: B1, 7: B2}
        T2 = lambda d, b: 168 + 8 * (d - 2) + 4 * b
        V3 = lambda tau: 92 + 4 * tau
        V2 = lambda tau, b: 136 + 8 * (tau & 3) + 4 * b
        ACC = lambda g: 44 + 4 * (g % 6)
        VF = 108
        URING = [68, 72, 76, 80, 84, 132]
        D = 48
        fill = f"""v_add_u32 v74, -1, v2
        v_and_b32 v71, v71, v74
        v_mul_f32 v71, {f2u(1024.0)}, v71
        v_and_b32 v10, 3, v8
        v_add_u32 v5, 1, v10
        v_mul_u32_u24 v10, {KS - 2}, v10
        v_lshl_add_u32 v11, v8, 1, v9
        v_mul_u32_u24 v4, 17, v9
        v_sub_u32 v4, v4, v11
        v_and_b32 v5, 4, v5
        s_add_u32 s43, s55, {32 + 3*KS}
        v_lshl_add_u32 v10, v5, 1, v10
        v_sub_u32 v10, v4, v10
        v_add_u32 v10, s43, v10
        v_lshl_add_u32 v11, v11, 4, s63
        s_add_u32 s43, s55, {K8 + 252}
        v_lshrrev_b32 v75, 2, v3
        v_sub_u32 v75, s43, v75
        v_lshl_add_u32 v7, v9, 6, v3
        v_add_u32 v7, s55, v7
        v_lshlrev_b32 v4, 2, v9
        v_sub_u32 v4, v4, v8
        s_add_u32 s43, s55, {K4 + 120}
        v_lshl_add_u32 v89, v4, 3, s43
        s_add_u32 s43, s55, {K8 + 60}
        v_lshl_add_u32 v4, v4, 2, s43
        s_lshl_b32 s43, s51, 2
        s_add_u32 s43, s43, {CFL}
        v_mov_b32 v88, s43
        v_add_u32 v5, {BND}, v3""".split("\n")
        if self.o("t3at", 32) == 32: fill.insert(12, self.T3)
        if self.o("m32e", 1) == 2:
            fill += ["s_movk_i32 s43, 0x3000", "v_lshlrev_b32 v6, v8, s43", f"v_lshlrev_b32 v{M32}, 3, v9", f"v_bfe_u32 v6, v6, v{M32}, 8", "v_lshl_or_b32 v6, v6, 15, v6"]
            for j in range(4): fill += [f"v_lshrrev_b32 v{M32+j}, {2*j}, v6", f"v_and_b32 v{M32+j}, 0x10001, v{M32+j}"]
        late = []
        for j in range(4): late += [f"v_lshrrev_b32 v{M32+j}, 7, v{M32+j}", f"v_and_b32 v{M32+j}, 0x10001, v{M32+j}", f"v_mul_u32_u24 v{M32+j}, s59, v{M32+j}"]
        def F(n):
            for _ in range(n):
                if fill: a(fill.pop(0))
        rd = lambda s: a(f"ds_read_b128 {vr(128+8*s,4)}, v78 offset:{32*ROW+32*(s^KX)}\nds_read_b128 {vr(132+8*s,4)}, v78 offset:{32*(s^KX)}")
        PRE = 6; KSB = self.o("ksb", 6) if self.o("ks", 0) else -1
        KX = 8 if self.o("kb", 99) < 32 else 0
        if KX:
            nrd = self.o("kbn", 6); have = nrd
            rd(nrd); rd(nrd + 1); nrd += 2
            a("s_waitcnt lgkmcnt(8)")
        else:
            for s in range(PRE): rd(s)
            nrd = PRE; have = 0
            F(self.o("f0", 6))
        for s in range(16):
            if s == KSB:
                a("s_barrier\ns_setprio 2")
                self.stamp(11)
                while nrd < min(16, s + 7): rd(nrd); nrd += 1
            if s >= have: a(f"s_waitcnt lgkmcnt({2*(nrd - s - 1)})")
            elif KX: F(1)
            a(f"v_mfma_f32_32x32x16_bf16 {vr(D,16)}, {vr(128+8*s,4)}, {vr(132+8*s,4)}, {'0' if s == 0 else vr(D,16)}")
            if nrd < (8 if s < KSB else 16): rd(nrd); nrd += 1
            elif self.o("m32e", 1) == 2: F(2)
            F(1)
        self.stamp(5)
        a("ds_write_b128 v83, v[84:87]")
        F(99)
        x = lambda k: D + k
        W = lambda dl: 128 + 4 * dl
        cv = lambda d, lo, hi: a(f"v_cvt_pk_bf16_f32 v{d}, v{lo}, v{hi}")
        sel = [f"v_add_f32 v{x(0)}, v{x(0)}, v71", f"v_bitop3_b32 v{x(1)}, v79, v{x(0)}, v{x(1)} bitop3:0xca", f"v_bitop3_b32 v{x(3)}, v79, v{x(4)}, v{x(3)} bitop3:0xca",
               f"v_bitop3_b32 v{x(5)}, v79, v{x(4)}, v{x(5)} bitop3:0xca", f"v_bitop3_b32 v{x(7)}, v79, v{x(8)}, v{x(7)} bitop3:0xca",
               f"v_bitop3_b32 v{x(9)}, v80, v{x(8)}, v{x(9)} bitop3:0xca", f"v_bitop3_b32 v{x(10)}, v82, v{x(8)}, v{x(10)} bitop3:0xca"]
        for t in sel[:5]: a(t)
        for dl in range(4):
            for k in range(4): cv(W(dl) + k, x(7 + dl - 2 * k), x(6 + dl - 2 * k))
            a(f"ds_write_b128 v81, {vr(W(dl),4)} offset:{((4-dl)%4)*KS}")
            if dl == 0: a(sel[5] + "\n" + sel[6])
            if dl == 1: a(f"v_readlane_b32 s42, v{W(0)+2}, 0\nv_readlane_b32 s43, v{W(0)+3}, 0\nv_readlane_b32 s58, v{W(0)}, 63")
            if dl == 2 and self.o("m32e", 1) != 2: a("s_pack_lh_b32_b16 s42, s58, s42\nv_mov_b32 v71, s42\nv_perm_b32 v71, v71, s43, v72")
        self.ktail = f"""ds_write_b16 v73, v71
        v_cvt_pk_bf16_f32 v72, v{D+13}, v{D+12}
        v_cvt_pk_bf16_f32 v74, v{D+15}, v{D+14}
        ds_write_b32 v77, v72
        v_readlane_b32 s59, v72, 63
        ds_write_b32 v75, v74
        s_and_b32 s59, s59, 0xffff""".split("\n")
        if self.o("m32e", 1) == 2: self.ktail = ["s_pack_lh_b32_b16 s42, s58, s42", "v_mov_b32 v71, s42", "v_perm_b32 v71, v71, s43, v72"] + self.ktail
        else:
            for t in self.ktail: a(t)
        self.stamp(12)
        if self.o("t3at", 32) == 33: a(self.T3)
        ops = []; first = set()
        def mm(g, A, B):
            if isinstance(g, tuple): ops.append(("m", g[0], A, B, True)); return
            c0 = g not in first; first.add(g)
            ops.append(("m", ACC(g), A, B, c0))
        R = lambda r: ("R", r)
        DF = self.o("df", 7)
        for ip in range(8):
            mains = [(R(V2(ip - d, b)), ("T2", d, b)) for d in (4, 3, 2) if ip - d >= 0 for b in (0, 1)]
            mains = [(R(V3(ip - d)), ("T3", d)) for d in range(4, 8) if ip - d >= 0] + mains
            for j in range(7, -1, -1):
                u = ("U", 8 * ip - j)
                mm(ip, ("K", 0, j), u)
                if ip < 7 and ip + 1 < DF: mm(ip + 1, ("K", 1, j), u)
                if ip >= DF: mm(ip, ("K", 1, j), ("U", 8 * ip - 8 - j, 1))
                if j > 0:
                    for _ in range(-(-len(mains) // j)): mm(ip, *mains.pop(0))
                if j == 6 and 1 <= ip <= 6: ops.append(("cvt", ip - 1))
                if j == self.o("y6", 6) and ip == 7: ops += [("y", 6), ("flag", 6)]
            u = ("U", 8 * ip); us = ("US", 8 * ip)
            if ip <= 5:
                mm((VF,), u, R(P1)); mm((VF + 4,), u, R(P2)); mm(ip + 2, ("K16",), u)
                mm((VF + 8,), u, R(P3))
                ops.append(("y", ip))
                if self.o("yu", 0): ops.append(("flag", ip))
                if ip <= 3: mm((VF + 16,), u, R(B1)); mm(ip + 4, R(M32), u)
                if not self.o("yu", 0): ops.append(("flag", ip))
                mm((VF + 12,), us, R(P2))
                if ip <= 3: mm((VF + 20,), us, R(B2))
        ops += [("y", 7), ("flag", 7)]
        assert sum(o[0] == "m" for o in ops) == 202
        need = []; seen = set(); last = {}
        for k, o in enumerate(ops):
            if o[0] == "m":
                for xx in (o[2], o[3]):
                    last[xx] = k
                    if xx[0] != "R" and xx not in seen:
                        seen.add(xx)
                        if xx[0] in ("U", "US"): need.append((xx, k, 1))
                        else: need += [(xx, k, 0), (xx, k, 1)]
        if self.o("t3at", 32) >= 100: a("v_mov_b32 v90, v76")
        reg = {}; free = list(URING); q = [None] * 3
        def issue(x, hf):
            if x[0] in ("U", "US"):
                r = free.pop(0)
                off = 16 * (28 + 4 * x[1]) - (16 if x[0] == "US" else 0)
                a(f"ds_read_b128 {vr(r,4)}, v11 offset:{off}")
            elif x[0] in ("K", "K16"):
                r = KR(x[1], x[2]) if x[0] == "K" else K16
                mu = x[2] + 8 * x[1] if x[0] == "K" else 16
                a(f"ds_read_b64 {vr(r+2*hf,2)}, v10 offset:{64*(16-mu)+8*hf}")
            elif x[0] == "B":
                r = x[1]
                a(f"ds_read_b128 {vr(r,4)}, v5 offset:{1024*x[2]}")
            elif x[0] == "T2":
                r = T2(x[1], x[2])
                a(f"ds_read_b64 {vr(r+2*hf,2)}, v89 offset:{128*(4-x[1])+16*x[2]+8*hf}")
            else:
                r = T3[x[1]]; o = 16 * (7 - x[1]) + 2 * hf
                a(f"ds_read2_b32 {vr(r+2*hf,2)}, v4 offset0:{o} offset1:{o+1}")
            if hf: reg[x] = r
            q.append(x if hf else None)
        pre = [n for n in need if n[0][0] == "K"][:self.o("kpre", 32)]
        M32E = self.o("m32e", 1)
        if M32E:
            late = ["s_movk_i32 s43, 0x3000", "v_lshlrev_b32 v6, v8, s43", f"v_lshlrev_b32 v{M32}, 3, v9", f"v_bfe_u32 v6, v6, v{M32}, 8", "v_lshl_or_b32 v6, v6, 15, v6"]
            for j in range(4): late += [f"v_lshrrev_b32 v{M32+j}, {2*j}, v6", f"v_and_b32 v{M32+j}, 0x10001, v{M32+j}", f"v_mul_u32_u24 v{M32+j}, s59, v{M32+j}"]
        if M32E == 2: late = self.ktail + [f"v_mul_u32_u24 v{M32+j}, s59, v{M32+j}" for j in range(4)]
        for i, n in enumerate(pre):
            if n[0] == ("K", 0, 0): assert not any("ds_write_b16" in t for t in late)
            issue(n[0], n[2]); need.remove(n)
            if M32E and late and i >= (12 if M32E == 1 else 0):
                t = late.pop(0); a(t)
                if "ds_" in t: q.append(None)
        if M32E:
            while late:
                t = late.pop(0); a(t)
                if "ds_" in t: q.append(None)
        bl = [(("B", r, i), 6, 1) for i, r in enumerate(() if M32E else (M32,))] + [(("B", r, i + 1), 15, 1) for i, r in enumerate((P1, P2, P3, B1, B2))]
        for b in bl:
            p = min(i for i, n in enumerate(need) if n[1] > b[1]); need.insert(p, b)
        if len(q) > 8:
            q = q[-6:]; a("s_waitcnt lgkmcnt(6)")
        a(f"s_barrier\ns_setprio {self.o('pm', 1)}")
        self.stamp(7)
        def wait_for(keys):
            nonlocal q
            pos = max([k for k, o in enumerate(q) if o in keys], default=-1)
            if pos >= 0:
                a(f"s_waitcnt lgkmcnt({min(15, len(q)-1-pos)})"); q = q[pos + 1:]
        AHEAD = self.o("ahead", 16); WG = self.o("wgrp", 4); URG = self.o("urg", 9)
        side = []; t3done = False
        from asmlib import Ins
        def emit(t):
            a(t)
            if "ds_" in t: q.append(None)
        for k, o in enumerate(ops):
            if o[0] == "y":
                r = ACC(o[1])
                side = [f"ds_write_b128 v7, {vr(r,4)} offset:{YOFF+YT*o[1]}"] + side
                continue
            if o[0] == "flag":
                t = f"ds_write_b32 v88, v88 offset:{16*o[1]}\n" + (self.fs((o[1]+1)//2, "barstamp") if o[1] in (1, 3, 5) else "") + (self.fs((1, 2, 3, 4, 5, 6, 11, 12)[o[1]], "st2"))
                p = max([i for i, z in enumerate(side) if "ds_write_b128" in z], default=-1)
                side.insert(p + 1, t)
                continue
            if o[0] == "cvt":
                tau = o[1]
                for r in range(4):
                    side += [f"v_cvt_pk_bf16_f32 v{V2(tau,0)+2*r}, v{VF+12+r}, v{VF+8+r}", f"v_cvt_pk_bf16_f32 v{V2(tau,0)+2*r+1}, v{VF+4+r}, v{VF+r}"]
                if tau <= 3: side += [f"v_cvt_pk_bf16_f32 v{V3(tau)+r}, v{VF+20+r}, v{VF+16+r}" for r in range(4)]
                continue
            if 0 <= self.o("t3at", 32) - 100 <= k and not t3done:
                a(self.T3.replace("v76", "v90")); t3done = True
            if k == 8 and not M32E:
                wait_for([bl[0][0]]); side += late
            if k == 16:
                assert all(b[0] in reg for b in bl); wait_for([b[0] for b in bl])
            regs = {("v", o[1] + i) for i in range(4)} | {("v", z[1] + i) for z in (o[2], o[3]) if z[0] == "R" for i in range(4)}
            hit = max([i for i, t in enumerate(side) if (lambda I: (I.dst | I.src) & regs)(Ins(t.split(chr(10))[0]))], default=-1)
            for t in side[:hit + 1]: emit(t)
            side = side[hit + 1:]
            n = 0
            def ok():
                if not need or len(q) >= 15: return False
                z = need[0][0]
                if z[0] in ("U", "US"): return bool(free)
                if z[0] == "T3": return last.get(("R", T3[z[1]]), -1) < k
                return True
            while ok() and need[0][1] <= k + AHEAD and (k == 0 and n < 9 or n < 1 or (need[0][1] <= k + URG and n < 2) or need[0][1] <= k):
                xx = need.pop(0); issue(xx[0], xx[2]); n += 1
            assert all(z[0] == "R" or z in reg for z in (o[2], o[3])), (k, o)
            if any(z in q for z in (o[2], o[3])):
                keys = []
                for oo in ops[k:k + (WG if k > 0 else 1)]:
                    if oo[0] == "m": keys += [oo[2], oo[3]]
                wait_for(keys); n += 1
            if side and (n < 2 or self.o("yu", 0) and "ds_write" in side[0]): emit(side.pop(0))
            if side and self.o("yu", 0) == 2 and "ds_write_b32" in side[0]: emit(side.pop(0))
            RR = lambda z: vr(z[1] if z[0] == "R" else reg[z], 4)
            a(f"v_mfma_f32_16x16x32_bf16 {vr(o[1],4)}, {RR(o[2])}, {RR(o[3])}, {'0' if o[4] else vr(o[1],4)}")
            for z in (o[2], o[3]):
                if z[0] in ("U", "US") and last[z] == k: free.append(reg[z])
        for t in side: a(t)
        self.stamp(8)
        self.fixup()

    def fixup(self):
        a = self.a
        PF = ("sc1", "sc0 sc1", "sc1 nt", "sc0 sc1 nt")[self.o("pf", 0)]
        WB = f"s_lshl_b32 s42, s{S_SLOT}, 3\ns_add_u32 s42, s42, s{S_W}\ns_cmp_lg_u32 s42, 1\ns_cbranch_scc1 L_nowb\nbuffer_wbl2 sc1\ns_waitcnt vmcnt(0)\nL_nowb:" if self.o("wb", 0) == 1 else ""
        a(f"""
        {WB}
        s_cmp_lg_u32 s{S_W}, 0
        s_cbranch_scc1 L_mw_end
        s_mul_i32 s42, s50, {PSTR}
        s_add_u32 s42, s42, {PARTS + 4096}
        v_add_u32 v18, s42, v3
        v_add_u32 v20, 4096, v18
        v_and_b32 v21, 0x70, v3
        s_add_u32 s42, s42, {72*128 - 4096}
        v_add_u32 v21, s42, v21
        s_mov_b32 s61, {SPIN}
        v_lshl_add_u32 v24, v9, 1, s54
        v_mov_b32 v35, s{S_T8}
        {"s_barrier" if self.o("pollafter", 1) else ""}
        {"s_sleep %d" % self.o("pdelay", 0) if self.o("pdelay", 0) else ""}
L_part_poll:
        global_load_dwordx4 v[164:167], v21, s[36:37] {PF}
        """)
        for k in range(9):
            a(f"global_load_dwordx4 {vr(128+4*k,4)}, v{18 if k < 8 else 20}, s[36:37] offset:{1024*k-4096 if k < 8 else 0} {PF}")
        a(f"""v_mul_u32_u24 v26, {UCH}, v9
        v_add_u32 v26, {UBASE+UPAD}, v26
        v_mul_u32_u24 v27, {TCH}, v9
        v_mov_b32 v25, {YT}
        s_waitcnt vmcnt(9)
        v_bfe_u32 v28, v164, 8, 11
        v_lshl_add_u32 v29, v28, 1, v26
        v_lshrrev_b32 v30, 8, v28
        v_mad_u32_u24 v27, v30, v25, v27
        v_bfe_u32 v30, v28, 2, 2
        v_mul_u32_u24 v30, 320, v30
        v_and_b32 v33, 0xf0, v28
        v_add3_u32 v27, v27, v30, v33
        v_and_b32 v33, 3, v28
        v_lshl_add_u32 v30, v33, 2, v27
        ds_read_b128 v[36:39], v88 offset:112
        ds_read_u16_d16_hi v31, v29
        ds_read_b32 v32, v30 offset:{YOFF}
        v_mul_u32_u24 v28, 1152, v28
        v_add_u32 v28, v28, v24
        v_xor_b32 v22, v35, v164
        s_waitcnt vmcnt(8)
        v_xor_b32 v128, v35, v128
        v_or_b32 v22, v22, v128
        """)
        for k in range(1, 9):
            a(f"""s_waitcnt vmcnt({8-k})
            v_xor_b32 v{128+4*k}, v35, v{128+4*k}
            v_pk_add_f32 v[130:131], v[130:131], {vr(130+4*k,2)}
            v_pk_add_f32 v[128:129], v[128:129], {vr(128+4*k,2)}""")
            if k % 2 == 0: a(f"v_bitop3_b32 v22, v22, v{124+4*k}, v{128+4*k} bitop3:0xfe")
        a(f"""
        s_waitcnt lgkmcnt(0)
        v_bitop3_b32 v36, v37, v38, v39 bitop3:0x7f
        v_and_b32 v36, {CFL & 0xf0}, v36
        v_or_b32 v22, v22, v36
        v_and_b32 v22, 0xff, v22
        v_cmp_ne_u32 vcc, 0, v22
        v_permlane32_swap_b32 v128, v130
        s_sub_u32 s61, s61, 1
        s_cselect_b64 vcc, 0, vcc
        s_cbranch_vccnz L_part_poll
        """)
        if not self.o("cf", 0): self.stamp(9)
        a(f"""
        v_permlane32_swap_b32 v129, v131
        v_add_f32 v128, v128, v130
        v_add_f32 v129, v129, v131
        v_and_b32 v31, 0xffff0000, v31
        v_fma_f32 v34, v31, v167, v166
        v_permlane16_swap_b32 v128, v129
        v_add_f32 v128, v128, v129
        v_mul_f32 v31, {f2u(32.0)}, v31
        v_mul_f32 v32, {f2u(1/32)}, v32
        v_add_f32_dpp v128, v128, v128 row_ror:8 row_mask:0xf bank_mask:0xf
        v_fma_f32 v128, v128, v165, v31
        v_mul_f32 v33, {f2u(-LOG2E)}, v128
        v_exp_f32 v33, v33
        v_mul_f32 v128, v128, v32
        v_add_f32 v33, 1.0, v33
        v_rcp_f32 v33, v33
        v_fmac_f32 v34, v128, v33
        v_cvt_pk_bf16_f32 v34, v34, v34
        {"" if self.o("pollafter", 1) == 1 and self.o("fl", 0) not in (2, 3, 4) else "s_barrier"}
        global_store_short v28, v34, s[32:33]
        """)
        if not self.o("cf", 0): self.stamp(10)
        a("L_mw_end:")
        self.dump()
        a("s_endpgm")

    def helper(self):
        a = self.a
        ST = 224
        FL = self.o("fl", 0)
        FLS = f"""s_mul_i32 s4, s{S_XCD}, 18
        s_and_b32 s5, s50, 0xf0
        s_max_u32 s6, s4, s5
        s_add_u32 s4, s4, 18
        s_add_u32 s5, s5, 16
        s_min_u32 s4, s4, s5
        s_sub_u32 s4, s4, s6
        s_sub_u32 s5, s50, s6
        v_cvt_f32_u32 v8, s4
        v_rcp_f32 v8, v8
        v_cvt_f32_u32 v9, v62
        v_add_f32 v9, 0.5, v9
        v_mul_f32 v8, v8, v9
        v_cvt_u32_f32 v8, v8
        v_mul_u32_u24 v8, s4, v8
        v_sub_u32 v8, v62, v8
        v_cmp_eq_u32 s[6:7], s5, v8
        v_mov_b32 v68, v36""" if FL else ""
        a("L_helper:")
        if self.o("tile_at", 32) == 33: a(self.tile_first)
        a("s_waitcnt lgkmcnt(0)\ns_barrier")
        self.stamp(11)
        a(f"s_setprio {self.o('phs', 0)}")
        if self.o("tdelay", 0): a(f"s_sleep {self.o('tdelay', 0)}")
        if self.o("tile_at", 32) == 32: a(self.tile_first)
        a(f"""v_and_b32 v62, 255, v0
        v_lshlrev_b32 v4, 4, v62
        v_add_u32 v4, {STATS + 4096}, v4
        v_add_u32 v7, 8192, v4""")
        SL_ = self.o("statlate", 1)
        t1at, t2at = self.o("t1at", 40), self.o("t2at", 41)
        if not SL_ and not self.o("stmid", 1):
            for t in self.stat_ld: a(t)
        T4 = self.o("t4", 0)
        PG = self.o("prog", 0)
        if T4 and not PG: a(f"s_cmp_eq_u32 s47, 2\ns_cbranch_scc0 L_ct4\nv_add_u32 v76, {352*9216}, v76\nglobal_load_dword v1, v76, s[56:57]\nL_ct4:")
        if t1at == 40: a(self.T1)
        if PG >= 11:
            t2at = 99
            a(f"v_mov_b32 v38, v63\ns_and_b32 s58, s51, 1\ns_mul_i32 s42, s58, {18*64}\ns_add_u32 s42, s42, {64*self.wd['t2']}\ns_cmp_lt_u32 s51, 2\ns_cmovk_i32 s42, 3168\ns_cselect_b32 s58, s58, 2\ns_lshl_b32 s43, s{S_SLOT}, 6\ns_add_u32 s42, s42, s43")
            self.touch_setup()
            a("v_mov_b32 v63, v38")
        elif self.o("n2", 2) == 0: t2at = 99
        else:
            a(f"v_mov_b32 v38, v63\ns_xor_b32 s42, s51, {3 if self.o('t2hi', 0) else 0}\ns_mul_i32 s42, s42, {18*64}\ns_lshl_b32 s43, s{S_SLOT}, 6\ns_add_u32 s42, s42, s43\ns_add_u32 s42, s42, {64*self.wd['t2']}\ns_mov_b32 s58, 2")
            self.touch_setup()
            a("v_mov_b32 v63, v38")
        for k in range(4):
            a(f"s_bfe_u32 s43, s{S_TT}, {(2<<16) | (2*k)}\ns_mul_i32 s43, s43, 0x20004000\ns_and_b32 s43, s43, 0x40004000\nv_mov_b32 v{56+k}, s43")
        a(f"""v_and_b32 v88, 3, v0
        v_mul_u32_u24 v5, {UCH}, v88
        v_lshl_add_u32 v5, v63, 4, v5
        v_add_u32 v5, {UBASE+UPAD}, v5
        v_mov_b32 v63, 0x40004000
        s_lshr_b32 s43, s51, 1
        s_lshl_b32 s43, s43, 4
        s_add_u32 s43, s43, {CFL}
        v_lshl_add_u32 v88, v88, 2, s43
        s_mov_b32 s61, {SPIN}
        v_lshlrev_b32 v37, 2, v62
        v_add_u32 v64, {UBASE+UPAD}, v37
        v_add_u32 v65, {UBASE+UPAD+UCH}, v37
        v_add_u32 v66, {UBASE+UPAD+2*UCH}, v37
        v_add_u32 v67, {UBASE+UPAD+3*UCH}, v37
        v_bfe_u32 v37, v0, 1, 2
        v_mul_u32_u24 v37, 320, v37
        v_and_b32 v39, 0x78, v0
        v_lshl_add_u32 v37, v39, 1, v37
        v_and_b32 v39, 1, v0
        v_lshl_add_u32 v37, v39, 3, v37
        s_lshr_b32 s43, s51, 1
        s_mul_i32 s43, s43, {YT}
        s_add_u32 s43, s43, {YOFF}
        v_add_u32 v37, s43, v37
        v_add_u32 v39, {2*TCH}, v37
        v_mul_u32_u24 v36, 2304, v62
        v_add_u32 v36, s54, v36
        {FLS}
        v_mov_b32 v8, {f2u(-32*LOG2E)}
        v_mov_b32 v9, 0xffff0000
        v_lshlrev_b32 v62, 6, v62
        v_xor_b32 v62, s{S_T16}, v62
        v_and_b32 v10, 15, v0
        v_lshrrev_b32 v11, 1, v0
        v_and_b32 v11, 24, v11
        s_lshl_b32 s42, s51, 4
        s_mov_b32 s58, {(3 << 12) | ((7 << 11) << 16)}
        s_mov_b32 s59, {(0x1f << 6) | ((7 << 3) << 16)}
        s_lshr_b64 s[58:59], s[58:59], s42
        s_and_b32 s58, s58, 0xffff
        s_lshr_b32 s59, {(0x7f << 5) | ((0x1ff << 4) << 16)}, s42
        s_and_b32 s59, s59, 0xffff
        s_lshl_b32 s42, s51, 10
        s_add_u32 s42, s42, {BND}
        v_add_u32 v12, s42, v3
        """)
        for h in range(2):
            a(f"v_lshlrev_b32 v13, v10, s{58+h}\nv_bfe_u32 v13, v13, v11, 8\nv_lshl_or_b32 v13, v13, 15, v13")
            for j in range(4): a(f"v_and_b32 v{16+4*h+j}, {0x10001 << (2*j)}, v13\nv_mul_u32_u24 v{16+4*h+j}, {0x3f80 >> (2*j)}, v{16+4*h+j}")
            a(f"ds_write_b128 v12, {vr(16+4*h,4)} offset:{4096*h}")
        if self.o("d16", 0):
            for r in range(16, 32, 2): a(f"v_mov_b64 {vr(r,2)}, 0")
        if PG:
            seq = ("TS0123", "T0S123", "0TS123", "T01S23", "0S1T23", "S0T123", "0T1S23", "0T123S", "T0123S", "T0123", "A0123", "0A123", "S0A123", "0S1A23", "0S12A3", "01A23", "S01A23")[PG - 1]
            n = 0
            a("s_setprio 3")
            for ch in seq:
                if ch == "T":
                    a(f"s_cmp_eq_u32 s47, 2\ns_cbranch_scc0 L_ct4\nv_add_u32 v76, {352*9216}, v76\nglobal_load_dword v1, v76, s[56:57]\ns_branch L_ct5\nL_ct4:\nglobal_load_dword v1, v3, s[24:25]\nL_ct5:".replace("v1, v3, s[24:25]", "v1, v11, s[24:25]")); n += 1
                elif ch == "A":
                    a("global_load_dword v1, v76, s[56:57]"); n += 1
                elif ch == "S":
                    for t in self.stat_ld: a(t)
                    n += 4
                else:
                    k = int(ch)
                    a(f"s_waitcnt vmcnt({3 - k + n})")
                    if k == 3: self.stamp(12)
                    if k == 0: a(self.fs(10, "q0"))
                    for r in range(4): a(f"v_xor_b32 v{40+4*k+r}, v{56+r}, v{40+4*k+r}")
                    a(f"ds_write_b128 v5, {vr(40+4*k,4)} offset:{1024*k}")
            self.s_late = "S" not in seq
            self.t_last = not self.s_late and max(seq.find("T"), seq.find("A")) > seq.index("S")
            a("s_branch L_tile_or\nL_tile_chk:")
            for k in range(4):
                for r in range(4): a(f"v_xor_b32 v{40+4*k+r}, v{56+r}, v{40+4*k+r}")
                a(f"ds_write_b128 v5, {vr(40+4*k,4)} offset:{1024*k}")
            a("L_tile_or:")
        else:
            if not SL_ and self.o("stmid", 1):
                assert t1at != 40
                if t2at == 40:
                    assert self.o("n2", 2) == 2 and not T4
                    a(self.T2)
                for t in self.stat_ld: a(t)
            nb = 0 if SL_ else 4
            if t1at == 40 and t2at == 40: a(f"s_waitcnt vmcnt({nb+1})")
            elif t1at == 40: a(f"s_waitcnt vmcnt({nb+1})\ns_cmp_eq_u32 s47, 3\ns_cbranch_scc1 L_tw\ns_waitcnt vmcnt({nb})\nL_tw:")
            elif T4 or t2at == 40: a(f"s_waitcnt vmcnt({nb+1})\ns_cmp_eq_u32 s47, 2\ns_cbranch_scc1 L_tw\ns_waitcnt vmcnt({nb})\nL_tw:")
            else: a(f"s_waitcnt vmcnt({nb})")
            self.stamp(12)
            a(f"s_setprio 3\nL_tile_chk:")
            for k in range(4):
                for r in range(4): a(f"v_xor_b32 v{40+4*k+r}, v{56+r}, v{40+4*k+r}")
                a(f"ds_write_b128 v5, {vr(40+4*k,4)} offset:{1024*k}")
        a("v_bitop3_b32 v38, v40, v41, v42 bitop3:0xfe")
        for r in range(43, 55, 2): a(f"v_bitop3_b32 v38, v38, v{r}, v{r+1} bitop3:0xfe")
        a(f"""v_bitop3_b32 v38, v38, v55, v63 bitop3:0xa8
        v_cmp_ne_u32 vcc, 0, v38
        s_cbranch_vccz L_tile_ok
        {chr(10).join(self.tile_ld)}
        s_waitcnt vmcnt(0)
        s_sub_u32 s61, s61, 1
        s_cbranch_scc0 L_tile_chk
L_tile_ok:""")
        self.stamp(6)
        if self.o("ntile", 0): a(f"s_sub_u32 s72, {SPIN+1}, s61")
        def statchk():
            a(f"s_waitcnt vmcnt({1 if PG and self.t_last else 0})\nL_h_poll:\nv_mov_b32 v38, 0")
            for k in range(8):
                a(f"v_xor_b32 v13, {(0x7ff ^ (512*(k>>1)) ^ (k&1)) << 5}, v{ST+1+2*k}\nv_bitop3_b32 v38, v38, v13, v62 bitop3:0xf6")
            a(f"""v_and_b32 v38, 0xffff, v38
            v_cmp_ne_u32 vcc, 0, v38
            s_cbranch_vccz L_h_ok
            {chr(10).join(self.stat_ld)}
            s_waitcnt vmcnt(0)
            s_sub_u32 s61, s61, 16
            s_cbranch_scc0 L_h_poll
L_h_ok:""")
        a(f"s_mov_b32 s61, {SPIN*16}")
        if SL_:
            for t in self.stat_ld: a(t)
        else:
            if t1at == 40: a("s_waitcnt vmcnt(1)\ns_cmp_eq_u32 s47, 3\ns_cbranch_scc1 L_h_poll")
            if T4 and not self.o("stmid", 1) and not self.o("stchk", 0): a("s_waitcnt vmcnt(1)\ns_cmp_eq_u32 s47, 2\ns_cbranch_scc1 L_h_poll")
            if not self.o("stchk", 0): statchk()
            if self.o("ntile", 0): a(f"s_sub_u32 s74, {SPIN*16+64}, s61")
        a(f"s_setprio {self.o('pur', 3)}\ns_waitcnt lgkmcnt(0)\ns_barrier")
        self.stamp(7)
        B = lambda s: 96 + 32 * s
        D16 = self.o("d16", 0); HP = self.o("hpre", 2); ASY = self.o("asy", 15)
        rdu = lambda s: "\n".join(f"ds_read_u16_d16_hi v{16+8*(s&1)+4*t+c}, v64 offset:{c*UCH+1024*s+2*t}" for t in range(2) for c in range(4))
        if D16: a(rdu(0))
        for sp in range(2):
            for c in range(4):
                if not D16: a(f"ds_read2st64_b32 {vr(16+8*sp+2*c,2)}, v{64+c} offset0:{8*sp} offset1:{8*sp+4}")
        RU = lambda s, c: 16 + 8 * (s >> 1) + 2 * c + (s & 1)
        a(f"s_setprio {self.o('ph0', 0)}")
        if t2at == 41 and 0: a(self.T2.replace("L_ct2:", "s_waitcnt vmcnt(1)\ns_branch L_h_poll\nL_ct2:") if SL_ else self.T2)
        if SL_: statchk()
        a("s_waitcnt lgkmcnt(4)")
        def pre(s, t):
            if self.o("hx", 0) in (1, 2) or self.o("hx", 0) == 3 and t == 1: return
            u, g, p = B(s) + 4 * t, B(s) + 8 + 4 * t, B(s) + 24 + 2 * t
            st = ST + 4 * s + 2 * t
            if D16:
                u = 16 + 8 * (s & 1) + 4 * t
                if (s, t) == (0, 1) or (s > 0 and t == 0): a("s_waitcnt lgkmcnt(0)")
            else:
                for c in range(4): a(f"v_lshlrev_b32 v{u+c}, 16, v{RU(s,c)}" if t == 0 else f"v_and_b32 v{u+c}, v9, v{RU(s,c)}")
            for c in range(4): a(f"v_mul_f32 v{g+c}, v8, v{u+c}")
            for c in range(4): a(f"v_exp_f32 v{g+c}, v{g+c}")
            if not (self.o("stchk", 0) and 2 * s + t < HP): a(f"v_and_b32 v{p+1}, v9, v{st}")
            for c in range(4): a(f"v_add_f32 v{g+c}, 1.0, v{g+c}")
            for c in range(4): a(f"v_rcp_f32 v{g+c}, v{g+c}")
            if not (self.o("stchk", 0) and 2 * s + t < HP): a(f"v_lshlrev_b32 v{p}, 16, v{st}")
        def aread(s):
            a(f"s_setprio {self.o('psp', 2)}\nds_read_b32 v41, v88 offset:{32*s}")
            for c in range(4): a(f"ds_read_b64 {vr(44+2*c,2)}, v{(37, 39)[c>>1]} offset:{(c&1)*TCH + 2*YT*s}")
            a(f"s_setprio {self.o('php', 0)}")
        def waitflag(s):
            lab = f"L_w{s}"
            SLP = self.o("hs3", 1) if s == 3 else self.o("hs", 2)
            CMB = s == 3 and self.o("cmb3", 1) or s < 3 and self.o("cmb", 0)
            if (ASY >> s) & 1: a(f"s_waitcnt lgkmcnt(0)\nv_cmp_eq_u32 vcc, 0, v41\ns_cbranch_vccz {lab}_go")
            rdy = "\n".join(f"ds_read_b64 {vr(44+2*c,2)}, v{(37, 39)[c>>1]} offset:{(c&1)*TCH + 2*YT*s}" for c in range(4))
            a(f"""s_setprio {self.o("psp", 2)}
{lab}:
            ds_read_b32 v41, v88 offset:{32*s}
            {rdy if CMB else ""}
            s_waitcnt lgkmcnt(0)
            v_cmp_eq_u32 vcc, 0, v41
            s_cbranch_vccz {lab}_ok
            {"s_sleep %d" % SLP if SLP else ""}
            s_sub_u32 s61, s61, 1
            s_cbranch_scc0 {lab}
{lab}_ok:""")
            if CMB:
                if s < 3: a(f"s_setprio {self.o('phf', 0)}")
            else: a(rdy + ("\n" + rdu(s + 1) if D16 and s < 3 else "") + f"\ns_setprio {self.o('phf', 0)}\ns_waitcnt lgkmcnt({8 if D16 else 0})")
            a(f"{lab}_go:")
        def fin(s, t):
            if self.o("hx", 0) == 2: return
            u, g, y, p = B(s) + 4 * t, B(s) + 8 + 4 * t, B(s) + 16 + 4 * t, B(s) + 24 + 2 * t
            for c in range(4): a(f"v_fma_f32 v{y+c}, v{44+2*c+t}, v{g+c}, v{p+1}")
            for c in range(4): a(f"v_fma_f32 v{u+c}, v{16+8*(s&1)+4*t+c if D16 else u+c}, v{y+c}, v{p}")
            a(f"v_cvt_pk_bf16_f32 v{g}, v{u}, v{u+1}\nv_cvt_pk_bf16_f32 v{g+1}, v{u+2}, v{u+3}")
        def st(s, t):
            ins = f"global_store_dwordx2 v36, {vr(B(s)+8+4*t,2)}, s[32:33] offset:{1152*t}"
            XF = ("", "sc1", "sc0 sc1", "nt", "sc1 nt")[self.o("xf", 0)]
            if XF and s < self.o("xfn", 4): a(f"s_cmp_ge_u32 s{S_SLOT}, 16\ns_cbranch_scc1 L_x{s}{t}\n{ins}\ns_branch L_y{s}{t}\nL_x{s}{t}:\n{ins} {XF}\nL_y{s}{t}:")
            else: a(ins)
            if t == 1 and s < 3: a(f"v_add_u32 v36, {512*1152}, v36")
        def flush(s):
            a("s_mov_b64 exec, s[6:7]")
            for t in range(2): a(f"global_store_dwordx2 v68, {vr(B(s)+8+4*t,2)}, s[32:33] offset:{1152*t} sc1")
            a(f"v_add_u32 v68, {512*1152}, v68\ns_mov_b64 exec, -1")
        todo = [(s, t) for s in range(4) for t in range(2)]
        assert not SL_
        if t2at == 41 and not self.o("stchk", 0): a(self.T2)
        for _ in range(self.o("hpre", 2)): pre(*todo.pop(0))
        if self.o("stchk", 0):
            assert HP <= 4
            if PG and self.s_late:
                for t in self.stat_ld: a(t)
            if ASY & 1: aread(0)
            statchk()
            if t2at == 41: a(self.T2)
            for k in range(HP): a(f"v_and_b32 v{B(k>>1)+25+2*(k&1)}, v9, v{ST+2*k}\nv_lshlrev_b32 v{B(k>>1)+24+2*(k&1)}, 16, v{ST+2*k}")
        for s in range(4):
            if s < 3: a(self.fs(s + 1, "barstamp"))
            if s > 0 and self.o("sts", 0): a(self.fs((0, 1, 3, 5)[s], "sts") + "\ns_waitcnt vmcnt(0)\n" + self.fs((0, 2, 4, 6)[s], "sts"))
            if self.o("st2", 0): a(self.fs((1, 3, 5, 10)[s], "st2"))
            waitflag(s)
            if self.o("st2", 0): a(self.fs((2, 4, 6, 11)[s], "st2"))
            if self.o("sts", 0) and s in (0, 1, 3): a(self.fs((10, 11, 0, 12)[s], "sts"))
            fin(s, 0); st(s, 0)
            if todo and todo[0] == (s, 1): pre(*todo.pop(0))
            fin(s, 1)
            if self.o("b2b", 0): st(s, 1)
            if s < 3 and self.o('phf', 0) != self.o('php', 0): a(f"s_setprio {self.o('php', 0)}")
            if todo: pre(*todo.pop(0))
            if not self.o("b2b", 0): st(s, 1)
            if s < 3 and (ASY >> (s + 1)) & 1: aread(s + 1)
            if todo and not self.o("lazy", 0): pre(*todo.pop(0))
            if s in (1, 2) and FL in (1, 2, 3): flush(s - 1)
            if s == 2 and FL == 5: flush(0); flush(1)
        self.stamp(8)
        if self.o("pollafter", 1) == 2: a(f"s_waitcnt vmcnt({self.o('pav', 63)})\ns_barrier")
        a("s_waitcnt vmcnt(0)")
        if not self.o("cf", 0): self.stamp(9)
        a("s_barrier")
        if FL in (2, 3, 4):
            for s in {2: (2,), 3: (2, 3), 4: (0, 1, 2, 3)}[FL]: flush(s)
            a("s_waitcnt vmcnt(0)\ns_barrier")
        if self.o("wb", 0) == 2: a(f"s_lshl_b32 s42, s{S_SLOT}, 3\ns_add_u32 s42, s42, s{S_W}\ns_cmp_lg_u32 s42, 4\ns_cbranch_scc1 L_nowb\nbuffer_wbl2 sc1\ns_waitcnt vmcnt(0)\nL_nowb:")
        self.dump()
        a("s_endpgm")

    def build(self):
        if self.o("prepad", 0): self.a(".text\n.p2align 8\n.fill %d, 4, 0xbf810000" % (64 * self.o("prepad", 0)))
        self.prologue(); self.spare_pre(); self.ffn_pre(); self.conv_pre()
        self.ln_copy(True); self.conv()
        self.ln_copy(False); self.ffn()
        self.a("L_end:\ns_endpgm\n; never executed: keeps the instruction prefetch inside lines that were pulled into L2\n.fill %d, 4, 0xbf810000\nL_last:" % self.o("tailpad", 96))
        return HEADER + f"""; @launch grid=(256,1,1) block=(512,1,1) lds={LDSZ}
.amdgcn_target "amdgcn-amd-amdhsa--gfx950"
""" + self.post(self.a.text(self.o("verbose", 0))) + """.section .rodata,"a"
.p2align 6
""" + descriptor(KN, 256, 102)

if __name__ == "__main__":
    opt = {}
    for s in sys.argv[2:]:
        k, v = s.split("="); opt[k] = int(v)
    open(sys.argv[1], "w").write(G8(**opt).build())
GEN = G8
```
